```python
import torch

def _softmax(x, axis=-1):
    return torch.softmax(x, dim=axis)
def _gelu(x):
    return torch.nn.functional.gelu(x, approximate="tanh")
def _silu(x):
    return torch.nn.functional.silu(x)
def _sigmoid(x):
    return torch.sigmoid(x)
def _layernorm(x, axis=-1, eps=1e-5):
    m = x.mean(dim=axis, keepdim=True)
    v = x.var(dim=axis, keepdim=True, unbiased=False)
    return (x - m) / torch.sqrt(v + eps)
def _scatter_add(tgt, idx, src, axis=0):
    return tgt.clone().index_add_(axis, idx, src)
def _segment_sum(src, seg, n):
    out = torch.zeros((n,) + src.shape[1:], dtype=src.dtype)
    return out.index_add_(0, seg, src)
def _pad(x, pw):
    flat = tuple(v for pair in reversed(pw) for v in pair)
    return torch.nn.functional.pad(x, flat)

kernel_name = 'concat_heads__spectral_gfnet__ssm_conv_s4__prompt'

def setup_inputs():

    _w = (lambda a: (lambda t: t.to(torch.bfloat16) if t.is_floating_point() else t)(torch.as_tensor(a)))
    def _A_setup():
        B, S, D = 1, 2048, 512
        Df = D // 2 + 1
        return {
            "x": _w((lambda *s: torch.randn(*s, dtype=torch.bfloat16) * 0.05)(B, S, D)),
            "w_r": _w((lambda *s: torch.randn(*s, dtype=torch.bfloat16) * 0.8)(S, Df) * 0.02),
            "w_i": _w((lambda *s: torch.randn(*s, dtype=torch.bfloat16) * 0.8)(S, Df) * 0.02),
        }
    _A_in = _A_setup()

    def _B_setup():
        B, L, D, N = 1, 2048, 512, 128
        A_re = -(lambda _x: torch.exp(torch.as_tensor(_x)))((lambda *s: torch.randn(*s, dtype=torch.bfloat16) * 3.2)(D, N))
        A_im = torch.pi * (lambda *s: torch.randn(*s, dtype=torch.bfloat16) * 0.05)(D, N)
        B_re = (lambda *s: torch.randn(*s, dtype=torch.bfloat16) * 0.1)(D, N)
        B_im = (lambda *s: torch.randn(*s, dtype=torch.bfloat16) * 0.1)(D, N)
        C_re = (lambda *s: torch.randn(*s, dtype=torch.bfloat16) * 0.1)(D, N)
        C_im = (lambda *s: torch.randn(*s, dtype=torch.bfloat16) * 0.1)(D, N)
        log_dt = (lambda *s: torch.randn(*s, dtype=torch.bfloat16) * 0.05)(D) * 0.5 - 4.0
        Dskip = (lambda *s: torch.randn(*s, dtype=torch.bfloat16) * 0.05)(D)
        return {
            "u": _w((lambda *s: torch.randn(*s, dtype=torch.bfloat16) * 0.05)(B, L, D)),
            "A_re": _w(A_re),
            "A_im": _w(A_im),
            "B_re": _w(B_re),
            "B_im": _w(B_im),
            "C_re": _w(C_re),
            "C_im": _w(C_im),
            "log_dt": _w(log_dt),
            "Dskip": _w(Dskip),
        }
    _B_in = _B_setup()

    return {
        "A_x": _A_in["x"],
        "A_w_r": _A_in["w_r"],
        "A_w_i": _A_in["w_i"],
        "B_u": _B_in["u"],
        "B_A_re": _B_in["A_re"],
        "B_A_im": _B_in["A_im"],
        "B_B_re": _B_in["B_re"],
        "B_B_im": _B_in["B_im"],
        "B_C_re": _B_in["C_re"],
        "B_C_im": _B_in["C_im"],
        "B_log_dt": _B_in["log_dt"],
        "B_Dskip": _B_in["Dskip"],
    }

def reference(A_x, A_w_r, A_w_i, B_u, B_A_re, B_A_im, B_B_re, B_B_im, B_C_re, B_C_im, B_log_dt, B_Dskip):
    def _A_ref(x, w_r, w_i):
        B, S, D = x.shape
        X = (lambda x, axes=(-2,-1): torch.fft.rfft2(x.float(), dim=axes))(x, axes=(-2, -1))
        W = w_r + 1j * w_i
        X = X * W
        y = (lambda x, s, axes=(-2,-1): torch.fft.irfft2(x, s=s, dim=axes).to(torch.bfloat16))(X, (S, D), axes=(-2, -1))
        return y

    def _B_ref(u, A_re, A_im, B_re, B_im, C_re, C_im, log_dt, Dskip):
        Bsz, L, D = u.shape
        dt = torch.exp(log_dt)[:, None]
        A = A_re + 1j * A_im
        Bc = B_re + 1j * B_im
        Cc = C_re + 1j * C_im
        logdA = dt * A
        dB = dt * Bc
        l = (lambda x, dt: x.to(dt))(torch.arange(L), A_re.dtype)
        P = torch.exp(logdA[:, :, None] * l[None, None, :])
        K = torch.einsum("dn,dnl,dn->dl", Cc, P, dB).real
        L2 = 2 * L
        Kp = _pad(K, ((0, 0), (0, L)))
        up = (lambda x, *d: x.permute(*d))(u, 0, 2, 1)
        up = _pad(up, ((0, 0), (0, 0), (0, L)))
        Kf = (lambda x, axes=(-2,-1): torch.fft.rfft2(x.float(), dim=axes))(Kp[:, None, :], axes=(-2, -1))
        Uf = (lambda x, axes=(-2,-1): torch.fft.rfft2(x.float(), dim=axes))(up[:, :, None, :], axes=(-2, -1))
        Yf = Uf * Kf[None, :, :, :]
        y = (lambda x, s, axes=(-2,-1): torch.fft.irfft2(x, s=s, dim=axes).to(torch.bfloat16))(Yf, (1, L2), axes=(-2, -1))[:, :, 0, :L]
        y = (lambda x, *d: x.permute(*d))(y, 0, 2, 1) + u * Dskip[None, None, :]
        return y

    a = _A_ref(A_x, A_w_r, A_w_i)
    b = _B_ref(B_u, B_A_re, B_A_im, B_B_re, B_B_im, B_C_re, B_C_im, B_log_dt, B_Dskip)
    return torch.concatenate([a, b], axis=-1)
```

```python
import re
TRANS = ("v_exp_f32","v_log_f32","v_rcp_f32","v_rsq_f32","v_sqrt_f32","v_sin_f32","v_cos_f32")
def regs_of(tok):
    tok = tok.strip()
    tok = tok.lstrip("-")
    m = re.match(r"^(abs|neg)\((.*)\)$", tok)
    if m: tok = m.group(2)
    tok = tok.strip("|")
    m = re.match(r"^([vsa])(\d+)$", tok)
    if m: return [(m.group(1), int(m.group(2)))]
    m = re.match(r"^([vsa])\[(\d+):(\d+)\]$", tok)
    if m: return [(m.group(1), i) for i in range(int(m.group(2)), int(m.group(3))+1)]
    if tok == "vcc": return [("s",106),("s",107)]
    if tok == "exec": return [("s",126),("s",127)]
    if tok == "m0": return [("s",124)]
    return []
class Ins:
    def __init__(self, text):
        self.text = text
        t = text.split(";")[0].strip()
        p = t.split(None, 1)
        self.op = p[0]
        ops = p[1] if len(p) > 1 else ""
        parts = re.split(r",\s*(?![^\[]*\])", ops)
        if parts:
            last = parts[-1].split()
            self.mods = last[1:] if last else []
            parts[-1] = last[0] if last else ""
        self.parts = parts
        op = self.op
        self.is_mfma = op.startswith("v_mfma")
        self.is_valu = op.startswith("v_") and not self.is_mfma
        self.is_trans = any(op.startswith(x) for x in TRANS)
        self.is_vmem = op.startswith(("buffer_","global_"))
        self.is_ds = op.startswith("ds_")
        self.is_salu = op.startswith("s_")
        R = [regs_of(x) for x in parts]
        self.w = []; self.r = []
        self.cread = []
        if self.is_mfma:
            self.w = R[0]; self.ab = R[1]+R[2]; self.cread = R[3]; self.r = self.ab + self.cread
            self.passes = 8 if "32x32" in op else 4
        elif self.is_valu:
            if op.startswith("v_cmp"):
                self.w = R[0]; self.r = sum(R[1:], [])
                if op.startswith("v_cmpx"): self.w = self.w + [("s",126),("s",127)]
            elif op.startswith(("v_add_co","v_sub_co","v_addc_co","v_subb_co")):
                self.w = R[0]+R[1]; self.r = sum(R[2:], [])
            elif op.startswith("v_permlane") and "swap" in op:
                self.w = R[0]+R[1]; self.r = R[0]+R[1]
            else:
                self.w = R[0]; self.r = sum(R[1:], [])
                if op.startswith(("v_fmac","v_pk_fmac","v_writelane")): self.r = self.r + R[0]
                if op.startswith("v_cndmask") and len(parts) == 3: self.r += [("s",106),("s",107)]
        elif self.is_vmem:
            if "store" in op or ("atomic" in op):
                self.r = sum(R, []); self.data = R[0] if op.startswith("buffer") else R[1]
            elif "lds" in self.mods:
                self.r = sum(R, []) + [("s",124)]
            else:
                self.w = R[0]; self.r = sum(R[1:], [])
                if "d16" in op: self.r += R[0]
        elif self.is_ds:
            if op.startswith(("ds_write","ds_add")): self.r = sum(R, [])
            else: self.w = R[0]; self.r = sum(R[1:], [])
        elif self.is_salu:
            if op.startswith(("s_cmp","s_cbranch","s_branch","s_waitcnt","s_barrier","s_nop","s_sleep","s_setprio","s_endpgm")):
                self.r = sum(R, [])
            else:
                self.w = R[0] if R else []; self.r = sum(R[1:], [])
                if "saveexec" in op: self.w = self.w + [("s",126),("s",127)]
        self.is_dpp = any(m.startswith(("row_","quad_perm","wave_","row_bcast")) for m in self.mods)
        self.states = 1
        if op == "s_nop": self.states = int(parts[0]) + 1
def need(prev, cur):
    n = 0
    pw = set(prev.w); cr = set(cur.r); cw = set(cur.w)
    pwv = {x for x in pw if x[0] in "va"}; pws = {x for x in pw if x[0] == "s"}
    if prev.is_valu:
        if cur.is_mfma and pwv & cr: n = max(n, 2)
        if prev.is_trans and cur.is_valu and not cur.is_trans and pwv & cr: n = max(n, 1)
        if prev.is_trans and cur.is_mfma and pwv & cr: n = max(n, 2)
        if cur.op.startswith(("v_readfirstlane","v_readlane")) and pwv & cr: n = max(n, 1)
        if cur.op.startswith("v_permlane") and pwv & cr: n = max(n, 2)
        if cur.is_dpp and pwv & cr: n = max(n, 2)
        if cur.is_vmem and pws & cr: n = max(n, 5)
        if cur.is_valu and pws & cr: n = max(n, 4 if cur.op.startswith(("v_readlane","v_writelane")) else 2)
        if cur.is_salu and pws & cr: n = max(n, 1)
        if ("s",126) in pws and (cur.is_mfma or cur.op.startswith(("v_readlane","v_readfirstlane","v_permlane"))): n = max(n, 4)
        if ("s",126) in pws and cur.is_dpp: n = max(n, 5)
        if any(m.startswith(("op_sel","dst_sel")) for m in prev.mods) and not prev.op.startswith("v_pk") and cur.is_valu and pwv & (cr|cw): n = max(n,1)
    if prev.is_mfma:
        big = {4:8, 8:12}[prev.passes]
        if cur.is_mfma:
            if pw & set(cur.ab): n = max(n, big)
            if pw & set(cur.cread) and not (cur.cread == prev.w and cur.passes == prev.passes): n = max(n, {4:6,8:10}[prev.passes])
            if pw & cw and not (cur.cread == prev.w): n = max(n, {4:6,8:10}[prev.passes])
        elif (cur.is_valu or cur.is_vmem or cur.is_ds) and pw & (cr | cw): n = max(n, big)
        if cur.is_valu and set(prev.cread) & cw: n = max(n, {4:3,8:7}[prev.passes])
    if prev.is_vmem and ("store" in prev.op) and ("x3" in prev.op or "x4" in prev.op):
        if set(prev.data) & cw: n = max(n, 2)
    if prev.is_salu and ("s",124) in pw and cur.is_vmem and "lds" in cur.mods: n = max(n, 1)
    return n
class Asm:
    def __init__(self):
        self.lines = []; self.hist = []; self.ninst = 0
    def raw(self, t): self.lines.append(t)
    def label(self, l):
        self.lines.append(l + ":")
    def __call__(self, text):
        for t in text.split("\n"):
            t = t.strip()
            if not t: continue
            if t.startswith(";") or t.startswith("."): self.lines.append(t); continue
            if t.endswith(":"): self.lines.append(t); continue
            cur = Ins(t)
            d = 0; pad = 0
            for prev in reversed(self.hist):
                n = need(prev, cur)
                if n > d: pad = max(pad, n - d)
                d += prev.states
                if d >= 12: break
            if pad:
                nop = Ins("s_nop %d" % (pad-1)); self.hist.append(nop); self.lines.append("    " + nop.text); self.ninst += 1
            self.hist.append(cur); self.lines.append("    " + t); self.ninst += 1
            self.hist = self.hist[-16:]
    def flush_hazards(self):
        self("s_nop 7\ns_nop 3")
    def text(self): return "\n".join(self.lines) + "\n"
```

```python
import sys, struct
from asmlib import Asm
NAME = "concat_heads__spectral_gfnet__ssm_conv_s4__prompt"
def f32(x): return "0x%08x" % struct.unpack("<I", struct.pack("<f", x))[0]
def V(a, n=1): return "v%d" % a if n == 1 else "v[%d:%d]" % (a, a+n-1)
def S(a, n=1): return "s%d" % a if n == 1 else "s[%d:%d]" % (a, a+n-1)

D1 = 0x000000; D2 = 0x400000; UT = 0x800000; YT = 0xC00000
FLA = 0x1000000; FLB = 0x1040000; EPA = 0x1080000; EPB = 0x1080080
WS_USED = 0x1100000
STAMP_OFF = 0xC800000
RA = 32
SPIN = 400000
RAW = 0; X1 = 16384; X2 = X1 + 16*1040; LY = X2 + 8*2064 + 1024; LY2 = LY + 16*528
X2I = 0; X1I = 21760
TR = 0
UPAD = 576; USTR = UPAD + 4096; CP = 2*USTR; CSTR = 4160; CCH = 8*CSTR
LDS_TOTAL = CP + 2*CCH
assert LY2 + 8*1040 <= LDS_TOTAL

def gen(stamps=False):
    a = Asm()
    nst = [0]
    def stamp(i):
        if stamps: a("s_memrealtime %s" % S(60+2*i, 2))
    def write_stamps(n, tag):
        if not stamps: return
        a("s_waitcnt lgkmcnt(0)")
        a("v_cmp_eq_u32 vcc, 0, v0\ns_and_saveexec_b64 s[58:59], vcc\ns_cbranch_execz Lst_%s" % tag)
        a("s_mov_b32 s10, 0x10000000")
        a("s_lshl_b32 s57, s2, 7\ns_add_u32 s57, s57, 0x%x\nv_mov_b32 v100, s57" % STAMP_OFF)
        for i in range(n):
            a("v_mov_b32 v102, s%d\nv_mov_b32 v103, s%d" % (60+2*i, 61+2*i))
            a("buffer_store_dwordx2 v[102:103], v100, s[8:11], 0 offen offset:%d\ns_nop 1" % (8*i))
        a("Lst_%s:" % tag)
    def cs4(c, s, f0, step, t):
        a("v_add_f32 %s, %s, %s" % (V(t), V(f0), V(step)))
        a("v_fma_f32 %s, 2.0, %s, %s" % (V(t+1), V(step), V(f0)))
        a("v_fma_f32 %s, 2.0, %s, %s" % (V(t+2), V(step), V(t)))
        src = [f0, t, t+1, t+2]
        for j in range(4):
            if c is not None: a("v_cos_f32 %s, %s" % (V(c+j), V(src[j])))
            if s is not None: a("v_sin_f32 %s, %s" % (V(s+j), V(src[j])))
    def pk(d, x, y, nx=False, ny=False):
        a("v_cvt_pk_bf16_f32 %s, %s%s, %s%s" % (V(d), "-" if nx else "", V(x), "-" if ny else "", V(y)))
    def pk2(d, x, neg=False):
        pk(d, x, x+1, neg, neg); pk(d+1, x+2, x+3, neg, neg)
    def planar(d, re, im): pk2(d, re); pk2(d+2, im)
    def inter(d, re, im):
        for j in range(4): pk(d+j, re+j, im+j)
    def mfma(d, x, y, c="0"):
        a("v_mfma_f32_16x16x32_bf16 %s, %s, %s, %s" % (V(d,4), V(x,4), V(y,4), c if c == "0" else V(c,4)))
    def srd_consts(d, nbytes):
        a("s_mov_b32 %s, 0x%x\ns_mov_b32 %s, 0x20000" % (S(d+2), nbytes, S(d+3)))

    a.raw("; @launch grid=(512,1,1) block=(512,1,1) lds=%d" % LDS_TOTAL)
    a.raw('.amdgcn_target "amdgcn-amd-amdhsa--gfx950"\n.text')
    k = NAME + "_kernel"
    a.raw(".globl %s\n.p2align 8\n.type %s,@function\n%s:" % (k,k,k))
    vLane, vL, vG, vT0 = 1, 2, 3, 4
    vTag = 12
    sW, sQ, sT = 24, 25, 26
    stamp(0)
    a("s_load_dwordx2 s[8:9], s[0:1], 112")
    a("s_cmp_ge_u32 s2, 256\ns_cbranch_scc1 L_type2")
    a("s_cmp_lt_u32 s2, 128\ns_cselect_b32 s3, 0, 24")
    a("s_load_dwordx2 s[4:5], s[0:1], s3")
    a("s_load_dwordx2 s[16:17], s[0:1], 8\ns_load_dwordx2 s[20:21], s[0:1], 16\ns_load_dwordx2 s[12:13], s[0:1], 96")
    a("s_setprio 3")
    srd_consts(4, 0x200000); srd_consts(8, WS_USED); srd_consts(12, 0x400000); srd_consts(16, 2048*514); srd_consts(20, 2048*514)
    a("v_readfirstlane_b32 s24, v0")
    a("v_and_b32 v1, 63, v0\nv_and_b32 v2, 15, v0\nv_bfe_u32 v3, v0, 4, 2")
    a("s_lshr_b32 s24, s24, 6")
    a("s_and_b32 s25, s2, 15\ns_lshr_b32 s26, s2, 4")
    vWoff = 14; vWr = 16; vWi = 20
    a("v_lshrrev_b32 v4, 1, v3\nv_and_b32 v5, 1, v3\nv_lshlrev_b32 v5, 10, v5\nv_lshl_add_u32 v4, v4, 4, v5")
    a("s_lshl_b32 s27, s24, 5\ns_add_u32 s27, s27, s25\nv_add_u32 v4, s27, v4")
    a("v_mul_u32_u24 v15, 514, v4")
    a("s_lshl_b32 s27, s26, 5\nv_lshl_add_u32 v14, v2, 1, v15\nv_add_u32 v14, s27, v14")
    for j in range(8): a("v_mov_b32 %s, 0" % V(vWr+j))
    a("s_mov_b32 s28, %d\ns_mov_b32 s29, %d\ns_mov_b32 s30, %d" % (131584, 2*131584, 3*131584))
    def load_w(off):
        for j in range(4):
            so = "0" if j == 0 else S(27+j)
            a("buffer_load_short_d16_hi %s, %s, s[16:19], %s offen" % (V(vWr+j), V(off), so))
            a("buffer_load_short_d16_hi %s, %s, s[20:23], %s offen" % (V(vWi+j), V(off), so))
    vL16 = 24
    a("v_lshlrev_b32 v24, 4, v1")
    a("v_cvt_f32_u32 v25, v2\nv_cvt_f32_u32 v26, v3")
    vLf, vGf = 25, 26
    for j in range(4): a("v_mov_b32 %s, -1" % V(28+j))
    a("s_cmp_ge_u32 s2, 128\ns_cbranch_scc1 L_ut")
    M1re, M1im, M3 = 32, 36, 40
    M2 = 46
    vX2a = 70
    C, Sn = 74, 78
    a("v_mul_f32 v4, %s, v25" % f32(1/32))
    a("v_mul_f32 v5, 4.0, v26\nv_mul_f32 v6, v5, v4")
    cs4(C, None, 6, 4, 8)
    a("v_cmp_eq_u32 vcc, 0, v2")
    a("v_cndmask_b32 v4, v4, 0.5, vcc" if False else "v_mov_b32 v7, 0.5\nv_cndmask_b32 v4, v4, v7, vcc")
    a("v_mov_b32 v7, %s\nv_cndmask_b32 v7, v7, 0, vcc" % f32(0.25) if False else "v_mov_b32 v7, %s\nv_cndmask_b32 v7, v7, v16, vcc" % f32(0.25))
    a("v_fma_f32 v6, v5, v4, v7")
    cs4(Sn, None, 6, 4, 8)
    a("s_lshl_b32 s31, s24, 18\ns_lshl_b32 s3, s2, 10\ns_add_u32 s31, s31, s3\ns_add_u32 s32, s31, 0x20000")
    a("s_lshl_b32 s33, s24, 11")
    a("s_waitcnt lgkmcnt(0)")
    stamp(1)
    a("s_mov_b32 m0, s33")
    a("buffer_load_dwordx4 v24, s[4:7], s31 offen lds")
    a("s_add_u32 m0, s33, 1024")
    a("buffer_load_dwordx4 v24, s[4:7], s32 offen lds")
    a("s_mov_b32 s3, 0x%x\nbuffer_load_dwordx2 v[12:13], off, s[8:11], s3 sc1" % EPA)
    load_w(vWoff)
    a("s_mul_i32 s34, s2, 17408\ns_add_u32 s34, s34, 0x%x\ns_add_u32 s35, s34, 8192\ns_add_u32 s36, s34, 16384" % D2)
    a("v_lshlrev_b32 v27, 4, v0")
    a("buffer_store_dwordx4 v[28:31], v27, s[8:11], s34 offen sc1\nbuffer_store_dwordx4 v[28:31], v27, s[8:11], s35 offen sc1")
    a("buffer_store_dwordx4 v[28:31], v24, s[8:11], s36 offen sc1")
    a("v_lshlrev_b32 v4, 31, v2\nv_lshrrev_b32 v5, 16, v4\nv_or_b32 v4, v4, v5")
    pk2(M1re, C); pk2(M1im, Sn)
    for m in (M1re, M1im):
        a("v_xor_b32 %s, %s, v4\nv_xor_b32 %s, %s, v4" % (V(m+2), V(m), V(m+3), V(m+1)))
    a("v_lshlrev_b32 v82, 28, v2\nv_and_b32 v82, 0x80000000, v82\nv_lshrrev_b32 v5, 16, v82\nv_or_b32 v82, v82, v5")
    a("v_cmp_gt_u32 s[38:39], 8, v2")
    a("s_lshl_b32 s37, s24, 1")
    def gen_m2(p, slot):
        m = M2 + 8*p
        a("v_lshl_add_u32 v9, v2, 5, %s" % slot)
        a("v_cvt_f32_u32 v4, v9\nv_mul_f32 v4, %s, v4\nv_mul_f32 v6, 4.0, v26\nv_mul_f32 v6, v6, v4" % f32(1/512))
        a("v_sub_u32 v10, 512, v9\nv_cndmask_b32 v9, v10, v9, s[38:39]")
        a("v_lshrrev_b32 v10, 5, v9\nv_mul_u32_u24 v10, 2064, v10\nv_bfe_u32 v11, v9, 4, 1\nv_lshl_add_u32 v10, v11, 10, v10")
        a("v_and_b32 v9, 15, v9\nv_lshl_add_u32 v10, v9, 4, v10\nv_lshl_add_u32 %s, v3, 8, v10" % V(vX2a+p))
        cs4(C, Sn, 6, 4, 8)
        if p < 2:
            pk2(m, C); pk2(m+2, Sn); pk2(m+4, Sn, True)
            a("v_xor_b32 %s, %s, v82\nv_xor_b32 %s, %s, v82" % (V(m+4), V(m+4), V(m+5), V(m+5)))
            a("v_xor_b32 %s, %s, v82\nv_xor_b32 %s, %s, v82" % (V(m+6), V(m), V(m+7), V(m+1)))
        else:
            pk2(m+2, C); pk2(m+6, Sn, True)
            a("v_xor_b32 %s, %s, v82\nv_xor_b32 %s, %s, v82" % (V(m+6), V(m+6), V(m+7), V(m+7)))
            for i in (0,1,4,5): a("v_mov_b32 %s, 0" % V(m+i))
            for i in (2,3,6,7): a("v_mov_b32 %s, 0" % V(M2+i))
    gen_m2(0, "s37")
    a("s_add_u32 s37, s37, 1")
    gen_m2(1, "s37")
    a("s_cmp_lg_u32 s24, 0\ns_cbranch_scc1 L_p1_nom2")
    gen_m2(2, "16")
    a("L_p1_nom2:")
    a("v_lshl_add_u32 v4, v3, 9, s2\nv_mul_u32_u24 v4, v4, v2\nv_cvt_f32_u32 v6, v4\nv_mul_f32 v6, %s, v6\nv_mul_f32 v4, %s, v25" % (f32(1/2048), f32(1/16)))
    cs4(C, Sn, 6, 4, 8)
    pk2(M3, Sn, True); pk2(M3+2, C); pk2(M3+4, Sn)
    a("v_lshl_add_u32 v83, v1, 3, s33")
    a("v_mul_u32_u24 v84, 1040, v2\nv_lshl_add_u32 v84, v3, 8, v84\ns_lshl_b32 s3, s24, 5\nv_add_u32 v84, s3, v84")
    a("s_mul_i32 s3, s24, 2080\nv_add_u32 v85, s3, v24")
    a("s_mul_i32 s3, s24, 2064\nv_add_u32 v86, s3, v24")
    a("v_mul_u32_u24 v87, %d, v2\nv_lshl_add_u32 v87, v3, 4, v87" % (17*8192))
    a("s_and_b32 s3, s2, 7\ns_lshl_b32 s3, s3, 10\ns_lshr_b32 s37, s2, 3\ns_lshl_b32 s37, s37, 6\ns_add_u32 s37, s37, s3")
    a("s_lshl_b32 s3, s24, 14\ns_add_u32 s43, s37, s3\ns_add_u32 s44, s43, 8192\ns_add_u32 s45, s37, %d" % (16*8192))
    B0, B1, B2 = 88, 92, 96
    E0, E1, E2 = 100, 108, 116
    a("s_waitcnt vmcnt(12)")
    stamp(2)
    a("ds_read_b64_tr_b16 v[88:89], v83\nds_read_b64_tr_b16 v[90:91], v83 offset:512")
    a("ds_read_b64_tr_b16 v[92:93], v83 offset:1024\nds_read_b64_tr_b16 v[94:95], v83 offset:1536")
    a("s_waitcnt lgkmcnt(2)")
    mfma(E0, B0, M1re); mfma(E0+4, B0, M1im)
    a("s_waitcnt lgkmcnt(0)")
    mfma(E1, B1, M1re); mfma(E1+4, B1, M1im)
    planar(B0, E0, E0+4)
    a("ds_write_b128 v84, %s offset:%d" % (V(B0,4), X1))
    planar(B1, E1, E1+4)
    a("ds_write_b128 v84, %s offset:%d" % (V(B1,4), X1+16))
    a("s_waitcnt lgkmcnt(0)\ns_barrier")
    a("ds_read_b128 %s, v85 offset:%d\nds_read_b128 %s, v85 offset:%d" % (V(B0,4), X1, V(B1,4), X1+1040))
    a("s_waitcnt lgkmcnt(1)")
    mfma(E0, B0, M2); mfma(E0+4, B0, M2+4)
    a("s_waitcnt lgkmcnt(0)")
    mfma(E1, B1, M2+8); mfma(E1+4, B1, M2+12)
    a("s_cmp_lg_u32 s24, 0\ns_cbranch_scc1 L_p1_s2b")
    mfma(E2, B0, M2+16); mfma(E2+4, B0, M2+20)
    planar(B2, E2, E2+4)
    a("ds_write_b128 %s, %s offset:%d" % (V(vX2a+2), V(B2,4), X2))
    a("L_p1_s2b:\ns_nop 3")
    planar(B0, E0, E0+4)
    a("ds_write_b128 %s, %s offset:%d" % (V(vX2a), V(B0,4), X2))
    planar(B1, E1, E1+4)
    a("ds_write_b128 %s, %s offset:%d" % (V(vX2a+1), V(B1,4), X2))
    a("s_waitcnt lgkmcnt(0)\ns_barrier")
    a("ds_read_b128 %s, v86 offset:%d\nds_read_b128 %s, v86 offset:%d" % (V(B0,4), X2, V(B1,4), X2+1024))
    a("ds_read_b128 %s, v24 offset:%d" % (V(B2,4), X2+8*2064))
    a("s_waitcnt lgkmcnt(2)")
    mfma(E0, B0, M3+2); mfma(E0+4, B0, M3)
    a("s_waitcnt lgkmcnt(1)")
    mfma(E1, B1, M3+2); mfma(E1+4, B1, M3)
    a("s_cmp_lg_u32 s24, 7\ns_cbranch_scc1 L_p1_s3b")
    a("s_waitcnt lgkmcnt(0)")
    mfma(E2, B2, M3+2); mfma(E2+4, B2, M3)
    inter(B2, E2, E2+4)
    a("buffer_store_dwordx4 %s, v87, s[8:11], s45 offen sc1" % V(B2,4))
    a("L_p1_s3b:\ns_nop 3")
    inter(B0, E0, E0+4)
    a("buffer_store_dwordx4 %s, v87, s[8:11], s43 offen sc1" % V(B0,4))
    inter(B1, E1, E1+4)
    a("buffer_store_dwordx4 %s, v87, s[8:11], s44 offen sc1" % V(B1,4))
    stamp(3)
    a("s_lshl_b32 s3, s2, 3\ns_add_u32 s46, s3, 0x%x\nv_lshlrev_b32 v4, 10, v0" % FLA)
    a("v_cmp_gt_u32 vcc, %d, v0" % RA)
    a("s_branch L_sig1")
    a("L_ut:")
    a("s_and_b32 s31, s2, 7\ns_bfe_u32 s32, s2, 0x40003")
    a("v_lshrrev_b32 v4, 3, v0\nv_and_b32 v5, 7, v0\nv_lshlrev_b32 v6, 10, v4\nv_lshl_add_u32 v6, v5, 4, v6")
    a("v_mul_u32_u24 v7, 144, v4\nv_lshl_add_u32 v7, v5, 4, v7")
    a("s_lshl_b32 s33, s32, 17\ns_lshl_b32 s3, s31, 7\ns_add_u32 s33, s33, s3\ns_add_u32 s34, s33, 0x10000")
    a("v_lshrrev_b32 v8, 4, v0\nv_lshlrev_b32 v8, 12, v8\nv_lshl_add_u32 v27, v2, 4, v8")
    a("s_lshl_b32 s35, s31, 18\ns_lshl_b32 s3, s32, 8\ns_add_u32 s35, s35, s3")
    a("s_add_u32 s47, s35, 0x%x\ns_add_u32 s48, s47, 0x20000" % YT)
    a("s_lshl_b32 s3, s31, 7\ns_add_u32 s49, s3, 0x%x" % EPB)
    a("s_waitcnt lgkmcnt(0)")
    stamp(1)
    a("buffer_load_dwordx4 v[88:91], v6, s[4:7], s33 offen\nbuffer_load_dwordx4 v[92:95], v6, s[4:7], s34 offen")
    a("buffer_load_dwordx2 v[124:125], off, s[8:11], s49 sc1")
    a("s_mov_b32 s3, 0x%x\nbuffer_load_dwordx2 v[12:13], off, s[8:11], s3 sc1" % EPA)
    load_w(vWoff)
    a("buffer_store_dwordx4 v[28:31], v27, s[8:11], s47 offen sc1\nbuffer_store_dwordx4 v[28:31], v27, s[8:11], s48 offen sc1")
    a("v_lshrrev_b32 v8, 2, v2\nv_lshl_add_u32 v8, v3, 3, v8\nv_mul_u32_u24 v8, 144, v8\nv_and_b32 v9, 3, v2\nv_lshl_add_u32 v8, v9, 3, v8")
    a("s_lshr_b32 s3, s24, 2\ns_mul_i32 s36, s3, %d\ns_and_b32 s37, s24, 3\ns_lshl_b32 s38, s37, 5\ns_add_u32 s36, s36, s38\nv_add_u32 v8, s36, v8" % (64*144))
    a("v_lshlrev_b32 v9, 12, v2\nv_lshl_add_u32 v9, v3, 4, v9")
    a("s_lshl_b32 s37, s37, 16\ns_lshl_b32 s3, s3, 7\ns_add_u32 s37, s37, s3\ns_add_u32 s37, s37, s35\ns_add_u32 s37, s37, 0x%x" % UT)
    a("s_waitcnt vmcnt(12)")
    stamp(2)
    a("ds_write_b128 v7, v[88:91]\nds_write_b128 v7, v[92:95] offset:%d" % (64*144))
    a("s_waitcnt lgkmcnt(0)\ns_barrier")
    for h in range(2):
        for p in range(2):
            a("ds_read_b64_tr_b16 %s, v8 offset:%d" % (V(96+4*h+2*p, 2), (32*h+4*p)*144))
    a("s_waitcnt lgkmcnt(2)\nbuffer_store_dwordx4 v[96:99], v9, s[8:11], s37 offen sc1")
    a("s_waitcnt lgkmcnt(0)\nbuffer_store_dwordx4 v[100:103], v9, s[8:11], s37 offen offset:64 sc1")
    stamp(3)
    a("s_lshl_b32 s3, s31, 12\ns_lshl_b32 s46, s32, 3\ns_add_u32 s46, s46, s3\ns_add_u32 s46, s46, 0x%x\nv_lshlrev_b32 v4, 7, v0" % FLB)
    a("s_waitcnt vmcnt(0)")
    a("v_add_co_u32 v124, vcc, 1, v124\nv_addc_co_u32 v125, vcc, 0, v125, vcc")
    a("v_add_co_u32 v12, vcc, 1, v12\nv_addc_co_u32 v13, vcc, 0, v13, vcc")
    a("s_barrier")
    a("v_cmp_gt_u32 vcc, 32, v0\ns_and_saveexec_b64 s[40:41], vcc\ns_cbranch_execz L_p2pre")
    a("buffer_store_dwordx2 v[124:125], v4, s[8:11], s46 offen sc1")
    a("s_branch L_p2pre")
    a("L_sig1:")
    a("s_waitcnt vmcnt(0)")
    a("v_add_co_u32 v12, s[38:39], 1, v12\nv_addc_co_u32 v13, s[38:39], 0, v13, s[38:39]")
    a("s_barrier")
    a("s_and_saveexec_b64 s[40:41], vcc\ns_cbranch_execz L_p2pre")
    a("buffer_store_dwordx2 v[12:13], v4, s[8:11], s46 offen sc1")
    a("L_p2pre:")
    a("s_mov_b64 exec, -1")
    stamp(4)
    Ma, Fb, Mi = 32, 40, 50
    a("v_lshl_add_u32 v4, v3, 3, s24\nv_mul_u32_u24 v4, v4, v2\nv_cvt_f32_u32 v6, v4\nv_mul_f32 v6, %s, v6\nv_mul_f32 v4, %s, v25" % (f32(1/128), f32(0.25)))
    cs4(C, Sn, 6, 4, 8)
    for j in range(4):
        pk(Ma+j, C+j, Sn+j); pk(Ma+4+j, Sn+j, C+j, True, False)
    a("v_and_b32 v4, 7, v2\nv_cvt_f32_u32 v4, v4\nv_mul_f32 v4, %s, v4\nv_and_b32 v5, 1, v3\nv_cvt_f32_u32 v5, v5\nv_mul_f32 v5, 4.0, v5\nv_mul_f32 v6, v5, v4" % f32(0.125))
    cs4(C, Sn, 6, 4, 8)
    a("v_lshrrev_b32 v4, 1, v3\nv_lshrrev_b32 v5, 3, v2\nv_cmp_eq_u32 vcc, v4, v5")
    pk2(Fb, Sn, True); pk2(Fb+2, C); pk2(Fb+4, Sn)
    for i in range(6): a("v_cndmask_b32 %s, 0, %s, vcc" % (V(Fb+i), V(Fb+i)))
    a("v_mov_b32 %s, %s\nv_mov_b32 %s, %s\nv_mov_b32 %s, %s\nv_mov_b32 %s, %s" % (V(Fb+6),V(Fb+2),V(Fb+7),V(Fb+3),V(Fb+8),V(Fb),V(Fb+9),V(Fb+1)))
    a("v_lshl_add_u32 v4, v2, 3, s24\nv_cvt_f32_u32 v4, v4\nv_mul_f32 v4, %s, v4\nv_mul_f32 v6, 4.0, v26\nv_mul_f32 v6, v6, v4" % f32(1/128))
    cs4(C, Sn, 6, 4, 8)
    pk2(Mi, Sn); pk2(Mi+2, C); pk2(Mi+4, Sn, True)
    a("v_lshlrev_b32 v126, 2, v1")
    a("v_mul_u32_u24 v57, 528, v2\nv_lshl_add_u32 v57, v3, 4, v57\ns_lshl_b32 s3, s24, 6\nv_add_u32 v57, s3, v57")
    a("v_lshrrev_b32 v4, 1, v3\nv_mul_u32_u24 v58, 528, v4\nv_and_b32 v5, 31, v1\nv_lshl_add_u32 v58, v5, 4, v58\ns_mul_i32 s3, s24, 1056\nv_add_u32 v58, s3, v58")
    a("v_and_b32 v4, 7, v2\nv_mul_u32_u24 v59, 1040, v4\nv_lshrrev_b32 v5, 3, v2\nv_lshl_add_u32 v59, v5, 6, v59\nv_lshl_add_u32 v59, v3, 4, v59\ns_lshl_b32 s3, s24, 7\nv_add_u32 v59, s3, v59")
    a("s_mul_i32 s3, s24, 1040\nv_add_u32 v60, s3, v24")
    a("v_mul_u32_u24 v61, %d, v2\nv_lshl_add_u32 v61, v3, 4, v61" % (8*17408))
    a("s_mul_i32 s31, s25, 17\ns_add_u32 s31, s31, s26\ns_lshl_b32 s31, s31, 13\ns_lshl_b32 s3, s24, 10\ns_add_u32 s31, s31, s3")
    a("s_mul_i32 s32, s24, 17408\ns_lshl_b32 s3, s26, 10\ns_add_u32 s32, s32, s3\ns_lshl_b32 s3, s25, 6\ns_add_u32 s32, s32, s3\ns_add_u32 s32, s32, 0x%x" % D2)
    a("v_add_u32 v15, 512, v15")
    a("s_cmp_lg_u32 s24, 0\ns_cbranch_scc1 L_h1a_done")
    a("s_and_b32 s3, s2, %d\ns_lshl_b32 s3, s3, 10\ns_add_u32 s3, s3, 0x%x\ns_mov_b32 s42, %d" % (RA-1, FLA, SPIN))
    a("L_h1a:")
    a("buffer_load_dwordx4 v[4:7], v24, s[8:11], s3 offen sc1\ns_waitcnt vmcnt(0)")
    a("v_cmp_ne_u64 vcc, v[4:5], v[12:13]\nv_cmp_ne_u64 s[38:39], v[6:7], v[12:13]\ns_or_b64 vcc, vcc, s[38:39]")
    a("s_sub_u32 s42, s42, 1\ns_cbranch_scc1 L_h1a_done\ns_cbranch_vccnz L_h1a")
    a("L_h1a_done:\ns_barrier")
    stamp(5)
    a("L_p2:")
    for j in range(4): a("buffer_load_dword %s, v126, s[8:11], s31 offen offset:%d sc1" % (V(B0+j), 256*j))
    a("s_waitcnt vmcnt(0)")
    stamp(6)
    mfma(E0, B0, Ma); mfma(E0+4, B0, Ma+4)
    planar(B1, E0, E0+4)
    a("ds_write_b128 v57, %s offset:%d" % (V(B1,4), LY))
    a("s_waitcnt lgkmcnt(0)\ns_barrier")
    a("ds_read_b64_tr_b16 %s, v58 offset:%d\nds_read_b64_tr_b16 %s, v58 offset:%d" % (V(B0,2), LY, V(B0+2,2), LY+8))
    a("s_waitcnt lgkmcnt(0)")
    mfma(E0, Fb+2, B0); mfma(E0+4, Fb, B0)
    for h in (0,2):
        a("v_pk_mul_f32 %s, %s, %s" % (V(E1+h,2), V(E0+h,2), V(vWr+h,2)))
        a("v_pk_mul_f32 %s, %s, %s" % (V(E1+4+h,2), V(E0+h,2), V(vWi+h,2)))
    for h in (0,2):
        a("v_pk_fma_f32 %s, %s, %s, %s neg_lo:[1,0,0] neg_hi:[1,0,0]" % (V(E1+h,2), V(E0+4+h,2), V(vWi+h,2), V(E1+h,2)))
        a("v_pk_fma_f32 %s, %s, %s, %s" % (V(E1+4+h,2), V(E0+4+h,2), V(vWr+h,2), V(E1+4+h,2)))
    planar(B1, E1, E1+4)
    mfma(E0, B1, Fb+6); mfma(E0+4, B1, Fb+4)
    planar(B0, E0, E0+4)
    a("ds_write_b128 v59, %s offset:%d" % (V(B0,4), LY2))
    a("s_waitcnt lgkmcnt(0)\ns_barrier")
    a("ds_read_b64_tr_b16 %s, v60 offset:%d\nds_read_b64_tr_b16 %s, v60 offset:%d" % (V(B1,2), LY2, V(B1+2,2), LY2+8))
    a("s_waitcnt lgkmcnt(0)")
    mfma(E0, B1, Mi+2); mfma(E0+4, B1, Mi)
    inter(B2, E0, E0+4)
    a("buffer_store_dwordx4 %s, v61, s[8:11], s32 offen sc1" % V(B2,4))
    a("s_cmp_lg_u32 s26, 15\ns_cbranch_scc1 L_p2_done")
    a("s_mov_b32 s26, 16\ns_add_u32 s31, s31, 8192\ns_add_u32 s32, s32, 1024")
    load_w(15)
    a("s_branch L_p2")
    a("L_p2_done:")
    stamp(7)
    a("s_cmp_ge_u32 s2, 128\ns_cbranch_scc1 L_yt")
    M3i = 32
    M2i = 40
    M1i = 60
    vR2 = 68
    a("v_lshl_add_u32 v4, v2, 7, s2\nv_cvt_f32_u32 v4, v4\nv_mul_f32 v6, %s, v4\nv_mul_f32 v4, %s, v4\nv_mul_f32 v6, v6, v26" % (f32(1/2048), f32(4/2048)))
    cs4(C, Sn, 6, 4, 8)
    for j in range(4):
        pk(M3i+j, C+j, Sn+j, False, True); pk(M3i+4+j, Sn+j, C+j)
    a("v_lshlrev_b32 v82, 30, v3\nv_and_b32 v82, 0x80000000, v82\nv_lshrrev_b32 v5, 16, v82\nv_or_b32 v82, v82, v5")
    a("v_cmp_gt_u32 s[38:39], 2, v3")
    a("s_lshl_b32 s37, s24, 1")
    def gen_m2i(p, slot):
        m = M2i + 8*p
        a("v_lshl_add_u32 v9, v3, 7, %s\nv_mul_u32_u24 v9, v9, v2\nv_cvt_f32_u32 v6, v9\nv_mul_f32 v6, %s, v6\nv_mul_f32 v4, %s, v25" % (slot, f32(1/512), f32(1/16)))
        a("v_lshrrev_b32 v9, 2, v1\nv_lshl_add_u32 v9, v9, 5, %s\nv_sub_u32 v10, 512, v9\nv_cndmask_b32 v9, v10, v9, s[38:39]" % slot)
        a("v_mul_u32_u24 v9, 80, v9\nv_and_b32 v10, 3, v1\nv_lshl_add_u32 %s, v10, 4, v9" % V(vR2+p))
        cs4(C, Sn, 6, 4, 8)
        pk2(m, C); pk2(m+2, Sn, True)
        a("v_xor_b32 %s, %s, v82\nv_xor_b32 %s, %s, v82" % (V(m+2), V(m+2), V(m+3), V(m+3)))
        if p < 2:
            pk2(m+4, Sn)
            a("v_xor_b32 %s, %s, v82\nv_xor_b32 %s, %s, v82" % (V(m+6), V(m), V(m+7), V(m+1)))
    gen_m2i(0, "s37")
    a("s_add_u32 s37, s37, 1")
    gen_m2i(1, "s37")
    gen_m2i(2, "16")
    a("v_mul_f32 v4, %s, v25\nv_mul_f32 v6, 4.0, v26\nv_mul_f32 v6, v6, v4" % f32(1/32))
    cs4(C, Sn, 6, 4, 8)
    a("v_cmp_eq_u32 vcc, 0, v3\nv_lshlrev_b32 v4, 31, v2\nv_xor_b32 v4, %s, v4\nv_mov_b32 v5, 0.5" % f32(-0.5))
    a("v_cndmask_b32 %s, %s, v5, vcc\nv_cndmask_b32 %s, %s, v4, vcc" % (V(C), V(C), V(Sn), V(Sn)))
    for j in range(8): a("v_mul_f32 %s, %s, %s" % (V(C+j), f32(2.0**-19), V(C+j)))
    pk2(M1i, C); pk2(M1i+2, Sn, True)
    for j in range(4): a("v_xor_b32 %s, 0x80000000, %s" % (V(M1i+4+j), V(M1i+j)))
    a("s_lshl_b32 s3, s24, 11\ns_add_u32 s35, s34, s3")
    a("v_lshlrev_b32 v71, 6, v3")
    a("v_mul_u32_u24 v72, 80, v2\nv_lshl_add_u32 v72, v3, 4, v72\ns_mul_i32 s3, s24, 2560\nv_add_u32 v73, s3, v72")
    a("v_mul_u32_u24 v83, 1040, v2\nv_lshl_add_u32 v83, v3, 4, v83\ns_lshl_b32 s3, s24, 7\nv_add_u32 v83, s3, v83")
    a("s_mul_i32 s3, s24, 2080\nv_add_u32 v84, s3, v24")
    a("v_lshlrev_b32 v85, 5, v2\nv_lshl_add_u32 v85, v3, 3, v85")
    a("s_lshl_b32 s43, s24, 19\ns_lshl_b32 s3, s2, 11\ns_add_u32 s43, s43, s3\ns_add_u32 s44, s43, 0x40000")
    a("s_mov_b32 s42, %d" % SPIN)
    a("L_h2a:")
    for j in range(8): a("buffer_load_dword %s, v126, s[8:11], s35 offen offset:%d sc1" % (V(B0+j), 256*j))
    for j in range(4): a("buffer_load_dword %s, v71, s[8:11], s36 offen offset:%d sc1" % (V(B2+j), 256*j))
    a("s_waitcnt vmcnt(0)")
    a("v_max3_u32 v4, v88, v89, v90\nv_max3_u32 v5, v91, v92, v93\nv_max3_u32 v6, v94, v95, v96\nv_max3_u32 v7, v97, v98, v99")
    a("v_max3_u32 v4, v4, v5, v6\nv_max_u32 v4, v4, v7\nv_cmp_eq_u32 vcc, -1, v4")
    a("s_sub_u32 s42, s42, 1\ns_cbranch_scc1 L_h2a_done\ns_cbranch_vccnz L_h2a")
    a("L_h2a_done:")
    stamp(8)
    mfma(E0, M3i, B0); mfma(E0+4, M3i+4, B0)
    mfma(E1, M3i, B1); mfma(E1+4, M3i+4, B1)
    mfma(E2, M3i, B2); mfma(E2+4, M3i+4, B2)
    planar(B0, E0, E0+4)
    a("ds_write_b128 v73, %s offset:%d" % (V(B0,4), X2I))
    planar(B1, E1, E1+4)
    a("ds_write_b128 v73, %s offset:%d" % (V(B1,4), X2I+1280))
    a("s_cmp_lg_u32 s24, 7\ns_cbranch_scc1 L_p3_a")
    planar(B2, E2, E2+4)
    a("ds_write_b128 v72, %s offset:%d" % (V(B2,4), X2I+256*80))
    a("L_p3_a:")
    a("s_waitcnt lgkmcnt(0)\ns_barrier")
    for p,b in ((0,B0),(1,B1),(2,B2)):
        a("ds_read_b64_tr_b16 %s, %s offset:%d\nds_read_b64_tr_b16 %s, %s offset:%d" % (V(b,2), V(vR2+p), X2I, V(b+2,2), V(vR2+p), X2I+8))
    a("s_waitcnt lgkmcnt(4)")
    mfma(E0, M2i, B0); mfma(E0+4, M2i+4, B0)
    a("s_waitcnt lgkmcnt(2)")
    mfma(E1, M2i+8, B1); mfma(E1+4, M2i+12, B1)
    a("s_waitcnt lgkmcnt(0)")
    mfma(E2, M2i+16, B2)
    planar(B0, E0, E0+4)
    a("ds_write_b128 v83, %s offset:%d" % (V(B0,4), X1I))
    planar(B1, E1, E1+4)
    a("ds_write_b128 v83, %s offset:%d" % (V(B1,4), X1I+64))
    a("s_cmp_lg_u32 s24, 0\ns_cbranch_scc1 L_p3_b")
    pk2(B2, E2)
    a("ds_write_b64 v83, %s offset:%d" % (V(B2,2), X1I+8))
    a("L_p3_b:")
    a("s_waitcnt lgkmcnt(0)\ns_barrier")
    for e,b in ((0,B0),(1,B1)):
        a("ds_read_b64_tr_b16 %s, v84 offset:%d\nds_read_b64_tr_b16 %s, v84 offset:%d" % (V(b,2), X1I+1040*e, V(b+2,2), X1I+1040*e+8))
    a("s_waitcnt lgkmcnt(2)")
    mfma(E0, B0, M1i); mfma(E0+4, B0, M1i+4)
    a("s_waitcnt lgkmcnt(0)")
    mfma(E1, B1, M1i); mfma(E1+4, B1, M1i+4)
    planar(B0, E0, E0+4)
    a("buffer_store_dwordx2 %s, v85, s[12:15], s43 offen\nbuffer_store_dwordx2 %s, v85, s[12:15], s43 offen offset:512" % (V(B0,2), V(B0+2,2)))
    planar(B1, E1, E1+4)
    a("buffer_store_dwordx2 %s, v85, s[12:15], s44 offen\nbuffer_store_dwordx2 %s, v85, s[12:15], s44 offen offset:512" % (V(B1,2), V(B1+2,2)))
    a("s_or_b32 s3, s2, s24\ns_cmp_lg_u32 s3, 0\ns_cbranch_scc1 L_p3_c")
    a("s_mov_b32 s3, 0x%x\nbuffer_store_dwordx2 v[12:13], off, s[8:11], s3 sc1" % EPA)
    a("L_p3_c:")
    if stamps: a("s_waitcnt vmcnt(0)")
    stamp(9)
    write_stamps(10, "a")
    a("s_endpgm")
    a("L_yt:")
    a("s_and_b32 s31, s2, 7\ns_bfe_u32 s33, s2, 0x40003")
    a("v_lshrrev_b32 v4, 4, v0\nv_mul_u32_u24 v7, 272, v4\nv_lshl_add_u32 v7, v2, 4, v7")
    a("v_lshrrev_b32 v8, 2, v2\nv_lshl_add_u32 v8, v3, 3, v8\nv_mul_u32_u24 v8, 272, v8\nv_and_b32 v9, 3, v2\nv_lshl_add_u32 v8, v9, 3, v8\ns_lshl_b32 s3, s24, 5\nv_add_u32 v8, s3, v8")
    a("v_lshlrev_b32 v9, 11, v2\nv_lshl_add_u32 v9, v3, 4, v9")
    a("s_lshl_b32 s37, s33, 18\ns_lshl_b32 s3, s24, 15\ns_add_u32 s37, s37, s3\ns_lshl_b32 s3, s31, 7\ns_add_u32 s37, s37, s3\ns_add_u32 s37, s37, 1024")
    a("s_mov_b32 s42, %d" % SPIN)
    a("L_h2b:")
    a("buffer_load_dwordx4 v[88:91], v27, s[8:11], s47 offen sc1\nbuffer_load_dwordx4 v[92:95], v27, s[8:11], s48 offen sc1")
    a("s_waitcnt vmcnt(0)")
    a("v_max3_u32 v4, v88, v89, v90\nv_max3_u32 v5, v91, v92, v93\nv_max3_u32 v4, v4, v94, v95\nv_max_u32 v4, v4, v5\nv_cmp_eq_u32 vcc, -1, v4")
    a("s_sub_u32 s42, s42, 1\ns_cbranch_scc1 L_h2b_done\ns_cbranch_vccnz L_h2b")
    a("L_h2b_done:")
    stamp(8)
    a("ds_write_b128 v7, v[88:91]\nds_write_b128 v7, v[92:95] offset:%d" % (32*272))
    a("s_waitcnt lgkmcnt(0)\ns_barrier")
    for h in range(2):
        for p in range(2):
            a("ds_read_b64_tr_b16 %s, v8 offset:%d" % (V(96+4*h+2*p, 2), (32*h+4*p)*272))
    a("s_waitcnt lgkmcnt(2)\nbuffer_store_dwordx4 v[96:99], v9, s[12:15], s37 offen")
    a("s_waitcnt lgkmcnt(0)\nbuffer_store_dwordx4 v[100:103], v9, s[12:15], s37 offen offset:64")
    a("s_or_b32 s3, s33, s24\ns_cmp_lg_u32 s3, 0\ns_cbranch_scc1 L_yt_c")
    a("buffer_store_dwordx2 v[124:125], off, s[8:11], s49 sc1")
    a("L_yt_c:")
    if stamps: a("s_waitcnt vmcnt(0)")
    stamp(9)
    write_stamps(10, "y")
    a("s_endpgm")

    a("L_type2:")
    a("s_cmp_ge_u32 s2, 512\ns_cbranch_scc1 L_end")
    for i in range(8): a("s_load_dwordx2 %s, s[0:1], %d" % (S(12+4*i, 2), 32+8*i))
    srd_consts(8, WS_USED)
    for i in range(8): srd_consts(12+4*i, 131072 if i < 6 else 1024)
    a("v_readfirstlane_b32 s4, v0")
    a("v_and_b32 v1, 63, v0\nv_and_b32 v2, 15, v0\nv_bfe_u32 v3, v0, 4, 2")
    a("s_lshr_b32 s4, s4, 6")
    a("s_sub_u32 s5, s2, 256")
    a("s_lshr_b32 s6, s4, 2\ns_lshl_b32 s7, s5, 1\ns_add_u32 s7, s7, s6")
    a("s_lshl_b32 s44, s5, 9\ns_lshl_b32 s3, s4, 6\ns_add_u32 s44, s44, s3")
    a("s_lshl_b32 s45, s7, 1")
    a("v_and_b32 v4, 31, v0\nv_lshlrev_b32 v5, 1, v4")
    for i in range(8): a("v_mov_b32 %s, 0" % V(16+i))
    a("s_lshr_b32 s3, s5, 5\ns_lshl_b32 s3, s3, 7\ns_add_u32 s46, s3, 0x%x" % EPB)
    a("s_waitcnt lgkmcnt(0)")
    stamp(1)
    for i in range(6): a("buffer_load_short_d16_hi %s, v5, %s, s44 offen" % (V(16+i), S(12+4*i,4)))
    for i in (6,7): a("buffer_load_short_d16_hi %s, off, %s, s45" % (V(16+i), S(12+4*i,4)))
    a("buffer_load_dwordx2 v[12:13], off, s[8:11], s46 sc1")
    for j in range(4): a("v_mov_b32 %s, 0" % V(24+j))
    a("s_mul_i32 s47, s6, %d\ns_add_u32 s47, s47, %d" % (CCH, CP))
    a("s_mul_i32 s48, s6, %d" % USTR)
    a("v_and_b32 v6, 255, v0")
    a("v_min_u32 v7, 35, v6\nv_lshl_add_u32 v7, v7, 4, s48\nds_write_b128 v7, v[24:27]")
    a("v_mov_b32 v7, s47\nds_write_b128 v7, v[24:27] offset:%d" % (7*CSTR+4096))
    a("v_lshlrev_b32 v7, 3, v2\nv_cvt_f32_u32 v28, v7")
    a("v_and_b32 v7, 7, v2\nv_lshrrev_b32 v8, 3, v2\nv_lshl_add_u32 v7, v8, 7, v7\nv_cvt_f32_u32 v29, v7")
    a("v_and_b32 v7, 3, v2\nv_bfe_u32 v8, v2, 2, 1\nv_lshlrev_b32 v7, 1, v7\nv_lshl_add_u32 v7, v8, 7, v7\nv_add_u32 v7, 256, v7")
    a("v_and_b32 v9, 1, v2\nv_bfe_u32 v8, v2, 1, 2\nv_lshlrev_b32 v9, 2, v9\nv_lshl_add_u32 v9, v8, 7, v9\nv_add_u32 v9, 512, v9")
    a("v_cmp_gt_u32 vcc, 8, v2\nv_cndmask_b32 v7, v9, v7, vcc\nv_cvt_f32_u32 v30, v7")
    a("v_lshlrev_b32 v7, 7, v2\nv_add_u32 v7, 1024, v7\nv_cvt_f32_u32 v31, v7")
    a("v_sub_u32 v7, 255, v6")
    def base_of(d, y):
        a("v_or_b32 v8, 16, %s\nv_ffbh_u32 v8, v8\nv_sub_u32 v10, 27, v8\nv_min_u32 v10, 3, v10" % V(y))
        a("v_lshrrev_b32 v8, 4, %s\nv_lshlrev_b32 v8, 3, v8\nv_lshrrev_b32 v8, v10, v8\nv_lshl_add_u32 v8, v10, 3, v8" % V(y))
        a("v_and_b32 v9, 15, %s\nv_lshlrev_b32 v9, 2, v9\nv_lshl_add_u32 %s, v8, 6, v9\nv_add_u32 %s, s47, %s" % (V(y), V(d), V(d), V(d)))
    a("v_add_u32 v11, 1, v7")
    base_of(41, 11)
    base_of(40, 7)
    a("v_lshrrev_b32 v42, v10, 8" if False else "v_mov_b32 v42, 8\nv_lshrrev_b32 v42, v10, v42")
    a("v_max_u32 v8, 16, v7\nv_lshlrev_b32 v8, 3, v8\nv_cvt_f32_u32 v8, v8\nv_lshrrev_b32 v9, 16, v8")
    for o in range(8):
        a("v_add_f32 v10, %s, v8\nv_cvt_pk_bf16_f32 v10, v10, v10\nv_and_b32 v10, 0xffff, v10\nv_sub_u32 v10, v10, v9" % (f32(float(o))))
        a("v_cmp_eq_u32 vcc, v10, v42\nv_lshl_add_u32 v10, v10, 6, v40\nv_cndmask_b32 %s, v10, v41, vcc" % V(32+7-o))
    a("s_and_b32 s3, s4, 3\ns_lshl_b32 s49, s3, 9\ns_add_u32 s49, s49, s47")
    a("v_lshl_add_u32 v43, v4, 4, s49\nv_lshl_add_u32 v44, v3, 7, s49")
    a("s_mul_i32 s3, s3, 3072\ns_add_u32 s3, s3, s47\nv_lshlrev_b32 v45, 2, v2\nv_lshl_add_u32 v45, v3, 8, v45\nv_add_u32 v45, s3, v45")
    a("s_waitcnt vmcnt(1)")
    stamp(2)
    a("v_mul_f32 v46, %s, v22\nv_exp_f32 v46, v46\nv_cvt_pk_bf16_f32 v46, v46, v46\nv_and_b32 v46, 0xffff0000, v46" % f32(1.4426950408889634))
    a("v_mul_f32 v24, v46, v16\nv_mul_f32 v24, %s, v24" % f32(1.4426950408889634))
    a("v_mul_f32 v25, v46, v17\nv_mul_f32 v25, 0.15915494, v25")
    a("v_mul_f32 v26, v20, v18\nv_mul_f32 v27, v20, v19\nv_fma_f32 v26, -v21, v19, v26\nv_fma_f32 v27, v21, v18, v27")
    a("ds_write_b128 v43, v[24:27] offset:%d" % (3*CSTR))
    a("s_waitcnt lgkmcnt(0)")
    PR = 48
    for i in range(8): a("ds_read_b128 %s, v44 offset:%d" % (V(PR+4*i,4), 3*CSTR+16*i))
    RE, IM, FE, FG, AC = 80, 88, 96, 104, 112
    a("s_mov_b32 s42, 0")
    a("s_waitcnt lgkmcnt(0)")
    a("L_kg:")
    for i in range(8):
        a("v_mul_f32 %s, %s, v28\nv_mul_f32 %s, %s, v28" % (V(4+i), V(PR+4*i), V(IM+i), V(PR+4*i+1)))
    for i in range(8):
        a("v_exp_f32 %s, %s\nv_fract_f32 %s, %s" % (V(4+i), V(4+i), V(IM+i), V(IM+i)))
    for i in range(8):
        a("v_cos_f32 %s, %s\nv_sin_f32 %s, %s" % (V(RE+i), V(IM+i), V(IM+i), V(IM+i)))
    for i in range(8):
        a("v_mul_f32 %s, %s, %s\nv_mul_f32 %s, %s, %s" % (V(RE+i), V(RE+i), V(4+i), V(IM+i), V(IM+i), V(4+i)))
    a("v_mov_b32 v28, v29\nv_mov_b32 v29, v30\nv_mov_b32 v30, v31")
    a("s_cmp_lg_u32 s42, 0\ns_cbranch_scc1 L_kg_g")
    for i in range(8):
        a("v_mul_f32 %s, %s, %s\nv_fma_f32 %s, -%s, %s, %s" % (V(4+i), V(RE+i), V(PR+4*i+2), V(4+i), V(IM+i), V(PR+4*i+3), V(4+i)))
        a("v_mul_f32 %s, %s, %s\nv_fma_f32 %s, %s, %s, %s" % (V(IM+i), V(IM+i), V(PR+4*i+2), V(IM+i), V(RE+i), V(PR+4*i+3), V(IM+i)))
    for ks in range(2):
        pk2(FE+4*ks, 4+4*ks); pk2(FE+4*ks+2, IM+4*ks, True)
    a("s_mov_b32 s42, 1\ns_branch L_kg")
    a("L_kg_g:")
    for ks in range(2):
        pk2(FG+4*ks, RE+4*ks); pk2(FG+4*ks+2, IM+4*ks)
    mfma(AC, FG, FE); mfma(AC, FG+4, FE+4, AC)
    a("s_add_u32 s42, s42, 1\ns_cmp_lt_u32 s42, 4")
    for j in range(4): a("ds_write_b32 v45, %s offset:%d" % (V(AC+j), 64*j))
    a("v_add_u32 v45, 1024, v45")
    a("s_cbranch_scc1 L_kg")
    a("s_waitcnt lgkmcnt(0)\ns_barrier")
    stamp(3)
    for i in range(8):
        a("ds_read2st64_b32 %s, %s offset0:0 offset1:12\nds_read2st64_b32 %s, %s offset0:24 offset1:36" % (V(48+4*i,2), V(32+i), V(50+4*i,2), V(32+i)))
    a("v_and_b32 v6, 255, v0\nv_cmp_eq_u32 vcc, 255, v6\nv_cndmask_b32 v23, 0, v23, vcc\nv_lshl_add_u32 v6, v6, 4, s47")
    a("s_waitcnt lgkmcnt(0)")
    for i in range(8):
        b = 48+4*i
        a("v_add_f32 %s, %s, %s\nv_add_f32 %s, %s, %s\nv_add_f32 %s, %s, %s" % (V(b),V(b),V(b+1), V(b+2),V(b+2),V(b+3), V(b),V(b),V(b+2)))
        if i < 7: a("v_mul_f32 %s, v46, %s" % (V(80+i), V(b)))
        else: a("v_fma_f32 %s, v46, %s, v23" % (V(80+i), V(b)))
    W0 = 48
    pk2(W0, 80); pk2(W0+2, 84)
    a("ds_write_b128 v6, %s offset:%d" % (V(W0,4), 7*CSTR))
    a("s_waitcnt lgkmcnt(0)\ns_barrier")
    a("ds_read_b128 %s, v6 offset:%d" % (V(W0+4,4), 7*CSTR+16))
    a("v_mov_b32 v24, 0\nv_mov_b32 v25, 0\nv_mov_b32 v26, 0\nv_mov_b32 v27, 0")
    a("v_and_b32 v7, 7, v0\nv_mul_u32_u24 v7, %d, v7\nv_add_u32 v7, s47, v7\nds_write_b128 v7, v[24:27] offset:4096" % CSTR)
    a("s_waitcnt lgkmcnt(1)")
    Wm, Za, Zb = 56, 64, 72
    a("ds_write_b128 v6, %s offset:%d" % (V(W0+2,4), 3*CSTR))
    for kx in range(6): a("v_mov_b32 %s, %s" % (V(Wm+kx), V(W0+kx+1)))
    a("ds_write_b128 v6, %s offset:%d\nds_write_b128 v6, %s offset:%d" % (V(Wm,4), 5*CSTR, V(Wm+2,4), 1*CSTR))
    for kx in range(6): a("v_alignbit_b32 %s, %s, %s, 16" % (V(Za+kx), V(W0+kx+1), V(W0+kx)))
    a("ds_write_b128 v6, %s offset:%d\nds_write_b128 v6, %s offset:%d" % (V(Za,4), 6*CSTR, V(Za+2,4), 2*CSTR))
    for kx in range(6): a("v_alignbit_b32 %s, %s, %s, 16" % (V(Zb+kx), V(W0+kx+2), V(W0+kx+1)))
    a("ds_write_b128 v6, %s offset:%d\nds_write_b128 v6, %s offset:%d" % (V(Zb,4), 4*CSTR, V(Zb+2,4), 0))
    stamp(4)
    a("s_waitcnt vmcnt(0)\nv_add_co_u32 v12, vcc, 1, v12\nv_addc_co_u32 v13, vcc, 0, v13, vcc")
    a("v_lshlrev_b32 v8, 4, v0\ns_lshl_b32 s44, s5, 13\ns_add_u32 s45, s44, 0x%x" % UT)
    a("v_and_b32 v9, 255, v0\nv_lshl_add_u32 v9, v9, 4, s48")
    a("s_bfe_u32 s6, s4, 0x10001\ns_mul_i32 s47, s6, %d\ns_mul_i32 s48, s6, %d" % (CCH, USTR))
    a("v_and_b32 v10, 7, v2\nv_mul_u32_u24 v10, %d, v10\nv_lshrrev_b32 v11, 3, v2\nv_sub_u32 v11, v3, v11\nv_lshl_add_u32 v10, v11, 4, v10" % CSTR)
    a("s_add_u32 s47, s47, %d\nv_add_u32 v10, s47, v10" % (CP + 2*(2040-16-256*7)))
    a("v_lshlrev_b32 v11, 5, v2\nv_lshl_add_u32 v11, v3, 4, v11\ns_add_u32 s48, s48, %d\nv_add_u32 v11, s48, v11" % (UPAD-32))
    a("v_lshlrev_b32 v14, 5, v2\nv_lshl_add_u32 v14, v3, 3, v14\ns_lshl_b32 s3, s6, 12\ns_add_u32 s44, s44, s3\ns_add_u32 s44, s44, 0x%x" % YT)
    a("s_cmp_lg_u32 s4, 0\ns_cbranch_scc1 L_h1b_done")
    a("s_lshl_b32 s3, s5, 7\ns_add_u32 s3, s3, 0x%x\ns_mov_b32 s42, %d\nv_lshlrev_b32 v15, 3, v2" % (FLB, SPIN))
    a("L_h1b:")
    a("buffer_load_dwordx2 v[4:5], v15, s[8:11], s3 offen sc1\ns_waitcnt vmcnt(0)")
    a("v_cmp_ne_u64 vcc, v[4:5], v[12:13]")
    a("s_sub_u32 s42, s42, 1\ns_cbranch_scc1 L_h1b_done\ns_cbranch_vccnz L_h1b")
    a("L_h1b_done:\ns_barrier")
    stamp(5)
    a("buffer_load_dwordx4 v[4:7], v8, s[8:11], s45 offen sc1\ns_waitcnt vmcnt(0)")
    stamp(6)
    a("ds_write_b128 v9, v[4:7] offset:%d" % UPAD)
    a("s_waitcnt lgkmcnt(0)\ns_barrier")
    a("s_cmp_ge_u32 s4, 4\ns_cbranch_scc1 L_end")
    a("s_setprio 2")
    ACC = 16; FR = 32
    for j in range(16): a("v_mov_b32 %s, 0" % V(ACC+j))
    a("s_mov_b32 s42, 8")
    a("s_bitcmp1_b32 s4, 0\ns_cbranch_scc1 L_cv1")
    def conv(tag, tiles, seq):
        keys = []
        for _,x,y in seq:
            for kx in (x,y):
                if kx not in keys: keys.append(kx)
        reg = {kx: FR+4*i for i,kx in enumerate(keys)}
        assert FR+4*len(keys) <= 128
        def rd(kx):
            if kx[0] == "A": a("ds_read_b128 %s, v10 offset:%d" % (V(reg[kx],4), (7-kx[1])*512))
            else: a("ds_read_b128 %s, v11 offset:%d" % (V(reg[kx],4), kx[1]*512))
        last = {}; first = {}
        for i,(_,x,y) in enumerate(seq):
            for kx in (x,y):
                last[kx] = i; first.setdefault(kx, i)
        order = [kx for i in range(len(seq)) for kx in (seq[i][1], seq[i][2]) if last[kx] == i]
        for kx in order: rd(kx)
        a("L_cvl%s:" % tag)
        a("v_subrev_u32 v10, 64, v10\nv_subrev_u32 v11, 64, v11")
        issued = 0
        done_upto = -1
        for i,(ti,x,y) in enumerate(seq):
            needpos = max([order.index(kx) for kx in (x,y) if first[kx] == i], default=-1)
            if needpos > done_upto:
                n = (len(order)-1-needpos) + issued
                a("s_waitcnt lgkmcnt(%d)" % min(n, 15))
                done_upto = needpos
            mfma(ACC+4*ti, reg[x], reg[y], ACC+4*ti)
            for kx in (x,y):
                if last[kx] == i: rd(kx); issued += 1
        a("s_sub_u32 s42, s42, 1\ns_cmp_lg_u32 s42, 0\ns_cbranch_scc1 L_cvl%s" % tag)
        a("s_waitcnt lgkmcnt(0)\ns_nop 7")
        stamp(7)
        for ti,e in enumerate(tiles):
            pk2(FR+2*ti, ACC+4*ti)
            a("buffer_store_dwordx2 %s, v14, s[8:11], s44 offen offset:%d sc1" % (V(FR+2*ti,2), e*512))
        if stamps: a("s_waitcnt vmcnt(0)")
        stamp(8)
    seq0 = [(0,("A",0),("B",7)), (1,("A",0),("B",6)), (2,("A",0),("B",1,"x")), (3,("A",0),("B",0,"x")),
            (0,("A",1),("B",6)), (1,("A",1),("B",5)), (2,("A",1),("B",0,"x"))]
    for m in range(2,8):
        seq0.append((0,("A",m),("B",7-m)))
        if m < 7: seq0.append((1,("A",m),("B",6-m)))
    conv("0", [7,6,1,0], seq0)
    write_stamps(9, "c")
    a("s_endpgm")
    a("L_cv1:")
    seq1 = []
    for m in range(6):
        for ti,e in enumerate([5,4,3,2]):
            if m <= e: seq1.append((ti,("A",m),("B",e-m)))
    conv("1", [5,4,3,2], seq1)
    a("L_end:\ns_endpgm")
    a.raw(""".section .rodata,"a"
.p2align 6
.amdhsa_kernel %s
  .amdhsa_next_free_vgpr 128
  .amdhsa_next_free_sgpr 96
  .amdhsa_accum_offset 128
  .amdhsa_group_segment_fixed_size 0
  .amdhsa_kernarg_size 120
  .amdhsa_user_sgpr_count 2
  .amdhsa_user_sgpr_kernarg_segment_ptr 1
  .amdhsa_system_sgpr_workgroup_id_x 1
.end_amdhsa_kernel""" % k)
    return a
if __name__ == "__main__":
    a = gen(False); open("k.s","w").write(a.text()); print("instructions", a.ninst)
    a = gen(True); open("k_st.s","w").write(a.text())
```

```python
import sys, struct
from asmlib import Asm
NAME = "concat_heads__spectral_gfnet__ssm_conv_s4__prompt"
def f32(x): return "0x%08x" % struct.unpack("<I", struct.pack("<f", x))[0]
def V(a, n=1): return "v%d" % a if n == 1 else "v[%d:%d]" % (a, a+n-1)
def S(a, n=1): return "s%d" % a if n == 1 else "s[%d:%d]" % (a, a+n-1)

D1 = 0x000000; D2 = 0x400000; UT = 0x800000; YT = 0xC00000
FLA = 0x1000000; FLB = 0x1040000; EPA = 0x1080000; EPB = 0x1080080
WS_USED = 0x1100000
STAMP_OFF = 0xC800000
RA = 32
SPIN = 400000
RAW = 0; X1 = 16384; X2 = X1 + 16*1040; LY = X2 + 8*2064 + 1024; LY2 = LY + 16*528
X2I = 0; X1I = 21760
TR = 0
UPAD = 576; USTR = UPAD + 4096; CP = 2*USTR; CSTR = 4160; CCH = 8*CSTR
LDS_TOTAL = CP + 2*CCH
assert LY2 + 8*1040 <= LDS_TOTAL

def gen(stamps=False, probe=None):
    a = Asm()
    if probe is not None: stamps = True
    nst = [0]
    def stamp(i):
        if stamps: a("s_memrealtime %s" % S(60+2*i, 2))
    def write_stamps(n, tag):
        if not stamps: return
        a("s_waitcnt lgkmcnt(0)")
        if probe is not None:
            role, idx = probe
            if role != tag: return
            a("s_add_u32 s56, s%d, 3000" % (60+2*idx))
            a("Lpr_%s:\ns_memrealtime s[58:59]\ns_waitcnt lgkmcnt(0)\ns_sub_u32 s57, s58, s56\ns_cmp_lt_i32 s57, 0\ns_cbranch_scc1 Lpr_%s" % (tag, tag))
            return
        a("v_cmp_eq_u32 vcc, 0, v0\ns_and_saveexec_b64 s[58:59], vcc\ns_cbranch_execz Lst_%s" % tag)
        a("s_mov_b32 s10, 0x10000000")
        a("s_lshl_b32 s57, s2, 7\ns_add_u32 s57, s57, 0x%x\nv_mov_b32 v100, s57" % STAMP_OFF)
        for i in range(n):
            a("v_mov_b32 v102, s%d\nv_mov_b32 v103, s%d" % (60+2*i, 61+2*i))
            a("buffer_store_dwordx2 v[102:103], v100, s[8:11], 0 offen offset:%d\ns_nop 1" % (8*i))
        a("Lst_%s:" % tag)
    def cs4(c, s, f0, step, t):
        a("v_add_f32 %s, %s, %s" % (V(t), V(f0), V(step)))
        a("v_fma_f32 %s, 2.0, %s, %s" % (V(t+1), V(step), V(f0)))
        a("v_fma_f32 %s, 2.0, %s, %s" % (V(t+2), V(step), V(t)))
        src = [f0, t, t+1, t+2]
        for j in range(4):
            if c is not None: a("v_cos_f32 %s, %s" % (V(c+j), V(src[j])))
            if s is not None: a("v_sin_f32 %s, %s" % (V(s+j), V(src[j])))
    def pk(d, x, y, nx=False, ny=False):
        a("v_cvt_pk_bf16_f32 %s, %s%s, %s%s" % (V(d), "-" if nx else "", V(x), "-" if ny else "", V(y)))
    def pk2(d, x, neg=False):
        pk(d, x, x+1, neg, neg); pk(d+1, x+2, x+3, neg, neg)
    def planar(d, re, im): pk2(d, re); pk2(d+2, im)
    def inter(d, re, im):
        for j in range(4): pk(d+j, re+j, im+j)
    def mfma(d, x, y, c="0"):
        a("v_mfma_f32_16x16x32_bf16 %s, %s, %s, %s" % (V(d,4), V(x,4), V(y,4), c if c == "0" else V(c,4)))
    def srd_consts(d, nbytes):
        a("s_mov_b32 %s, 0x%x\ns_mov_b32 %s, 0x20000" % (S(d+2), nbytes, S(d+3)))

    a.raw("; @launch grid=(512,1,1) block=(512,1,1) lds=%d" % LDS_TOTAL)
    a.raw('.amdgcn_target "amdgcn-amd-amdhsa--gfx950"\n.text')
    k = NAME + "_kernel"
    a.raw(".globl %s\n.p2align 8\n.type %s,@function\n%s:" % (k,k,k))
    vLane, vL, vG, vT0 = 1, 2, 3, 4
    vTag = 12
    sW, sQ, sT = 24, 25, 26
    stamp(0)
    a("s_load_dwordx2 s[8:9], s[0:1], 112")
    a("s_cmp_ge_u32 s2, 256\ns_cbranch_scc1 L_type2")
    a("s_cmp_lt_u32 s2, 128\ns_cselect_b32 s3, 0, 24")
    a("s_load_dwordx2 s[4:5], s[0:1], s3")
    a("s_load_dwordx2 s[16:17], s[0:1], 8\ns_load_dwordx2 s[20:21], s[0:1], 16\ns_load_dwordx2 s[12:13], s[0:1], 96")
    a("s_setprio 3")
    srd_consts(4, 0x200000); srd_consts(8, WS_USED); srd_consts(12, 0x400000); srd_consts(16, 2048*514); srd_consts(20, 2048*514)
    a("v_readfirstlane_b32 s24, v0")
    a("v_and_b32 v1, 63, v0\nv_and_b32 v2, 15, v0\nv_bfe_u32 v3, v0, 4, 2")
    a("s_lshr_b32 s24, s24, 6")
    a("s_and_b32 s25, s2, 15\ns_lshr_b32 s26, s2, 4")
    vWoff = 14; vWr = 16; vWi = 20
    a("v_lshrrev_b32 v4, 1, v3\nv_and_b32 v5, 1, v3\nv_lshlrev_b32 v5, 10, v5\nv_lshl_add_u32 v4, v4, 4, v5")
    a("s_lshl_b32 s27, s24, 5\ns_add_u32 s27, s27, s25\nv_add_u32 v4, s27, v4")
    a("v_mul_u32_u24 v15, 514, v4")
    a("s_lshl_b32 s27, s26, 5\nv_lshl_add_u32 v14, v2, 1, v15\nv_add_u32 v14, s27, v14")
    for j in range(8): a("v_mov_b32 %s, 0" % V(vWr+j))
    a("s_mov_b32 s28, %d\ns_mov_b32 s29, %d\ns_mov_b32 s30, %d" % (131584, 2*131584, 3*131584))
    def load_w(off):
        for j in range(4):
            so = "0" if j == 0 else S(27+j)
            a("buffer_load_short_d16_hi %s, %s, s[16:19], %s offen" % (V(vWr+j), V(off), so))
            a("buffer_load_short_d16_hi %s, %s, s[20:23], %s offen" % (V(vWi+j), V(off), so))
    vL16 = 24
    a("v_lshlrev_b32 v24, 4, v1")
    a("v_cvt_f32_u32 v25, v2\nv_cvt_f32_u32 v26, v3")
    vLf, vGf = 25, 26
    for j in range(4): a("v_mov_b32 %s, -1" % V(28+j))
    a("s_cmp_ge_u32 s2, 128\ns_cbranch_scc1 L_ut")
    M1re, M1im, M3 = 32, 36, 40
    M2 = 46
    vX2a = 70
    C, Sn = 74, 78
    a("v_mul_f32 v4, %s, v25" % f32(1/32))
    a("v_mul_f32 v5, 4.0, v26\nv_mul_f32 v6, v5, v4")
    cs4(C, None, 6, 4, 8)
    a("v_cmp_eq_u32 vcc, 0, v2")
    a("v_cndmask_b32 v4, v4, 0.5, vcc" if False else "v_mov_b32 v7, 0.5\nv_cndmask_b32 v4, v4, v7, vcc")
    a("v_mov_b32 v7, %s\nv_cndmask_b32 v7, v7, 0, vcc" % f32(0.25) if False else "v_mov_b32 v7, %s\nv_cndmask_b32 v7, v7, v16, vcc" % f32(0.25))
    a("v_fma_f32 v6, v5, v4, v7")
    cs4(Sn, None, 6, 4, 8)
    a("s_lshl_b32 s31, s24, 18\ns_lshl_b32 s3, s2, 10\ns_add_u32 s31, s31, s3\ns_add_u32 s32, s31, 0x20000")
    a("s_lshl_b32 s33, s24, 11")
    a("s_waitcnt lgkmcnt(0)")
    stamp(1)
    a("s_mov_b32 m0, s33")
    a("buffer_load_dwordx4 v24, s[4:7], s31 offen lds")
    a("s_add_u32 m0, s33, 1024")
    a("buffer_load_dwordx4 v24, s[4:7], s32 offen lds")
    a("s_mov_b32 s3, 0x%x\nbuffer_load_dwordx2 v[12:13], off, s[8:11], s3 sc1" % EPA)
    load_w(vWoff)
    a("s_mul_i32 s34, s2, 17408\ns_add_u32 s34, s34, 0x%x\ns_add_u32 s35, s34, 8192\ns_add_u32 s36, s34, 16384" % D2)
    a("v_lshlrev_b32 v27, 4, v0")
    a("buffer_store_dwordx4 v[28:31], v27, s[8:11], s34 offen sc1\nbuffer_store_dwordx4 v[28:31], v27, s[8:11], s35 offen sc1")
    a("buffer_store_dwordx4 v[28:31], v24, s[8:11], s36 offen sc1")
    a("v_lshlrev_b32 v4, 31, v2\nv_lshrrev_b32 v5, 16, v4\nv_or_b32 v4, v4, v5")
    pk2(M1re, C); pk2(M1im, Sn)
    for m in (M1re, M1im):
        a("v_xor_b32 %s, %s, v4\nv_xor_b32 %s, %s, v4" % (V(m+2), V(m), V(m+3), V(m+1)))
    a("v_lshlrev_b32 v82, 28, v2\nv_and_b32 v82, 0x80000000, v82\nv_lshrrev_b32 v5, 16, v82\nv_or_b32 v82, v82, v5")
    a("v_cmp_gt_u32 s[38:39], 8, v2")
    a("s_lshl_b32 s37, s24, 1")
    def gen_m2(p, slot):
        m = M2 + 8*p
        a("v_lshl_add_u32 v9, v2, 5, %s" % slot)
        a("v_cvt_f32_u32 v4, v9\nv_mul_f32 v4, %s, v4\nv_mul_f32 v6, 4.0, v26\nv_mul_f32 v6, v6, v4" % f32(1/512))
        a("v_sub_u32 v10, 512, v9\nv_cndmask_b32 v9, v10, v9, s[38:39]")
        a("v_lshrrev_b32 v10, 5, v9\nv_mul_u32_u24 v10, 2064, v10\nv_bfe_u32 v11, v9, 4, 1\nv_lshl_add_u32 v10, v11, 10, v10")
        a("v_and_b32 v9, 15, v9\nv_lshl_add_u32 v10, v9, 4, v10\nv_lshl_add_u32 %s, v3, 8, v10" % V(vX2a+p))
        cs4(C, Sn, 6, 4, 8)
        if p < 2:
            pk2(m, C); pk2(m+2, Sn); pk2(m+4, Sn, True)
            a("v_xor_b32 %s, %s, v82\nv_xor_b32 %s, %s, v82" % (V(m+4), V(m+4), V(m+5), V(m+5)))
            a("v_xor_b32 %s, %s, v82\nv_xor_b32 %s, %s, v82" % (V(m+6), V(m), V(m+7), V(m+1)))
        else:
            pk2(m+2, C); pk2(m+6, Sn, True)
            a("v_xor_b32 %s, %s, v82\nv_xor_b32 %s, %s, v82" % (V(m+6), V(m+6), V(m+7), V(m+7)))
            for i in (0,1,4,5): a("v_mov_b32 %s, 0" % V(m+i))
            for i in (2,3,6,7): a("v_mov_b32 %s, 0" % V(M2+i))
    gen_m2(0, "s37")
    a("s_add_u32 s37, s37, 1")
    gen_m2(1, "s37")
    a("s_cmp_lg_u32 s24, 0\ns_cbranch_scc1 L_p1_nom2")
    gen_m2(2, "16")
    a("L_p1_nom2:")
    a("v_lshl_add_u32 v4, v3, 9, s2\nv_mul_u32_u24 v4, v4, v2\nv_cvt_f32_u32 v6, v4\nv_mul_f32 v6, %s, v6\nv_mul_f32 v4, %s, v25" % (f32(1/2048), f32(1/16)))
    cs4(C, Sn, 6, 4, 8)
    pk2(M3, Sn, True); pk2(M3+2, C); pk2(M3+4, Sn)
    a("v_lshl_add_u32 v83, v1, 3, s33")
    a("v_mul_u32_u24 v84, 1040, v2\nv_lshl_add_u32 v84, v3, 8, v84\ns_lshl_b32 s3, s24, 5\nv_add_u32 v84, s3, v84")
    a("s_mul_i32 s3, s24, 2080\nv_add_u32 v85, s3, v24")
    a("s_mul_i32 s3, s24, 2064\nv_add_u32 v86, s3, v24")
    a("v_mul_u32_u24 v87, %d, v2\nv_lshl_add_u32 v87, v3, 4, v87" % (17*8192))
    a("s_and_b32 s3, s2, 7\ns_lshl_b32 s3, s3, 10\ns_lshr_b32 s37, s2, 3\ns_lshl_b32 s37, s37, 6\ns_add_u32 s37, s37, s3")
    a("s_lshl_b32 s3, s24, 14\ns_add_u32 s43, s37, s3\ns_add_u32 s44, s43, 8192\ns_add_u32 s45, s37, %d" % (16*8192))
    B0, B1, B2 = 88, 92, 96
    E0, E1, E2 = 100, 108, 116
    a("s_waitcnt vmcnt(12)")
    stamp(2)
    a("ds_read_b64_tr_b16 v[88:89], v83\nds_read_b64_tr_b16 v[90:91], v83 offset:512")
    a("ds_read_b64_tr_b16 v[92:93], v83 offset:1024\nds_read_b64_tr_b16 v[94:95], v83 offset:1536")
    a("s_waitcnt lgkmcnt(2)")
    mfma(E0, B0, M1re); mfma(E0+4, B0, M1im)
    a("s_waitcnt lgkmcnt(0)")
    mfma(E1, B1, M1re); mfma(E1+4, B1, M1im)
    planar(B0, E0, E0+4)
    a("ds_write_b128 v84, %s offset:%d" % (V(B0,4), X1))
    planar(B1, E1, E1+4)
    a("ds_write_b128 v84, %s offset:%d" % (V(B1,4), X1+16))
    a("s_waitcnt lgkmcnt(0)\ns_barrier")
    a("ds_read_b128 %s, v85 offset:%d\nds_read_b128 %s, v85 offset:%d" % (V(B0,4), X1, V(B1,4), X1+1040))
    a("s_waitcnt lgkmcnt(1)")
    mfma(E0, B0, M2); mfma(E0+4, B0, M2+4)
    a("s_waitcnt lgkmcnt(0)")
    mfma(E1, B1, M2+8); mfma(E1+4, B1, M2+12)
    a("s_cmp_lg_u32 s24, 0\ns_cbranch_scc1 L_p1_s2b")
    mfma(E2, B0, M2+16); mfma(E2+4, B0, M2+20)
    planar(B2, E2, E2+4)
    a("ds_write_b128 %s, %s offset:%d" % (V(vX2a+2), V(B2,4), X2))
    a("L_p1_s2b:\ns_nop 3")
    planar(B0, E0, E0+4)
    a("ds_write_b128 %s, %s offset:%d" % (V(vX2a), V(B0,4), X2))
    planar(B1, E1, E1+4)
    a("ds_write_b128 %s, %s offset:%d" % (V(vX2a+1), V(B1,4), X2))
    a("s_waitcnt lgkmcnt(0)\ns_barrier")
    a("ds_read_b128 %s, v86 offset:%d\nds_read_b128 %s, v86 offset:%d" % (V(B0,4), X2, V(B1,4), X2+1024))
    a("ds_read_b128 %s, v24 offset:%d" % (V(B2,4), X2+8*2064))
    a("s_waitcnt lgkmcnt(2)")
    mfma(E0, B0, M3+2); mfma(E0+4, B0, M3)
    a("s_waitcnt lgkmcnt(1)")
    mfma(E1, B1, M3+2); mfma(E1+4, B1, M3)
    a("s_cmp_lg_u32 s24, 7\ns_cbranch_scc1 L_p1_s3b")
    a("s_waitcnt lgkmcnt(0)")
    mfma(E2, B2, M3+2); mfma(E2+4, B2, M3)
    inter(B2, E2, E2+4)
    a("buffer_store_dwordx4 %s, v87, s[8:11], s45 offen sc1" % V(B2,4))
    a("L_p1_s3b:\ns_nop 3")
    inter(B0, E0, E0+4)
    a("buffer_store_dwordx4 %s, v87, s[8:11], s43 offen sc1" % V(B0,4))
    inter(B1, E1, E1+4)
    a("buffer_store_dwordx4 %s, v87, s[8:11], s44 offen sc1" % V(B1,4))
    stamp(3)
    a("s_lshl_b32 s3, s2, 3\ns_add_u32 s46, s3, 0x%x\nv_lshlrev_b32 v4, 10, v0" % FLA)
    a("v_cmp_gt_u32 vcc, %d, v0" % RA)
    a("s_branch L_sig1")
    a("L_ut:")
    a("s_and_b32 s31, s2, 7\ns_bfe_u32 s32, s2, 0x40003")
    a("v_lshrrev_b32 v4, 3, v0\nv_and_b32 v5, 7, v0\nv_lshlrev_b32 v6, 10, v4\nv_lshl_add_u32 v6, v5, 4, v6")
    a("v_mul_u32_u24 v7, 144, v4\nv_lshl_add_u32 v7, v5, 4, v7")
    a("s_lshl_b32 s33, s32, 17\ns_lshl_b32 s3, s31, 7\ns_add_u32 s33, s33, s3\ns_add_u32 s34, s33, 0x10000")
    a("v_lshrrev_b32 v8, 4, v0\nv_lshlrev_b32 v8, 12, v8\nv_lshl_add_u32 v27, v2, 4, v8")
    a("s_lshl_b32 s35, s31, 18\ns_lshl_b32 s3, s32, 8\ns_add_u32 s35, s35, s3")
    a("s_add_u32 s47, s35, 0x%x\ns_add_u32 s48, s47, 0x20000" % YT)
    a("s_lshl_b32 s3, s31, 7\ns_add_u32 s49, s3, 0x%x" % EPB)
    a("s_waitcnt lgkmcnt(0)")
    stamp(1)
    a("buffer_load_dwordx4 v[88:91], v6, s[4:7], s33 offen\nbuffer_load_dwordx4 v[92:95], v6, s[4:7], s34 offen")
    a("buffer_load_dwordx2 v[124:125], off, s[8:11], s49 sc1")
    a("s_mov_b32 s3, 0x%x\nbuffer_load_dwordx2 v[12:13], off, s[8:11], s3 sc1" % EPA)
    load_w(vWoff)
    a("buffer_store_dwordx4 v[28:31], v27, s[8:11], s47 offen sc1\nbuffer_store_dwordx4 v[28:31], v27, s[8:11], s48 offen sc1")
    a("v_lshrrev_b32 v8, 2, v2\nv_lshl_add_u32 v8, v3, 3, v8\nv_mul_u32_u24 v8, 144, v8\nv_and_b32 v9, 3, v2\nv_lshl_add_u32 v8, v9, 3, v8")
    a("s_lshr_b32 s3, s24, 2\ns_mul_i32 s36, s3, %d\ns_and_b32 s37, s24, 3\ns_lshl_b32 s38, s37, 5\ns_add_u32 s36, s36, s38\nv_add_u32 v8, s36, v8" % (64*144))
    a("v_lshlrev_b32 v9, 12, v2\nv_lshl_add_u32 v9, v3, 4, v9")
    a("s_lshl_b32 s37, s37, 16\ns_lshl_b32 s3, s3, 7\ns_add_u32 s37, s37, s3\ns_add_u32 s37, s37, s35\ns_add_u32 s37, s37, 0x%x" % UT)
    a("s_waitcnt vmcnt(12)")
    stamp(2)
    a("ds_write_b128 v7, v[88:91]\nds_write_b128 v7, v[92:95] offset:%d" % (64*144))
    a("s_waitcnt lgkmcnt(0)\ns_barrier")
    for h in range(2):
        for p in range(2):
            a("ds_read_b64_tr_b16 %s, v8 offset:%d" % (V(96+4*h+2*p, 2), (32*h+4*p)*144))
    a("s_waitcnt lgkmcnt(2)\nbuffer_store_dwordx4 v[96:99], v9, s[8:11], s37 offen sc1")
    a("s_waitcnt lgkmcnt(0)\nbuffer_store_dwordx4 v[100:103], v9, s[8:11], s37 offen offset:64 sc1")
    stamp(3)
    a("s_lshl_b32 s3, s31, 12\ns_lshl_b32 s46, s32, 3\ns_add_u32 s46, s46, s3\ns_add_u32 s46, s46, 0x%x\nv_lshlrev_b32 v4, 7, v0" % FLB)
    a("s_waitcnt vmcnt(0)")
    a("v_add_co_u32 v124, vcc, 1, v124\nv_addc_co_u32 v125, vcc, 0, v125, vcc")
    a("v_add_co_u32 v12, vcc, 1, v12\nv_addc_co_u32 v13, vcc, 0, v13, vcc")
    a("s_barrier")
    a("v_cmp_gt_u32 vcc, 32, v0\ns_and_saveexec_b64 s[40:41], vcc\ns_cbranch_execz L_p2pre")
    a("buffer_store_dwordx2 v[124:125], v4, s[8:11], s46 offen sc1")
    a("s_branch L_p2pre")
    a("L_sig1:")
    a("s_waitcnt vmcnt(0)")
    a("v_add_co_u32 v12, s[38:39], 1, v12\nv_addc_co_u32 v13, s[38:39], 0, v13, s[38:39]")
    a("s_barrier")
    a("s_and_saveexec_b64 s[40:41], vcc\ns_cbranch_execz L_p2pre")
    a("buffer_store_dwordx2 v[12:13], v4, s[8:11], s46 offen sc1")
    a("L_p2pre:")
    a("s_mov_b64 exec, -1")
    stamp(4)
    Ma, Fb, Mi = 32, 40, 50
    a("v_lshl_add_u32 v4, v3, 3, s24\nv_mul_u32_u24 v4, v4, v2\nv_cvt_f32_u32 v6, v4\nv_mul_f32 v6, %s, v6\nv_mul_f32 v4, %s, v25" % (f32(1/128), f32(0.25)))
    cs4(C, Sn, 6, 4, 8)
    for j in range(4):
        pk(Ma+j, C+j, Sn+j); pk(Ma+4+j, Sn+j, C+j, True, False)
    a("v_and_b32 v4, 7, v2\nv_cvt_f32_u32 v4, v4\nv_mul_f32 v4, %s, v4\nv_and_b32 v5, 1, v3\nv_cvt_f32_u32 v5, v5\nv_mul_f32 v5, 4.0, v5\nv_mul_f32 v6, v5, v4" % f32(0.125))
    cs4(C, Sn, 6, 4, 8)
    a("v_lshrrev_b32 v4, 1, v3\nv_lshrrev_b32 v5, 3, v2\nv_cmp_eq_u32 vcc, v4, v5")
    pk2(Fb, Sn, True); pk2(Fb+2, C); pk2(Fb+4, Sn)
    for i in range(6): a("v_cndmask_b32 %s, 0, %s, vcc" % (V(Fb+i), V(Fb+i)))
    a("v_mov_b32 %s, %s\nv_mov_b32 %s, %s\nv_mov_b32 %s, %s\nv_mov_b32 %s, %s" % (V(Fb+6),V(Fb+2),V(Fb+7),V(Fb+3),V(Fb+8),V(Fb),V(Fb+9),V(Fb+1)))
    a("v_lshl_add_u32 v4, v2, 3, s24\nv_cvt_f32_u32 v4, v4\nv_mul_f32 v4, %s, v4\nv_mul_f32 v6, 4.0, v26\nv_mul_f32 v6, v6, v4" % f32(1/128))
    cs4(C, Sn, 6, 4, 8)
    pk2(Mi, Sn); pk2(Mi+2, C); pk2(Mi+4, Sn, True)
    a("v_lshlrev_b32 v126, 2, v1")
    a("v_mul_u32_u24 v57, 528, v2\nv_lshl_add_u32 v57, v3, 4, v57\ns_lshl_b32 s3, s24, 6\nv_add_u32 v57, s3, v57")
    a("v_lshrrev_b32 v4, 1, v3\nv_mul_u32_u24 v58, 528, v4\nv_and_b32 v5, 31, v1\nv_lshl_add_u32 v58, v5, 4, v58\ns_mul_i32 s3, s24, 1056\nv_add_u32 v58, s3, v58")
    a("v_and_b32 v4, 7, v2\nv_mul_u32_u24 v59, 1040, v4\nv_lshrrev_b32 v5, 3, v2\nv_lshl_add_u32 v59, v5, 6, v59\nv_lshl_add_u32 v59, v3, 4, v59\ns_lshl_b32 s3, s24, 7\nv_add_u32 v59, s3, v59")
    a("s_mul_i32 s3, s24, 1040\nv_add_u32 v60, s3, v24")
    a("v_mul_u32_u24 v61, %d, v2\nv_lshl_add_u32 v61, v3, 4, v61" % (8*17408))
    a("s_mul_i32 s31, s25, 17\ns_add_u32 s31, s31, s26\ns_lshl_b32 s31, s31, 13\ns_lshl_b32 s3, s24, 10\ns_add_u32 s31, s31, s3")
    a("s_mul_i32 s32, s24, 17408\ns_lshl_b32 s3, s26, 10\ns_add_u32 s32, s32, s3\ns_lshl_b32 s3, s25, 6\ns_add_u32 s32, s32, s3\ns_add_u32 s32, s32, 0x%x" % D2)
    a("v_add_u32 v15, 512, v15")
    a("s_cmp_lg_u32 s24, 0\ns_cbranch_scc1 L_h1a_done")
    a("s_and_b32 s3, s2, %d\ns_lshl_b32 s3, s3, 10\ns_add_u32 s3, s3, 0x%x\ns_mov_b32 s42, %d" % (RA-1, FLA, SPIN))
    a("L_h1a:")
    a("buffer_load_dwordx4 v[4:7], v24, s[8:11], s3 offen sc1\ns_waitcnt vmcnt(0)")
    a("v_cmp_ne_u64 vcc, v[4:5], v[12:13]\nv_cmp_ne_u64 s[38:39], v[6:7], v[12:13]\ns_or_b64 vcc, vcc, s[38:39]")
    a("s_sub_u32 s42, s42, 1\ns_cbranch_scc1 L_h1a_done\ns_cbranch_vccnz L_h1a")
    a("L_h1a_done:\ns_barrier")
    stamp(5)
    a("L_p2:")
    for j in range(4): a("buffer_load_dword %s, v126, s[8:11], s31 offen offset:%d sc1" % (V(B0+j), 256*j))
    a("s_waitcnt vmcnt(0)")
    stamp(6)
    mfma(E0, B0, Ma); mfma(E0+4, B0, Ma+4)
    planar(B1, E0, E0+4)
    a("ds_write_b128 v57, %s offset:%d" % (V(B1,4), LY))
    a("s_waitcnt lgkmcnt(0)\ns_barrier")
    a("ds_read_b64_tr_b16 %s, v58 offset:%d\nds_read_b64_tr_b16 %s, v58 offset:%d" % (V(B0,2), LY, V(B0+2,2), LY+8))
    a("s_waitcnt lgkmcnt(0)")
    mfma(E0, Fb+2, B0); mfma(E0+4, Fb, B0)
    for h in (0,2):
        a("v_pk_mul_f32 %s, %s, %s" % (V(E1+h,2), V(E0+h,2), V(vWr+h,2)))
        a("v_pk_mul_f32 %s, %s, %s" % (V(E1+4+h,2), V(E0+h,2), V(vWi+h,2)))
    for h in (0,2):
        a("v_pk_fma_f32 %s, %s, %s, %s neg_lo:[1,0,0] neg_hi:[1,0,0]" % (V(E1+h,2), V(E0+4+h,2), V(vWi+h,2), V(E1+h,2)))
        a("v_pk_fma_f32 %s, %s, %s, %s" % (V(E1+4+h,2), V(E0+4+h,2), V(vWr+h,2), V(E1+4+h,2)))
    planar(B1, E1, E1+4)
    mfma(E0, B1, Fb+6); mfma(E0+4, B1, Fb+4)
    planar(B0, E0, E0+4)
    a("ds_write_b128 v59, %s offset:%d" % (V(B0,4), LY2))
    a("s_waitcnt lgkmcnt(0)\ns_barrier")
    a("ds_read_b64_tr_b16 %s, v60 offset:%d\nds_read_b64_tr_b16 %s, v60 offset:%d" % (V(B1,2), LY2, V(B1+2,2), LY2+8))
    a("s_waitcnt lgkmcnt(0)")
    mfma(E0, B1, Mi+2); mfma(E0+4, B1, Mi)
    inter(B2, E0, E0+4)
    a("buffer_store_dwordx4 %s, v61, s[8:11], s32 offen sc1" % V(B2,4))
    a("s_cmp_lg_u32 s26, 15\ns_cbranch_scc1 L_p2_done")
    a("s_mov_b32 s26, 16\ns_add_u32 s31, s31, 8192\ns_add_u32 s32, s32, 1024")
    load_w(15)
    a("s_branch L_p2")
    a("L_p2_done:")
    stamp(7)
    a("s_cmp_ge_u32 s2, 128\ns_cbranch_scc1 L_yt")
    M3i = 32
    M2i = 40
    M1i = 60
    vR2 = 68
    a("v_lshl_add_u32 v4, v2, 7, s2\nv_cvt_f32_u32 v4, v4\nv_mul_f32 v6, %s, v4\nv_mul_f32 v4, %s, v4\nv_mul_f32 v6, v6, v26" % (f32(1/2048), f32(4/2048)))
    cs4(C, Sn, 6, 4, 8)
    for j in range(4):
        pk(M3i+j, C+j, Sn+j, False, True); pk(M3i+4+j, Sn+j, C+j)
    a("v_lshlrev_b32 v82, 30, v3\nv_and_b32 v82, 0x80000000, v82\nv_lshrrev_b32 v5, 16, v82\nv_or_b32 v82, v82, v5")
    a("v_cmp_gt_u32 s[38:39], 2, v3")
    a("s_lshl_b32 s37, s24, 1")
    def gen_m2i(p, slot):
        m = M2i + 8*p
        a("v_lshl_add_u32 v9, v3, 7, %s\nv_mul_u32_u24 v9, v9, v2\nv_cvt_f32_u32 v6, v9\nv_mul_f32 v6, %s, v6\nv_mul_f32 v4, %s, v25" % (slot, f32(1/512), f32(1/16)))
        a("v_lshrrev_b32 v9, 2, v1\nv_lshl_add_u32 v9, v9, 5, %s\nv_sub_u32 v10, 512, v9\nv_cndmask_b32 v9, v10, v9, s[38:39]" % slot)
        a("v_mul_u32_u24 v9, 80, v9\nv_and_b32 v10, 3, v1\nv_lshl_add_u32 %s, v10, 4, v9" % V(vR2+p))
        cs4(C, Sn, 6, 4, 8)
        pk2(m, C); pk2(m+2, Sn, True)
        a("v_xor_b32 %s, %s, v82\nv_xor_b32 %s, %s, v82" % (V(m+2), V(m+2), V(m+3), V(m+3)))
        if p < 2:
            pk2(m+4, Sn)
            a("v_xor_b32 %s, %s, v82\nv_xor_b32 %s, %s, v82" % (V(m+6), V(m), V(m+7), V(m+1)))
    gen_m2i(0, "s37")
    a("s_add_u32 s37, s37, 1")
    gen_m2i(1, "s37")
    gen_m2i(2, "16")
    a("v_mul_f32 v4, %s, v25\nv_mul_f32 v6, 4.0, v26\nv_mul_f32 v6, v6, v4" % f32(1/32))
    cs4(C, Sn, 6, 4, 8)
    a("v_cmp_eq_u32 vcc, 0, v3\nv_lshlrev_b32 v4, 31, v2\nv_xor_b32 v4, %s, v4\nv_mov_b32 v5, 0.5" % f32(-0.5))
    a("v_cndmask_b32 %s, %s, v5, vcc\nv_cndmask_b32 %s, %s, v4, vcc" % (V(C), V(C), V(Sn), V(Sn)))
    for j in range(8): a("v_mul_f32 %s, %s, %s" % (V(C+j), f32(2.0**-19), V(C+j)))
    pk2(M1i, C); pk2(M1i+2, Sn, True)
    for j in range(4): a("v_xor_b32 %s, 0x80000000, %s" % (V(M1i+4+j), V(M1i+j)))
    a("s_lshl_b32 s3, s24, 11\ns_add_u32 s35, s34, s3")
    a("v_lshlrev_b32 v71, 6, v3")
    a("v_mul_u32_u24 v72, 80, v2\nv_lshl_add_u32 v72, v3, 4, v72\ns_mul_i32 s3, s24, 2560\nv_add_u32 v73, s3, v72")
    a("v_mul_u32_u24 v83, 1040, v2\nv_lshl_add_u32 v83, v3, 4, v83\ns_lshl_b32 s3, s24, 7\nv_add_u32 v83, s3, v83")
    a("s_mul_i32 s3, s24, 2080\nv_add_u32 v84, s3, v24")
    a("v_lshlrev_b32 v85, 5, v2\nv_lshl_add_u32 v85, v3, 3, v85")
    a("s_lshl_b32 s43, s24, 19\ns_lshl_b32 s3, s2, 11\ns_add_u32 s43, s43, s3\ns_add_u32 s44, s43, 0x40000")
    a("s_mov_b32 s42, %d" % SPIN)
    a("L_h2a:")
    for j in range(8): a("buffer_load_dword %s, v126, s[8:11], s35 offen offset:%d sc1" % (V(B0+j), 256*j))
    for j in range(4): a("buffer_load_dword %s, v71, s[8:11], s36 offen offset:%d sc1" % (V(B2+j), 256*j))
    a("s_waitcnt vmcnt(0)")
    a("v_max3_u32 v4, v88, v89, v90\nv_max3_u32 v5, v91, v92, v93\nv_max3_u32 v6, v94, v95, v96\nv_max3_u32 v7, v97, v98, v99")
    a("v_max3_u32 v4, v4, v5, v6\nv_max_u32 v4, v4, v7\nv_cmp_eq_u32 vcc, -1, v4")
    a("s_sub_u32 s42, s42, 1\ns_cbranch_scc1 L_h2a_done\ns_cbranch_vccnz L_h2a")
    a("L_h2a_done:")
    stamp(8)
    mfma(E0, M3i, B0); mfma(E0+4, M3i+4, B0)
    mfma(E1, M3i, B1); mfma(E1+4, M3i+4, B1)
    mfma(E2, M3i, B2); mfma(E2+4, M3i+4, B2)
    planar(B0, E0, E0+4)
    a("ds_write_b128 v73, %s offset:%d" % (V(B0,4), X2I))
    planar(B1, E1, E1+4)
    a("ds_write_b128 v73, %s offset:%d" % (V(B1,4), X2I+1280))
    a("s_cmp_lg_u32 s24, 7\ns_cbranch_scc1 L_p3_a")
    planar(B2, E2, E2+4)
    a("ds_write_b128 v72, %s offset:%d" % (V(B2,4), X2I+256*80))
    a("L_p3_a:")
    a("s_waitcnt lgkmcnt(0)\ns_barrier")
    for p,b in ((0,B0),(1,B1),(2,B2)):
        a("ds_read_b64_tr_b16 %s, %s offset:%d\nds_read_b64_tr_b16 %s, %s offset:%d" % (V(b,2), V(vR2+p), X2I, V(b+2,2), V(vR2+p), X2I+8))
    a("s_waitcnt lgkmcnt(4)")
    mfma(E0, M2i, B0); mfma(E0+4, M2i+4, B0)
    a("s_waitcnt lgkmcnt(2)")
    mfma(E1, M2i+8, B1); mfma(E1+4, M2i+12, B1)
    a("s_waitcnt lgkmcnt(0)")
    mfma(E2, M2i+16, B2)
    planar(B0, E0, E0+4)
    a("ds_write_b128 v83, %s offset:%d" % (V(B0,4), X1I))
    planar(B1, E1, E1+4)
    a("ds_write_b128 v83, %s offset:%d" % (V(B1,4), X1I+64))
    a("s_cmp_lg_u32 s24, 0\ns_cbranch_scc1 L_p3_b")
    pk2(B2, E2)
    a("ds_write_b64 v83, %s offset:%d" % (V(B2,2), X1I+8))
    a("L_p3_b:")
    a("s_waitcnt lgkmcnt(0)\ns_barrier")
    for e,b in ((0,B0),(1,B1)):
        a("ds_read_b64_tr_b16 %s, v84 offset:%d\nds_read_b64_tr_b16 %s, v84 offset:%d" % (V(b,2), X1I+1040*e, V(b+2,2), X1I+1040*e+8))
    a("s_waitcnt lgkmcnt(2)")
    mfma(E0, B0, M1i); mfma(E0+4, B0, M1i+4)
    a("s_waitcnt lgkmcnt(0)")
    mfma(E1, B1, M1i); mfma(E1+4, B1, M1i+4)
    planar(B0, E0, E0+4)
    a("buffer_store_dwordx2 %s, v85, s[12:15], s43 offen\nbuffer_store_dwordx2 %s, v85, s[12:15], s43 offen offset:512" % (V(B0,2), V(B0+2,2)))
    planar(B1, E1, E1+4)
    a("buffer_store_dwordx2 %s, v85, s[12:15], s44 offen\nbuffer_store_dwordx2 %s, v85, s[12:15], s44 offen offset:512" % (V(B1,2), V(B1+2,2)))
    a("s_or_b32 s3, s2, s24\ns_cmp_lg_u32 s3, 0\ns_cbranch_scc1 L_p3_c")
    a("s_mov_b32 s3, 0x%x\nbuffer_store_dwordx2 v[12:13], off, s[8:11], s3 sc1" % EPA)
    a("L_p3_c:")
    if stamps: a("s_waitcnt vmcnt(0)")
    stamp(9)
    write_stamps(10, "a")
    a("s_endpgm")
    a("L_yt:")
    a("s_and_b32 s31, s2, 7\ns_bfe_u32 s33, s2, 0x40003")
    a("v_lshrrev_b32 v4, 4, v0\nv_mul_u32_u24 v7, 272, v4\nv_lshl_add_u32 v7, v2, 4, v7")
    a("v_lshrrev_b32 v8, 2, v2\nv_lshl_add_u32 v8, v3, 3, v8\nv_mul_u32_u24 v8, 272, v8\nv_and_b32 v9, 3, v2\nv_lshl_add_u32 v8, v9, 3, v8\ns_lshl_b32 s3, s24, 5\nv_add_u32 v8, s3, v8")
    a("v_lshlrev_b32 v9, 11, v2\nv_lshl_add_u32 v9, v3, 4, v9")
    a("s_lshl_b32 s37, s33, 18\ns_lshl_b32 s3, s24, 15\ns_add_u32 s37, s37, s3\ns_lshl_b32 s3, s31, 7\ns_add_u32 s37, s37, s3\ns_add_u32 s37, s37, 1024")
    a("s_mov_b32 s42, %d" % SPIN)
    a("L_h2b:")
    a("buffer_load_dwordx4 v[88:91], v27, s[8:11], s47 offen sc1\nbuffer_load_dwordx4 v[92:95], v27, s[8:11], s48 offen sc1")
    a("s_waitcnt vmcnt(0)")
    a("v_max3_u32 v4, v88, v89, v90\nv_max3_u32 v5, v91, v92, v93\nv_max3_u32 v4, v4, v94, v95\nv_max_u32 v4, v4, v5\nv_cmp_eq_u32 vcc, -1, v4")
    a("s_sub_u32 s42, s42, 1\ns_cbranch_scc1 L_h2b_done\ns_cbranch_vccnz L_h2b")
    a("L_h2b_done:")
    stamp(8)
    a("ds_write_b128 v7, v[88:91]\nds_write_b128 v7, v[92:95] offset:%d" % (32*272))
    a("s_waitcnt lgkmcnt(0)\ns_barrier")
    for h in range(2):
        for p in range(2):
            a("ds_read_b64_tr_b16 %s, v8 offset:%d" % (V(96+4*h+2*p, 2), (32*h+4*p)*272))
    a("s_waitcnt lgkmcnt(2)\nbuffer_store_dwordx4 v[96:99], v9, s[12:15], s37 offen")
    a("s_waitcnt lgkmcnt(0)\nbuffer_store_dwordx4 v[100:103], v9, s[12:15], s37 offen offset:64")
    a("s_or_b32 s3, s33, s24\ns_cmp_lg_u32 s3, 0\ns_cbranch_scc1 L_yt_c")
    a("buffer_store_dwordx2 v[124:125], off, s[8:11], s49 sc1")
    a("L_yt_c:")
    if stamps: a("s_waitcnt vmcnt(0)")
    stamp(9)
    write_stamps(10, "y")
    a("s_endpgm")

    a("L_type2:")
    a("s_cmp_ge_u32 s2, 512\ns_cbranch_scc1 L_end")
    for i in range(8): a("s_load_dwordx2 %s, s[0:1], %d" % (S(12+4*i, 2), 32+8*i))
    srd_consts(8, WS_USED)
    for i in range(8): srd_consts(12+4*i, 131072 if i < 6 else 1024)
    a("v_readfirstlane_b32 s4, v0")
    a("v_and_b32 v1, 63, v0\nv_and_b32 v2, 15, v0\nv_bfe_u32 v3, v0, 4, 2")
    a("s_lshr_b32 s4, s4, 6")
    a("s_sub_u32 s5, s2, 256")
    a("s_lshr_b32 s6, s4, 2\ns_lshl_b32 s7, s5, 1\ns_add_u32 s7, s7, s6")
    a("s_lshl_b32 s44, s5, 9\ns_lshl_b32 s3, s4, 6\ns_add_u32 s44, s44, s3")
    a("s_lshl_b32 s45, s7, 1")
    a("v_and_b32 v4, 31, v0\nv_lshlrev_b32 v5, 1, v4")
    for i in range(8): a("v_mov_b32 %s, 0" % V(16+i))
    a("s_lshr_b32 s3, s5, 5\ns_lshl_b32 s3, s3, 7\ns_add_u32 s46, s3, 0x%x" % EPB)
    a("s_waitcnt lgkmcnt(0)")
    stamp(1)
    for i in range(6): a("buffer_load_short_d16_hi %s, v5, %s, s44 offen" % (V(16+i), S(12+4*i,4)))
    for i in (6,7): a("buffer_load_short_d16_hi %s, off, %s, s45" % (V(16+i), S(12+4*i,4)))
    a("buffer_load_dwordx2 v[12:13], off, s[8:11], s46 sc1")
    for j in range(4): a("v_mov_b32 %s, 0" % V(24+j))
    a("s_mul_i32 s47, s6, %d\ns_add_u32 s47, s47, %d" % (CCH, CP))
    a("s_mul_i32 s48, s6, %d" % USTR)
    a("v_and_b32 v6, 255, v0")
    a("v_min_u32 v7, 35, v6\nv_lshl_add_u32 v7, v7, 4, s48\nds_write_b128 v7, v[24:27]")
    a("v_mov_b32 v7, s47\nds_write_b128 v7, v[24:27] offset:%d" % (7*CSTR+4096))
    a("v_lshlrev_b32 v7, 3, v2\nv_cvt_f32_u32 v28, v7")
    a("v_and_b32 v7, 7, v2\nv_lshrrev_b32 v8, 3, v2\nv_lshl_add_u32 v7, v8, 7, v7\nv_cvt_f32_u32 v29, v7")
    a("v_and_b32 v7, 3, v2\nv_bfe_u32 v8, v2, 2, 1\nv_lshlrev_b32 v7, 1, v7\nv_lshl_add_u32 v7, v8, 7, v7\nv_add_u32 v7, 256, v7")
    a("v_and_b32 v9, 1, v2\nv_bfe_u32 v8, v2, 1, 2\nv_lshlrev_b32 v9, 2, v9\nv_lshl_add_u32 v9, v8, 7, v9\nv_add_u32 v9, 512, v9")
    a("v_cmp_gt_u32 vcc, 8, v2\nv_cndmask_b32 v7, v9, v7, vcc\nv_cvt_f32_u32 v30, v7")
    a("v_lshlrev_b32 v7, 7, v2\nv_add_u32 v7, 1024, v7\nv_cvt_f32_u32 v31, v7")
    a("v_sub_u32 v7, 255, v6")
    def base_of(d, y):
        a("v_or_b32 v8, 16, %s\nv_ffbh_u32 v8, v8\nv_sub_u32 v10, 27, v8\nv_min_u32 v10, 3, v10" % V(y))
        a("v_lshrrev_b32 v8, 4, %s\nv_lshlrev_b32 v8, 3, v8\nv_lshrrev_b32 v8, v10, v8\nv_lshl_add_u32 v8, v10, 3, v8" % V(y))
        a("v_and_b32 v9, 15, %s\nv_lshlrev_b32 v9, 2, v9\nv_lshl_add_u32 %s, v8, 6, v9\nv_add_u32 %s, s47, %s" % (V(y), V(d), V(d), V(d)))
    a("v_add_u32 v11, 1, v7")
    base_of(41, 11)
    base_of(40, 7)
    a("v_lshrrev_b32 v42, v10, 8" if False else "v_mov_b32 v42, 8\nv_lshrrev_b32 v42, v10, v42")
    a("v_max_u32 v8, 16, v7\nv_lshlrev_b32 v8, 3, v8\nv_cvt_f32_u32 v8, v8\nv_lshrrev_b32 v9, 16, v8")
    for o in range(8):
        a("v_add_f32 v10, %s, v8\nv_cvt_pk_bf16_f32 v10, v10, v10\nv_and_b32 v10, 0xffff, v10\nv_sub_u32 v10, v10, v9" % (f32(float(o))))
        a("v_cmp_eq_u32 vcc, v10, v42\nv_lshl_add_u32 v10, v10, 6, v40\nv_cndmask_b32 %s, v10, v41, vcc" % V(32+7-o))
    a("s_and_b32 s3, s4, 3\ns_lshl_b32 s49, s3, 9\ns_add_u32 s49, s49, s47")
    a("v_lshl_add_u32 v43, v4, 4, s49\nv_lshl_add_u32 v44, v3, 7, s49")
    a("s_mul_i32 s3, s3, 3072\ns_add_u32 s3, s3, s47\nv_lshlrev_b32 v45, 2, v2\nv_lshl_add_u32 v45, v3, 8, v45\nv_add_u32 v45, s3, v45")
    a("s_waitcnt vmcnt(1)")
    stamp(2)
    a("v_mul_f32 v46, %s, v22\nv_exp_f32 v46, v46\nv_cvt_pk_bf16_f32 v46, v46, v46\nv_and_b32 v46, 0xffff0000, v46" % f32(1.4426950408889634))
    a("v_mul_f32 v24, v46, v16\nv_mul_f32 v24, %s, v24" % f32(1.4426950408889634))
    a("v_mul_f32 v25, v46, v17\nv_mul_f32 v25, 0.15915494, v25")
    a("v_mul_f32 v26, v20, v18\nv_mul_f32 v27, v20, v19\nv_fma_f32 v26, -v21, v19, v26\nv_fma_f32 v27, v21, v18, v27")
    a("ds_write_b128 v43, v[24:27] offset:%d" % (3*CSTR))
    a("s_waitcnt lgkmcnt(0)")
    PR = 48
    for i in range(8): a("ds_read_b128 %s, v44 offset:%d" % (V(PR+4*i,4), 3*CSTR+16*i))
    RE, IM, FE, FG, AC = 80, 88, 96, 104, 112
    a("s_mov_b32 s42, 0")
    a("s_waitcnt lgkmcnt(0)")
    a("L_kg:")
    for i in range(8):
        a("v_mul_f32 %s, %s, v28\nv_mul_f32 %s, %s, v28" % (V(4+i), V(PR+4*i), V(IM+i), V(PR+4*i+1)))
    for i in range(8):
        a("v_exp_f32 %s, %s\nv_fract_f32 %s, %s" % (V(4+i), V(4+i), V(IM+i), V(IM+i)))
    for i in range(8):
        a("v_cos_f32 %s, %s\nv_sin_f32 %s, %s" % (V(RE+i), V(IM+i), V(IM+i), V(IM+i)))
    for i in range(8):
        a("v_mul_f32 %s, %s, %s\nv_mul_f32 %s, %s, %s" % (V(RE+i), V(RE+i), V(4+i), V(IM+i), V(IM+i), V(4+i)))
    a("v_mov_b32 v28, v29\nv_mov_b32 v29, v30\nv_mov_b32 v30, v31")
    a("s_cmp_lg_u32 s42, 0\ns_cbranch_scc1 L_kg_g")
    for i in range(8):
        a("v_mul_f32 %s, %s, %s\nv_fma_f32 %s, -%s, %s, %s" % (V(4+i), V(RE+i), V(PR+4*i+2), V(4+i), V(IM+i), V(PR+4*i+3), V(4+i)))
        a("v_mul_f32 %s, %s, %s\nv_fma_f32 %s, %s, %s, %s" % (V(IM+i), V(IM+i), V(PR+4*i+2), V(IM+i), V(RE+i), V(PR+4*i+3), V(IM+i)))
    for ks in range(2):
        pk2(FE+4*ks, 4+4*ks); pk2(FE+4*ks+2, IM+4*ks, True)
    a("s_mov_b32 s42, 1\ns_branch L_kg")
    a("L_kg_g:")
    for ks in range(2):
        pk2(FG+4*ks, RE+4*ks); pk2(FG+4*ks+2, IM+4*ks)
    mfma(AC, FG, FE); mfma(AC, FG+4, FE+4, AC)
    a("s_add_u32 s42, s42, 1\ns_cmp_lt_u32 s42, 4")
    for j in range(4): a("ds_write_b32 v45, %s offset:%d" % (V(AC+j), 64*j))
    a("v_add_u32 v45, 1024, v45")
    a("s_cbranch_scc1 L_kg")
    a("s_waitcnt lgkmcnt(0)\ns_barrier")
    stamp(3)
    for i in range(8):
        a("ds_read2st64_b32 %s, %s offset0:0 offset1:12\nds_read2st64_b32 %s, %s offset0:24 offset1:36" % (V(48+4*i,2), V(32+i), V(50+4*i,2), V(32+i)))
    a("v_and_b32 v6, 255, v0\nv_cmp_eq_u32 vcc, 255, v6\nv_cndmask_b32 v23, 0, v23, vcc\nv_lshl_add_u32 v6, v6, 4, s47")
    a("s_waitcnt lgkmcnt(0)")
    for i in range(8):
        b = 48+4*i
        a("v_add_f32 %s, %s, %s\nv_add_f32 %s, %s, %s\nv_add_f32 %s, %s, %s" % (V(b),V(b),V(b+1), V(b+2),V(b+2),V(b+3), V(b),V(b),V(b+2)))
        if i < 7: a("v_mul_f32 %s, v46, %s" % (V(80+i), V(b)))
        else: a("v_fma_f32 %s, v46, %s, v23" % (V(80+i), V(b)))
    W0 = 48
    pk2(W0, 80); pk2(W0+2, 84)
    a("ds_write_b128 v6, %s offset:%d" % (V(W0,4), 7*CSTR))
    a("s_waitcnt lgkmcnt(0)\ns_barrier")
    a("ds_read_b128 %s, v6 offset:%d" % (V(W0+4,4), 7*CSTR+16))
    a("v_mov_b32 v24, 0\nv_mov_b32 v25, 0\nv_mov_b32 v26, 0\nv_mov_b32 v27, 0")
    a("v_and_b32 v7, 7, v0\nv_mul_u32_u24 v7, %d, v7\nv_add_u32 v7, s47, v7\nds_write_b128 v7, v[24:27] offset:4096" % CSTR)
    a("s_waitcnt lgkmcnt(1)")
    Wm, Za, Zb = 56, 64, 72
    a("ds_write_b128 v6, %s offset:%d" % (V(W0+2,4), 3*CSTR))
    for kx in range(6): a("v_mov_b32 %s, %s" % (V(Wm+kx), V(W0+kx+1)))
    a("ds_write_b128 v6, %s offset:%d\nds_write_b128 v6, %s offset:%d" % (V(Wm,4), 5*CSTR, V(Wm+2,4), 1*CSTR))
    for kx in range(6): a("v_alignbit_b32 %s, %s, %s, 16" % (V(Za+kx), V(W0+kx+1), V(W0+kx)))
    a("ds_write_b128 v6, %s offset:%d\nds_write_b128 v6, %s offset:%d" % (V(Za,4), 6*CSTR, V(Za+2,4), 2*CSTR))
    for kx in range(6): a("v_alignbit_b32 %s, %s, %s, 16" % (V(Zb+kx), V(W0+kx+2), V(W0+kx+1)))
    a("ds_write_b128 v6, %s offset:%d\nds_write_b128 v6, %s offset:%d" % (V(Zb,4), 4*CSTR, V(Zb+2,4), 0))
    stamp(4)
    a("s_waitcnt vmcnt(0)\nv_add_co_u32 v12, vcc, 1, v12\nv_addc_co_u32 v13, vcc, 0, v13, vcc")
    a("v_lshlrev_b32 v8, 4, v0\ns_lshl_b32 s44, s5, 13\ns_add_u32 s45, s44, 0x%x" % UT)
    a("v_and_b32 v9, 255, v0\nv_lshl_add_u32 v9, v9, 4, s48")
    a("s_bfe_u32 s6, s4, 0x10001\ns_mul_i32 s47, s6, %d\ns_mul_i32 s48, s6, %d" % (CCH, USTR))
    a("v_and_b32 v10, 7, v2\nv_mul_u32_u24 v10, %d, v10\nv_lshrrev_b32 v11, 3, v2\nv_sub_u32 v11, v3, v11\nv_lshl_add_u32 v10, v11, 4, v10" % CSTR)
    a("s_add_u32 s47, s47, %d\nv_add_u32 v10, s47, v10" % (CP + 2*(2040-16-256*7)))
    a("v_lshlrev_b32 v11, 5, v2\nv_lshl_add_u32 v11, v3, 4, v11\ns_add_u32 s48, s48, %d\nv_add_u32 v11, s48, v11" % (UPAD-32))
    a("v_lshlrev_b32 v14, 5, v2\nv_lshl_add_u32 v14, v3, 3, v14\ns_lshl_b32 s3, s6, 12\ns_add_u32 s44, s44, s3\ns_add_u32 s44, s44, 0x%x" % YT)
    a("s_cmp_lg_u32 s4, 0\ns_cbranch_scc1 L_h1b_done")
    a("s_lshl_b32 s3, s5, 7\ns_add_u32 s3, s3, 0x%x\ns_mov_b32 s42, %d\nv_lshlrev_b32 v15, 3, v2" % (FLB, SPIN))
    a("L_h1b:")
    a("buffer_load_dwordx2 v[4:5], v15, s[8:11], s3 offen sc1\ns_waitcnt vmcnt(0)")
    a("v_cmp_ne_u64 vcc, v[4:5], v[12:13]")
    a("s_sub_u32 s42, s42, 1\ns_cbranch_scc1 L_h1b_done\ns_cbranch_vccnz L_h1b")
    a("L_h1b_done:\ns_barrier")
    stamp(5)
    a("buffer_load_dwordx4 v[4:7], v8, s[8:11], s45 offen sc1\ns_waitcnt vmcnt(0)")
    stamp(6)
    a("ds_write_b128 v9, v[4:7] offset:%d" % UPAD)
    a("s_waitcnt lgkmcnt(0)\ns_barrier")
    a("s_cmp_ge_u32 s4, 4\ns_cbranch_scc1 L_end")
    a("s_setprio 2")
    ACC = 16; FR = 32
    for j in range(16): a("v_mov_b32 %s, 0" % V(ACC+j))
    a("s_mov_b32 s42, 8")
    a("s_bitcmp1_b32 s4, 0\ns_cbranch_scc1 L_cv1")
    def conv(tag, tiles, seq):
        keys = []
        for _,x,y in seq:
            for kx in (x,y):
                if kx not in keys: keys.append(kx)
        reg = {kx: FR+4*i for i,kx in enumerate(keys)}
        assert FR+4*len(keys) <= 128
        def rd(kx):
            if kx[0] == "A": a("ds_read_b128 %s, v10 offset:%d" % (V(reg[kx],4), (7-kx[1])*512))
            else: a("ds_read_b128 %s, v11 offset:%d" % (V(reg[kx],4), kx[1]*512))
        last = {}; first = {}
        for i,(_,x,y) in enumerate(seq):
            for kx in (x,y):
                last[kx] = i; first.setdefault(kx, i)
        order = [kx for i in range(len(seq)) for kx in (seq[i][1], seq[i][2]) if last[kx] == i]
        for kx in order: rd(kx)
        a("L_cvl%s:" % tag)
        a("v_subrev_u32 v10, 64, v10\nv_subrev_u32 v11, 64, v11")
        issued = 0
        done_upto = -1
        for i,(ti,x,y) in enumerate(seq):
            needpos = max([order.index(kx) for kx in (x,y) if first[kx] == i], default=-1)
            if needpos > done_upto:
                n = (len(order)-1-needpos) + issued
                a("s_waitcnt lgkmcnt(%d)" % min(n, 15))
                done_upto = needpos
            mfma(ACC+4*ti, reg[x], reg[y], ACC+4*ti)
            for kx in (x,y):
                if last[kx] == i: rd(kx); issued += 1
        a("s_sub_u32 s42, s42, 1\ns_cmp_lg_u32 s42, 0\ns_cbranch_scc1 L_cvl%s" % tag)
        a("s_waitcnt lgkmcnt(0)\ns_nop 7")
        stamp(7)
        for ti,e in enumerate(tiles):
            pk2(FR+2*ti, ACC+4*ti)
            a("buffer_store_dwordx2 %s, v14, s[8:11], s44 offen offset:%d sc1" % (V(FR+2*ti,2), e*512))
        if stamps: a("s_waitcnt vmcnt(0)")
        stamp(8)
    seq0 = [(0,("A",0),("B",7)), (1,("A",0),("B",6)), (2,("A",0),("B",1,"x")), (3,("A",0),("B",0,"x")),
            (0,("A",1),("B",6)), (1,("A",1),("B",5)), (2,("A",1),("B",0,"x"))]
    for m in range(2,8):
        seq0.append((0,("A",m),("B",7-m)))
        if m < 7: seq0.append((1,("A",m),("B",6-m)))
    conv("0", [7,6,1,0], seq0)
    write_stamps(9, "c")
    a("s_endpgm")
    a("L_cv1:")
    seq1 = []
    for m in range(6):
        for ti,e in enumerate([5,4,3,2]):
            if m <= e: seq1.append((ti,("A",m),("B",e-m)))
    conv("1", [5,4,3,2], seq1)
    a("L_end:\ns_endpgm")
    a.raw(""".section .rodata,"a"
.p2align 6
.amdhsa_kernel %s
  .amdhsa_next_free_vgpr 128
  .amdhsa_next_free_sgpr 96
  .amdhsa_accum_offset 128
  .amdhsa_group_segment_fixed_size 0
  .amdhsa_kernarg_size 120
  .amdhsa_user_sgpr_count 2
  .amdhsa_user_sgpr_kernarg_segment_ptr 1
  .amdhsa_system_sgpr_workgroup_id_x 1
.end_amdhsa_kernel""" % k)
    return a
if __name__ == "__main__":
    a = gen(False); open("k.s","w").write(a.text()); print("instructions", a.ninst)
    a = gen(True); open("k_st.s","w").write(a.text())
    for p in sys.argv[1:]:
        a = gen(True, (p[0], int(p[1:]))); open("k_pr_%s.s" % p,"w").write(a.text())
```

```python
import sys, struct
import numpy as np
from asmlib import Asm
NAME = "concat_heads__spectral_gfnet__ssm_conv_s4__prompt"
def f32(x): return "0x%08x" % struct.unpack("<I", struct.pack("<f", x))[0]
def V(a, n=1): return "v%d" % a if n == 1 else "v[%d:%d]" % (a, a+n-1)
def S(a, n=1): return "s%d" % a if n == 1 else "s[%d:%d]" % (a, a+n-1)
def bf(x):
    x = np.asarray(x, np.float64); x = np.where(np.abs(x) < 1e-12, 0.0, x)
    u = x.astype(np.float32).view(np.uint32)
    return ((u + 0x7fff + ((u >> 16) & 1)) >> 16).astype(np.uint32)
def frag(vals):
    b = bf(vals); return (b[..., 0::2] | (b[..., 1::2] << 16)).astype(np.uint32)

D1 = 0x000000; D2 = 0x240000; UT = 0x480000; YT = 0x680000
FLA = 0x880000; FLA2 = 0x20000; FLB = 0x8A8000; FLB2 = 0x2000; EPA = 0x8B0000; EPB = 0x8B0080
WS_USED = 0x8C0000
STAMP_OFF = 0xC800000
SPIN = 100000
RAW = 0; X1 = 16384; X2 = 33792; LY = 0; LYS = 16*528; LY2 = 2*LYS; LY2S = 8*1040; TR = X2
X2I = X2; X1I = X2I + 20480; BNC = TR + 16384
UPAD = 576; UCP = UPAD + 4096 + 32; USTR = 2*UCP; CP = 2*USTR; CSTR = 4160; TP = 544; CCH = 57*TP
LDS_TOTAL = CP + 2*CCH
assert LDS_TOTAL <= 81920 and UCP % 64 == 32
assert LY2 + 2*LY2S <= X2 and X1I + 16*1040 <= LDS_TOTAL

lane = np.arange(64); L = lane & 15; g = lane >> 4; j4 = np.arange(4)
tid = np.arange(512); tw = tid >> 6; tl = tid & 63; tL = tid & 15; tg = (tid >> 4) & 3
TAB = []; TOFF = {}
def addtab(name, arr):
    arr = np.asarray(arr).astype(np.uint32).reshape(-1)
    assert arr.size % 64 == 0
    TOFF[name] = 4*sum(x.size for x in TAB); TAB.append(arr)
C = lambda n, d: np.cos(2*np.pi*(np.asarray(n) % d)/d)
Sx = lambda n, d: np.sin(2*np.pi*(np.asarray(n) % d)/d)
cat = lambda *x: np.concatenate(x, axis=-1)
def colmap(s, kb):
    if s == 0: return np.where(kb < 8, 32*kb, 32*(15-kb)+16)
    k2 = s + 32*kb
    return np.where(kb < 8, k2, 512-k2)
def build_tables():
    a_ = 4*g[:,None] + j4
    re = C(a_*L[:,None], 32); im = np.where(L[:,None] > 0, -Sx(a_*L[:,None], 32), C(a_*16, 32))
    addtab("M1", frag(cat(re, im)))
    m2re = []; m2im = []
    z = np.zeros((64,4))
    for s in range(16):
        if s == 0:
            n = a_*colmap(0, L)[:,None]; c = C(n,512); sn = Sx(n,512); lo = (L < 8)[:,None]
            r_ = cat(np.where(lo, c, 0), np.where(lo, 0, c))
            i0 = np.where((L == 0)[:,None], C(a_*256,512), -sn)
            i_ = cat(np.where(lo, i0, 0), np.where(lo, 0, -sn))
        else:
            n = a_*(s+32*L)[:,None]; c = C(n,512); sn = Sx(n,512); sg = np.where(L < 8, 1.0, -1.0)[:,None]
            r_ = cat(c, sn); i_ = cat(-sg*sn, sg*c)
        m2re.append(frag(r_)); m2im.append(frag(i_))
    addtab("M2im0", m2im[0]); addtab("M2re0", m2re[0])
    m2re = []; m2im = []
    for s in range(16):
        kb = a_
        if s == 0:
            n = L[:,None]*colmap(0, kb); c = C(n,512); sn = Sx(n,512); lo = kb < 8
            rr = np.where(kb == 0, 0.5, c); ri = np.where(kb == 0, 0.5*C(L[:,None]*256+0*kb,512), -sn)
            r_ = cat(np.where(lo, rr, 0), np.where(lo, ri, 0))
            i_ = cat(np.where(lo, 0, c), np.where(lo, 0, -sn))
        else:
            n = L[:,None]*(s+32*kb); c = C(n,512); sn = Sx(n,512); sg = np.where(kb < 8, 1.0, -1.0)
            r_ = cat(c, -sg*sn); i_ = cat(sn, sg*c)
        m2re.append(frag(r_)); m2im.append(frag(i_))
    addtab("M2iRe", np.stack(m2re)); addtab("M2iIm0", m2im[0])
    n = L[:,None]*a_
    im = np.where(a_ == 0, C(L[:,None]*16+0*a_,32), -Sx(n,32))
    addtab("M1i", frag(cat(C(n,32), im)*2.0**-19))
    def x2r(s):
        col = np.array([colmap(int(ss), np.array([l >> 2]))[0] for ss, l in zip(s, tl)])
        return X2I + col*80 + (tl&3)*16
    addtab("A3", np.stack([X2I + (32*tw + tL)*80 + tg*16, x2r(tw), x2r(tw+8), X1I + tL*1040 + tw*64 + tg*16], axis=1))
    X = tid & 255; ch = tid >> 8
    jj = 2047 - 8*X[:,None] - np.arange(16); neg = jj < 0; jj = np.maximum(jj, 0)
    v = ((bf(jj) << 16).astype(np.uint32).view(np.float32)).astype(int)
    sh = np.clip(np.floor(np.log2(np.maximum(v,1))).astype(int)-7, 0, 3)
    row = (((8*(v>>7) + (v&7)) >> sh) + 8*sh); rho = (v>>3)&15
    ga = ch[:,None]*USTR + np.where(neg, 0, UPAD + row*64 + rho*4)
    gp = ga[:, 0::2] | (ga[:, 1::2] << 16); addtab("G", gp[:, :4]); addtab("G2", gp[:, 4:6])
build_tables()
TABSZ = 4*sum(x.size for x in TAB)

def gen(stamps=False, probe=None, opt=None):
    opt = opt or {}
    RA = opt.get('RA', 2)
    opt.setdefault('pm_h1a', 'twoa')
    a = Asm()
    if probe is not None: stamps = True
    ST = 80
    smap = opt.get("smap")
    def stamp(i):
        if smap is not None: i = smap.get(i)
        elif not isinstance(i, int): i = None
        if stamps and i is not None: a("s_memrealtime %s" % S(ST+2*i, 2))
    def write_stamps(n, tag):
        if not stamps: return
        a("s_waitcnt lgkmcnt(0)")
        if probe is not None:
            role, idx = probe
            if role != tag: return
            a("s_add_u32 s56, s%d, 3000" % (ST+2*idx))
            a("Lpr_%s:\ns_memrealtime s[58:59]\ns_waitcnt lgkmcnt(0)\ns_sub_u32 s57, s58, s56\ns_cmp_lt_i32 s57, 0\ns_cbranch_scc1 Lpr_%s" % (tag, tag))
            return
        sw = opt.get("stampwave", 0)
        a("v_cmp_eq_u32 vcc, %d, v0\ns_and_saveexec_b64 s[58:59], vcc\ns_cbranch_execz Lst_%s" % (64*sw, tag))
        a("s_mov_b32 s10, 0x10000000")
        a("s_lshl_b32 s57, s2, 7\ns_add_u32 s57, s57, 0x%x\nv_mov_b32 v100, s57" % STAMP_OFF)
        for i in range(n):
            a("v_mov_b32 v102, s%d\nv_mov_b32 v103, s%d" % (ST+2*i, ST+1+2*i))
            a("buffer_store_dwordx2 v[102:103], v100, s[8:11], 0 offen offset:%d\ns_nop 1" % (8*i))
        a("Lst_%s:" % tag)
    def cs4(c, s, f0, step, t):
        a("v_add_f32 %s, %s, %s" % (V(t), V(f0), V(step)))
        a("v_fma_f32 %s, 2.0, %s, %s" % (V(t+1), V(step), V(f0)))
        a("v_fma_f32 %s, 2.0, %s, %s" % (V(t+2), V(step), V(t)))
        src = [f0, t, t+1, t+2]
        for j in range(4):
            a("v_cos_f32 %s, %s" % (V(c+j), V(src[j])))
            a("v_sin_f32 %s, %s" % (V(s+j), V(src[j])))
    def pk(d, x, y, nx=False, ny=False):
        a("v_cvt_pk_bf16_f32 %s, %s%s, %s%s" % (V(d), "-" if nx else "", V(x), "-" if ny else "", V(y)))
    def pk2(d, x, neg=False):
        pk(d, x, x+1, neg, neg); pk(d+1, x+2, x+3, neg, neg)
    def planar(d, re, im): pk2(d, re); pk2(d+2, im)
    def inter(d, re, im):
        for j in range(4): pk(d+j, re+j, im+j)
    def mfma(d, x, y, c="0"):
        a("v_mfma_f32_16x16x32_bf16 %s, %s, %s, %s" % (V(d,4), V(x,4), V(y,4), c if c == "0" else V(c,4)))
    def srd_consts(d, nbytes):
        a("s_mov_b32 %s, 0x%x\ns_mov_b32 %s, 0x20000" % (S(d+2), nbytes, S(d+3)))
    def tab_srd():
        a("s_getpc_b64 s[52:53]\ns_add_u32 s52, s52, Ltab@rel32@lo+4\ns_addc_u32 s53, s53, Ltab@rel32@hi+12")
        srd_consts(52, TABSZ)
    def tload(d, voff, name, extra=0):
        off = TOFF[name] + extra
        if off < 4096: a("buffer_load_dwordx4 %s, %s, s[52:55], 0 offen offset:%d" % (V(d,4), V(voff), off))
        else: a("s_mov_b32 s3, 0x%x\nbuffer_load_dwordx4 %s, %s, s[52:55], s3 offen" % (off, V(d,4), V(voff)))
    def poll_flags(tag, voff, soff, vtag):
        mode = opt.get("pm_"+tag, "load")
        def loop(lab, atom, sl):
            a("L_%s:" % lab)
            if sl: a("s_sleep %d" % sl)
            if atom: a("v_mov_b32 v4, 0\nv_mov_b32 v5, 0\nbuffer_atomic_or_x2 v[4:5], %s, s[8:11], %s offen sc0 sc1\ns_waitcnt vmcnt(0)" % (V(voff), S(soff)))
            else: a("buffer_load_dwordx2 v[4:5], %s, s[8:11], %s offen sc1\ns_waitcnt vmcnt(0)" % (V(voff), S(soff)))
            a("v_cmp_ne_u64 vcc, v[4:5], %s" % V(vtag,2))
            a("s_sub_u32 s42, s42, 1\ns_cbranch_scc1 L_%s_out\ns_cbranch_vccnz L_%s" % (tag, lab))
        a("s_mov_b32 s42, %d" % SPIN)
        sl = opt.get("sl_"+tag, 0)
        if mode.startswith("two"):
            a("s_mov_b64 exec, 0x8000")
            loop(tag+"_1", True, sl); sl = 0
        a("s_mov_b64 exec, 0xffff")
        loop(tag, mode in ("atom","twoa"), sl)
        a("L_%s_out:\ns_mov_b64 exec, -1" % tag)
        a("L_%s_done:" % tag)
    def prepoll(tag, voff, soff, off):
        atom = opt.get("pm_"+tag) == "atom"
        a("L_%s:" % tag)
        a("s_mov_b64 exec, 1")
        a("L_%s_l:" % tag)
        if opt.get("sl_"+tag): a("s_sleep %d" % opt["sl_"+tag])
        if atom: a("v_mov_b32 v4, 0\nbuffer_atomic_or v4, off, s[8:11], %s offset:%d sc0 sc1\ns_waitcnt vmcnt(0)" % (S(soff), off))
        else: a("buffer_load_dword v4, off, s[8:11], %s offset:%d sc1\ns_waitcnt vmcnt(0)" % (S(soff), off))
        a("v_cmp_eq_u32 vcc, -1, v4")
        a("s_sub_u32 s42, s42, 1\ns_cbranch_scc1 L_%s_o\ns_cbranch_vccnz L_%s_l" % (tag, tag))
        a("L_%s_o:\ns_mov_b64 exec, -1\ns_mov_b32 s42, %d" % (tag, SPIN))

    a.raw("; @launch grid=(512,1,1) block=(512,1,1) lds=%d" % LDS_TOTAL)
    a.raw('.amdgcn_target "amdgcn-amd-amdhsa--gfx950"\n.text')
    k = NAME + "_kernel"
    a.raw(".globl %s\n.p2align 8\n.type %s,@function\n%s:" % (k,k,k))
    B0, B1, B2 = 88, 92, 96
    E0, E1, E2 = 100, 108, 116
    C_, Sn = 116, 120
    Ma, Fb, Mi, A2 = 32, 40, 50, 56
    Wa = 64; F0, F1 = 16, 80
    M1re, M1im, M3, M2, A1 = 32, 36, 40, 48, 64
    osc = opt.get("osc", "")
    stamp(0)
    a("s_load_dwordx2 s[8:9], s[0:1], 112")
    a("s_cmp_lt_u32 s2, 128\ns_cselect_b32 s3, 24, 0")
    a("s_load_dwordx2 s[4:5], s[0:1], s3")
    a("s_load_dwordx16 s[56:71], s[0:1], 32")
    a("s_setprio 3")
    a("v_readfirstlane_b32 s24, v0")
    a("v_lshlrev_b32 v14, 4, v0\nv_and_b32 v2, 15, v0\nv_bfe_u32 v3, v0, 4, 2\nv_and_b32 v1, 0x3f0, v14")
    if opt.get("pf", 1):
        a("s_getpc_b64 s[72:73]\ns_mov_b32 s74, Lcode_end-%s\ns_mov_b32 s75, 0x20000" % k)
        a("v_lshlrev_b32 v127, 7, v0\nbuffer_load_dword v127, v127, s[72:75], 0 offen")
    srd_consts(4, 0x200000)
    a("s_cbranch_scc1 L_T")
    a("s_cmp_lt_u32 s2, 256\ns_cbranch_scc1 L_A")
    a("s_cmp_ge_u32 s2, 512\ns_cbranch_scc1 L_end")
    a("s_sub_u32 s25, s2, 256")
    a("s_lshl_b32 s3, s25, 9\nv_and_b32 v6, 255, v0\nv_lshl_add_u32 v5, v6, 1, s3")
    a("s_lshl_b32 s3, s25, 2\ns_cmp_ge_u32 s24, 256")
    for i in range(6): a("v_mov_b32 %s, 0" % V(16+i))
    a("s_waitcnt lgkmcnt(0)")
    stamp(1)
    a("s_load_dword s30, s[68:69], s3\ns_load_dword s31, s[70:71], s3")
    for i in range(2): a("global_load_short_d16_hi %s, v5, %s" % (V(16+i), S(56+2*i,2)))
    a("s_cbranch_scc1 L_type2")
    for i in range(2,6): a("global_load_short_d16_hi %s, v5, %s" % (V(16+i), S(56+2*i,2)))
    a("s_branch L_type2")
    a("L_A:")
    tab_srd()
    tload(72, 1, "M1")
    a("s_lshr_b32 s24, s24, 6\ns_sub_u32 s50, s2, 128")
    a("s_lshl_b32 s31, s24, 17\ns_lshl_b32 s3, s50, 10\ns_add_u32 s31, s31, s3\ns_add_u32 s32, s31, 0x100000")
    a("s_lshl_b32 s33, s24, 10\ns_mov_b32 m0, s33")
    a("s_waitcnt lgkmcnt(0)")
    stamp(1)
    a("buffer_load_dwordx4 v1, s[4:7], s31 offen lds")
    a("s_add_u32 m0, s33, 8192")
    a("buffer_load_dwordx4 v1, s[4:7], s32 offen lds")
    a("s_branch L_A2")
    def t1_late():
        a("s_load_dwordx2 s[16:17], s[0:1], 8\ns_load_dwordx2 s[20:21], s[0:1], 16\ns_load_dwordx2 s[12:13], s[0:1], 96")
        srd_consts(8, WS_USED); srd_consts(12, 0x400000); srd_consts(16, 2048*514); srd_consts(20, 2048*514)
    def sig(vt, soff, mask=1, voff=None):
        a("s_mov_b64 exec, 0x%x" % mask)
        if voff is None: a("buffer_store_dwordx2 %s, off, s[8:11], %s sc1" % (V(vt,2), S(soff)))
        else: a("buffer_store_dwordx2 %s, %s, s[8:11], %s offen sc1" % (V(vt,2), V(voff), S(soff)))
        a("s_mov_b64 exec, -1")
    def load_w():
        for e in range(2):
            for j in range(4):
                a("buffer_load_short_d16_hi %s, v60, s[16:19], %s offen offset:%d" % (V(Wa+8*e+j), S(27+j), 32*e))
                a("buffer_load_short_d16_hi %s, v60, s[20:23], %s offen offset:%d" % (V(Wa+8*e+4+j), S(27+j), 32*e))
    a("L_T:")
    a("s_lshr_b32 s24, s24, 6")
    a("s_and_b32 s31, s2, 7\ns_lshr_b32 s32, s2, 3")
    a("s_lshr_b32 s33, s24, 1\ns_and_b32 s34, s24, 1")
    a("s_lshl_b32 s32, s32, 2\ns_add_u32 s32, s32, s33")
    a("s_lshl_b32 s35, s31, 1\ns_add_u32 s35, s35, s34")
    a("v_bfe_u32 v4, v0, 2, 4\nv_and_b32 v5, 48, v14\nv_lshl_add_u32 v6, v4, 10, v5\nv_lshl_add_u32 v27, v4, 12, v5")
    a("s_lshl_b32 s36, s32, 15\ns_lshl_b32 s3, s35, 6\ns_add_u32 s36, s36, s3\ns_add_u32 s37, s36, 0x4000")
    a("s_lshl_b32 s38, s24, 11\ns_add_u32 s38, s38, %d\ns_mov_b32 m0, s38" % TR)
    a("s_waitcnt lgkmcnt(0)")
    stamp(1)
    a("buffer_load_dwordx4 v6, s[4:7], s36 offen lds")
    a("s_add_u32 m0, s38, 1024")
    a("buffer_load_dwordx4 v6, s[4:7], s37 offen lds")
    t1_late()
    a("s_lshl_b32 s3, s31, 7\ns_add_u32 s49, s3, 0x%x" % EPB)
    a("buffer_load_dwordx2 v[124:125], off, s[8:11], s49")
    a("s_mov_b32 s3, 0x%x\nbuffer_load_dwordx2 v[12:13], off, s[8:11], s3" % EPA)
    a("s_lshl_b32 s43, s35, 17\ns_lshl_b32 s3, s32, 6\ns_add_u32 s43, s43, s3")
    a("s_add_u32 s47, s43, 0x%x\ns_add_u32 s48, s47, 0x10000" % YT)
    a("v_lshrrev_b32 v8, 2, v2\nv_lshl_add_u32 v8, v3, 3, v8\nv_and_b32 v9, 3, v2\nv_lshlrev_b32 v9, 3, v9\nv_lshl_add_u32 v8, v8, 6, v9\nv_add_u32 v26, s38, v8")
    a("v_lshrrev_b32 v25, 1, v2\nv_lshlrev_b32 v25, 13, v25\nv_lshl_add_u32 v25, v3, 5, v25\nv_and_b32 v9, 16, v14\nv_add_u32 v25, v25, v9")
    a("s_add_u32 s43, s43, s3\ns_add_u32 s43, s43, 0x%x\ns_add_u32 s44, s43, 0x10000" % UT)
    a("s_lshl_b32 s46, s35, 9\ns_lshl_b32 s3, s32, 3\ns_add_u32 s46, s46, s3\ns_add_u32 s46, s46, 0x%x" % FLB)
    a("s_waitcnt vmcnt(2) lgkmcnt(0)")
    stamp(2)
    for h in range(2):
        for p in range(2):
            a("ds_read_b64_tr_b16 %s, v26 offset:%d" % (V(B0+4*h+2*p, 2), 32*h+256*p))
    if stamps: a("s_waitcnt lgkmcnt(0)")
    a("s_waitcnt lgkmcnt(2)\nbuffer_store_dwordx4 %s, v25, s[8:11], s43 offen sc1" % V(B0,4))
    a("s_waitcnt lgkmcnt(0)\nbuffer_store_dwordx4 %s, v25, s[8:11], s44 offen sc1" % V(B1,4))
    stamp(3)
    a("s_lshl_b32 s3, s24, 4\nv_add_u32 v15, s3, v14")
    a("s_and_b32 s25, s2, 15\ns_lshr_b32 s26, s2, 4")
    a("s_lshl_b32 s74, s26, 14\ns_add_u32 s75, s74, 8192\ns_lshl_b32 s76, s26, 11\ns_add_u32 s77, s76, 1024")
    a("s_lshl_b32 s3, s26, 6\nv_lshl_add_u32 v60, v2, 1, s3")
    a("s_mov_b32 s45, 0x8000000\ns_mov_b32 s79, 0x%x" % FLA2)
    a("s_lshl_b32 s40, s35, 2\ns_lshr_b32 s3, s32, 4\ns_add_u32 s40, s40, s3\ns_lshl_b32 s40, s40, 7\ns_add_u32 s40, s40, 0x%x" % (FLB+FLB2))
    a("s_waitcnt vmcnt(0)")
    a("v_lshl_add_u64 v[124:125], v[124:125], 0, 1")
    sig(124, 46)
    stamp(4)
    a("v_lshl_add_u64 v[12:13], v[12:13], 0, 1")
    a("s_barrier")
    a("L_p2pre:")
    a("s_setprio 0")
    a("v_lshrrev_b32 v4, 1, v3\nv_and_b32 v5, 1, v3\nv_lshlrev_b32 v6, 10, v5\nv_lshl_add_u32 v6, v4, 4, v6\nv_mul_u32_u24 v6, 514, v6\nv_add_u32 v60, v60, v6")
    a("s_lshl_b32 s27, s24, 5\ns_add_u32 s27, s27, s25\ns_mul_i32 s27, s27, 514\ns_add_u32 s28, s27, %d\ns_add_u32 s29, s27, %d\ns_add_u32 s30, s27, %d" % (131584, 2*131584, 3*131584))
    for j in range(16): a("v_mov_b32 %s, 0" % V(Wa+j))
    if opt.get("wearly"): load_w()
    a("v_mul_u32_u24 v56, 528, v2\nv_lshl_add_u32 v56, v3, 4, v56\ns_lshl_b32 s3, s24, 6\nv_add_u32 v56, s3, v56")
    a("v_mul_u32_u24 v57, 528, v4\nv_and_b32 v6, 0x1f0, v1\nv_add_u32 v57, v57, v6\ns_mul_i32 s3, s24, 1056\nv_add_u32 v57, s3, v57")
    a("v_and_b32 v7, 7, v2\nv_mul_u32_u24 v58, 1040, v7\nv_lshrrev_b32 v8, 3, v2\nv_lshl_add_u32 v58, v8, 6, v58\nv_lshl_add_u32 v58, v3, 4, v58\ns_lshl_b32 s3, s24, 7\nv_add_u32 v58, s3, v58")
    a("v_cmp_eq_u32 vcc, v4, v8")
    a("v_cvt_f32_u32 v4, v7\nv_cvt_f32_u32 v5, v5\nv_mul_f32 v4, %s, v4\nv_mul_f32 v5, 4.0, v5\nv_mul_f32 v6, v5, v4" % f32(0.125))
    cs4(C_, Sn, 6, 4, 8)
    pk2(Fb, Sn, True); pk2(Fb+2, C_); pk2(Fb+4, Sn)
    for i in range(6): a("v_cndmask_b32 %s, 0, %s, vcc" % (V(Fb+i), V(Fb+i)))
    a("v_mov_b32 %s, %s\nv_mov_b32 %s, %s\nv_mov_b32 %s, %s\nv_mov_b32 %s, %s" % (V(Fb+6),V(Fb+2),V(Fb+7),V(Fb+3),V(Fb+8),V(Fb),V(Fb+9),V(Fb+1)))
    a("v_lshl_add_u32 v4, v3, 3, s24\nv_mul_u32_u24 v4, v4, v2\nv_cvt_f32_u32 v6, v4\nv_cvt_f32_u32 v4, v2\nv_mul_f32 v6, %s, v6\nv_mul_f32 v4, %s, v4" % (f32(1/128), f32(0.25)))
    cs4(C_, Sn, 6, 4, 8)
    for j in range(4):
        pk(Ma+j, C_+j, Sn+j); pk(Ma+4+j, Sn+j, C_+j, True, False)
    a("v_lshl_add_u32 v4, v2, 3, s24\nv_cvt_f32_u32 v4, v4\nv_cvt_f32_u32 v5, v3\nv_mul_f32 v4, %s, v4\nv_mul_f32 v6, 4.0, v5\nv_mul_f32 v6, v6, v4" % f32(1/128))
    cs4(C_, Sn, 6, 4, 8)
    pk2(Mi, Sn); pk2(Mi+2, C_); pk2(Mi+4, Sn, True)
    if not opt.get("wearly"): load_w()
    a("v_lshrrev_b32 v126, 2, v1\nv_lshlrev_b32 v11, 3, v2")
    a("v_mul_u32_u24 v61, %d, v3\nv_lshl_add_u32 v61, v2, 2, v61\nv_add_u32 v62, %d, v61\nv_add_u32 v63, %d, v61\nv_add_u32 v59, %d, v61" % (32*17408, 8*17408, 16*17408, 24*17408))
    a("s_mul_i32 s31, s25, %d\ns_lshl_b32 s3, s24, 10\ns_add_u32 s31, s31, s3\ns_add_u32 s74, s74, s31\ns_add_u32 s75, s75, s31" % (17*8192))
    a("s_mul_i32 s51, s24, 17408\ns_lshl_b32 s3, s25, 6\ns_add_u32 s51, s51, s3\ns_add_u32 s51, s51, 0x%x\ns_add_u32 s76, s76, s51\ns_add_u32 s77, s77, s51" % D2)
    a("s_lshl_b32 s78, s26, 10\ns_lshl_b32 s3, s24, 7\ns_add_u32 s78, s78, s3\ns_add_u32 s78, s78, 0x%x" % FLA)
    a("s_and_b32 s39, s25, %d\ns_lshl_b32 s39, s39, 13\ns_add_u32 s39, s39, s78\ns_add_u32 s78, s78, s79" % (RA-1))
    a("s_setprio 3")
    a("s_waitcnt vmcnt(16)")
    sig(12, 45)
    if smap and "t_w" in smap: a("s_waitcnt vmcnt(0)")
    stamp("t_w")
    poll_flags("h1a", 11, 39, 12)
    stamp(5)
    for j in range(4): a("buffer_load_dword %s, v126, s[8:11], s74 offen offset:%d sc1" % (V(B0+j), 256*j))
    for j in range(4): a("buffer_load_dword %s, v126, s[8:11], s75 offen offset:%d sc1" % (V(B1+j), 256*j))
    a("s_waitcnt vmcnt(4)")
    mfma(E0, B0, Ma); mfma(E0+4, B0, Ma+4)
    a("s_waitcnt vmcnt(0)")
    stamp(6)
    mfma(E1, B1, Ma); mfma(E1+4, B1, Ma+4)
    a("buffer_load_dwordx2 v[4:5], v11, s[8:11], s78 offen sc1")
    a("buffer_load_dwordx2 v[6:7], v11, s[8:11], s40 offen sc1")
    planar(B0, E0, E0+4)
    a("ds_write_b128 %s, %s" % (V(A2), V(B0,4)))
    planar(B1, E1, E1+4)
    a("ds_write_b128 %s, %s offset:%d" % (V(A2), V(B1,4), LYS))
    stamp("t_s1")
    a("s_waitcnt lgkmcnt(0)\ns_barrier")
    stamp("t_b1")
    if smap: a("s_waitcnt lgkmcnt(0)")
    for e,b in ((0,B0),(1,B1)):
        a("ds_read_b64_tr_b16 %s, %s offset:%d\nds_read_b64_tr_b16 %s, %s offset:%d" % (V(b,2), V(A2+1), LYS*e, V(b+2,2), V(A2+1), LYS*e+8))
    a("s_waitcnt lgkmcnt(2)")
    mfma(E0, Fb+2, B0); mfma(E0+4, Fb, B0)
    a("s_waitcnt lgkmcnt(0)")
    mfma(E1, Fb+2, B1); mfma(E1+4, Fb, B1)
    for E,F,w_,b in ((E0,F0,Wa,B0),(E1,F1,Wa+8,B1)):
        for j in range(4): a("v_mul_f32 %s, %s, %s\nv_mul_f32 %s, %s, %s" % (V(F+j), V(E+j), V(w_+j), V(F+4+j), V(E+j), V(w_+4+j)))
        for j in range(4): a("v_fma_f32 %s, -%s, %s, %s\nv_fmac_f32 %s, %s, %s" % (V(F+j), V(E+4+j), V(w_+4+j), V(F+j), V(F+4+j), V(E+4+j), V(w_+j)))
        planar(b, F, F+4)
        mfma(E, b, Fb+6); mfma(E+4, b, Fb+4)
    planar(B0, E0, E0+4)
    a("ds_write_b128 %s, %s offset:%d" % (V(A2+2), V(B0,4), LY2))
    planar(B1, E1, E1+4)
    a("ds_write_b128 %s, %s offset:%d" % (V(A2+2), V(B1,4), LY2+LY2S))
    stamp("t_s2")
    a("s_waitcnt lgkmcnt(0)\ns_barrier")
    stamp("t_b2")
    if smap: a("s_waitcnt lgkmcnt(0)")
    for e,b in ((0,B0),(1,B1)):
        a("ds_read_b64_tr_b16 %s, v15 offset:%d\nds_read_b64_tr_b16 %s, v15 offset:%d" % (V(b,2), LY2+LY2S*e, V(b+2,2), LY2+LY2S*e+8))
    a("s_waitcnt vmcnt(0)")
    a("v_cmp_ne_u64 vcc, v[4:5], v[12:13]")
    a("s_waitcnt lgkmcnt(2)")
    mfma(E0, Mi+2, B0); mfma(E0+4, Mi, B0)
    a("s_waitcnt lgkmcnt(0)")
    mfma(E1, Mi+2, B1); mfma(E1+4, Mi, B1)
    stamp("t_f")
    a("s_cbranch_vccz L_h1f_done")
    poll_flags("h1f", 11, 78, 12)
    a("s_nop 3")
    for b,E,so in ((B0,E0,76),(B1,E1,77)):
        for j,vo in enumerate((61,62,63,59)):
            pk(b+j, E+j, E+4+j)
            a("buffer_store_dword %s, %s, s[8:11], %s offen sc1" % (V(b+j), V(vo), S(so)))
    stamp(7)
    a("s_cmp_ge_u32 s2, 128\ns_cbranch_scc1 L_p3a")
    a("v_cmp_ne_u64 vcc, v[6:7], v[124:125]")
    a("v_add_u32 v7, s38, v1")
    a("v_bfe_u32 v9, v0, 2, 4\nv_and_b32 v10, 48, v14\nv_mul_u32_u24 v24, 80, v9\nv_lshl_add_u32 v9, v9, 11, v10\nv_lshlrev_b32 v8, 2, v2")
    a("s_mul_i32 s3, s24, 2560\nv_add3_u32 v24, v24, v10, s3\nv_mul_u32_u24 v25, 80, v2\nv_lshl_add_u32 v25, v3, 4, v25\nv_add_u32 v25, s3, v25")
    a("s_lshl_b32 s37, s32, 16\ns_lshl_b32 s3, s35, 6\ns_add_u32 s37, s37, s3\ns_add_u32 s37, s37, 1024\ns_add_u32 s36, s37, 0x8000")
    a("s_cbranch_vccz L_h1g_done")
    poll_flags("h1g", 11, 40, 124)
    stamp("t_g")
    a("s_mov_b32 s42, %d" % SPIN)
    prepoll("h2bp", 8, 48, 0)
    stamp("t_pp")
    a("L_h2b:")
    a("buffer_load_dwordx4 v[88:91], v27, s[8:11], s47 offen sc1\nbuffer_load_dwordx4 v[92:95], v27, s[8:11], s48 offen sc1")
    a("s_waitcnt vmcnt(0)")
    a("v_max3_u32 v4, v88, v89, v90\nv_max3_u32 v5, v91, v92, v93\nv_max3_u32 v4, v4, v94, v95\nv_max_u32 v4, v4, v5\nv_cmp_eq_u32 vcc, -1, v4")
    a("s_sub_u32 s42, s42, 1\ns_cbranch_scc1 L_h2b_done\ns_cbranch_vccnz L_h2b")
    a("L_h2b_done:")
    stamp(8)
    a("ds_write_b128 v7, v[88:91]\nds_write_b128 v7, v[92:95] offset:1024")
    a("s_waitcnt lgkmcnt(0)")
    for h in range(2):
        for p in range(2):
            a("ds_read_b64_tr_b16 %s, v26 offset:%d" % (V(96+4*h+2*p, 2), 32*h+256*p))
    a("s_waitcnt lgkmcnt(2)\nds_write_b128 v25, v[96:99] offset:%d" % BNC)
    a("s_waitcnt lgkmcnt(1)\nds_write_b128 v25, v[100:103] offset:%d" % (BNC+1280))
    a("ds_read_b128 v[88:91], v24 offset:%d\nds_read_b128 v[92:95], v24 offset:%d" % (BNC, BNC+1280))
    a("s_waitcnt lgkmcnt(1)\nbuffer_store_dwordx4 v[88:91], v9, s[12:15], s37 offen %s" % osc)
    a("s_waitcnt lgkmcnt(0)\nbuffer_store_dwordx4 v[92:95], v9, s[12:15], s36 offen %s" % osc)
    a("s_cmp_ge_u32 s2, 8\ns_cbranch_scc1 L_yt_c")
    a("s_barrier")
    a("s_cmp_lg_u32 s24, 0\ns_cbranch_scc1 L_yt_c")
    a("buffer_store_dwordx2 v[124:125], off, s[8:11], s49 sc1")
    a("L_yt_c:")
    if stamps: a("s_waitcnt vmcnt(0)")
    stamp(9)
    write_stamps(10, "y")
    a("s_endpgm")
    a("L_A2:")
    t1_late()
    def derive(m, m1, m2):
        a("v_xor_b32 %s, %s, %s\nv_xor_b32 %s, %s, %s" % (V(m+4), V(m+2), V(m1), V(m+5), V(m+3), V(m1)))
        a("v_xor_b32 %s, %s, %s\nv_xor_b32 %s, %s, %s" % (V(m+6), V(m), V(m2), V(m+7), V(m+1), V(m2)))
    a("s_mov_b32 s3, 0x%x\nbuffer_load_dwordx2 v[12:13], off, s[8:11], s3" % EPA)
    a("s_cmp_lg_u32 s24, 0\ns_cselect_b32 s3, 0x8000000, 0")
    a("buffer_load_dwordx4 v[76:79], v1, s[52:55], s3 offen offset:%d\nbuffer_load_dwordx4 v[80:83], v1, s[52:55], s3 offen offset:%d" % (TOFF["M2re0"], TOFF["M2im0"]))
    a("s_cselect_b32 s38, s24, 16")
    a("v_lshrrev_b32 v68, 1, v1\nv_add_u32 v68, s33, v68")
    a("s_lshl_b32 s3, s24, 4\nv_add_u32 v15, s3, v14")
    a("v_lshlrev_b32 v69, 8, v3\nv_mul_u32_u24 v4, 1040, v2\nv_add3_u32 %s, v4, v69, s3" % V(A1))
    a("v_bfe_i32 v86, v2, 3, 1\nv_and_b32 v84, 0x80008000, v86\nv_xor_b32 v85, 0x80008000, v84")
    a("v_xor_b32 v4, v2, v86\nv_and_b32 v4, 7, v4\nv_mul_u32_u24 v4, 2064, v4\nv_add_u32 v4, v4, v69")
    a("s_lshl_b32 s38, s38, 4\ns_sub_u32 s38, 1280, s38\ns_sub_u32 s39, 1152, s3\ns_add_u32 s40, s3, 128")
    a("v_cmp_gt_u32 vcc, 8, v2\nv_mov_b32 v5, s38\nv_mov_b32 v6, s3\nv_mov_b32 v7, s39\nv_mov_b32 v8, s40")
    a("v_cndmask_b32 v5, v5, v6, vcc\nv_cndmask_b32 v7, v7, v8, vcc\nv_add_u32 %s, v4, v5\nv_add_u32 %s, v4, v7" % (V(A1+1), V(A1+2)))
    a("v_and_b32 v4, 0x1cf, v0\nv_cmp_ne_u32 vcc, 0, v4\nv_cvt_f32_u32 v87, v3\nv_mul_f32 v87, 4.0, v87\nv_cndmask_b32 %s, 0, -1, vcc" % V(A1+3))
    a("v_lshl_add_u32 v4, v2, 5, s24\nv_cvt_f32_u32 v4, v4\nv_mul_f32 v4, %s, v4\nv_mul_f32 v6, v87, v4" % f32(1/512))
    cs4(C_, Sn, 6, 4, 8)
    pk2(M2, C_); pk2(M2+2, Sn)
    a("v_add_f32 v4, %s, v4\nv_mul_f32 v6, v87, v4" % f32(8/512))
    cs4(C_, Sn, 6, 4, 8)
    derive(M2, 85, 84)
    pk2(M2+8, C_); pk2(M2+10, Sn)
    a("v_lshlrev_b32 v4, 31, v2\nv_lshrrev_b32 v5, 16, v4\nv_or_b32 v4, v4, v5")
    derive(M2+8, 85, 84)
    stamp("a_pre")
    a("s_waitcnt vmcnt(5)")
    stamp("a_m1")
    a("v_mov_b32 v32, v72\nv_mov_b32 v33, v73\nv_mov_b32 v36, v74\nv_mov_b32 v37, v75")
    a("v_xor_b32 v34, v72, v4\nv_xor_b32 v35, v73, v4\nv_xor_b32 v38, v74, v4\nv_xor_b32 v39, v75, v4")
    def a_rest():
        a("v_lshl_add_u32 v4, v3, 9, s50\nv_mul_u32_u24 v4, v4, v2\nv_cvt_f32_u32 v6, v4\nv_cvt_f32_u32 v4, v2\nv_mul_f32 v6, %s, v6\nv_mul_f32 v4, %s, v4" % (f32(1/2048), f32(1/16)))
        cs4(C_, Sn, 6, 4, 8)
        pk2(M3, Sn, True); pk2(M3+2, C_); pk2(M3+4, Sn)
        a("s_mul_i32 s3, s24, 2064\nv_add_u32 v70, s3, v1")
        a("v_mul_u32_u24 v72, %d, v3\nv_lshl_add_u32 v72, v2, 2, v72\nv_add_u32 v73, %d, v72\nv_add_u32 v74, %d, v72\nv_add_u32 v75, %d, v72" % (4*17*8192, 17*8192, 2*17*8192, 3*17*8192))
        a("s_and_b32 s3, s50, 7\ns_lshl_b32 s3, s3, 4\ns_lshr_b32 s37, s50, 3\ns_add_u32 s37, s37, s3")
        a("s_lshl_b32 s46, s37, 3\ns_add_u32 s46, s46, s33\ns_add_u32 s46, s46, 0x%x" % FLA)
        a("s_lshl_b32 s37, s37, 6\ns_lshl_b32 s3, s24, 14\ns_add_u32 s43, s37, s3\ns_add_u32 s44, s43, 8192\ns_add_u32 s45, s37, %d" % (16*8192))
        a("v_mov_b32 %s, 0\nv_mov_b32 %s, 0" % (V(B2+2), V(B2+3)))
    a_rest()
    a("s_waitcnt vmcnt(3) lgkmcnt(0)")
    stamp(2)
    a("ds_read_b64_tr_b16 v[88:89], v68\nds_read_b64_tr_b16 v[90:91], v68 offset:512")
    a("ds_read_b64_tr_b16 v[92:93], v68 offset:8192\nds_read_b64_tr_b16 v[94:95], v68 offset:8704")
    if stamps: a("s_waitcnt lgkmcnt(0)")
    a("s_waitcnt lgkmcnt(2)")
    mfma(E0, B0, M1re); mfma(E0+4, B0, M1im)
    a("s_waitcnt lgkmcnt(0)")
    mfma(E1, B1, M1re); mfma(E1+4, B1, M1im)
    planar(B0, E0, E0+4)
    a("ds_write_b128 %s, %s offset:%d" % (V(A1), V(B0,4), X1))
    planar(B1, E1, E1+4)
    a("ds_write_b128 %s, %s offset:%d" % (V(A1), V(B1,4), X1+128))
    stamp("a_s1")
    a("s_cmp_lg_u32 s24, 0\ns_cbranch_scc1 L_p1_m2")
    a("s_waitcnt vmcnt(0)")
    for j in range(8): a("v_mov_b32 %s, %s" % (V(M2+j), V(76+j)))
    a("L_p1_m2:")
    a("s_waitcnt lgkmcnt(0)\ns_barrier")
    stamp("a_b1")
    if smap: a("s_waitcnt lgkmcnt(0)")
    a("ds_read_b128 %s, v15 offset:%d\nds_read_b128 %s, v15 offset:%d" % (V(B0,4), X1, V(B1,4), X1+8320))
    a("s_waitcnt lgkmcnt(1)")
    mfma(E0, B0, M2); mfma(E0+4, B0, M2+4)
    a("s_waitcnt lgkmcnt(0)")
    mfma(E1, B1, M2+8); mfma(E1+4, B1, M2+12)
    planar(B0, E0, E0+4)
    a("ds_write_b128 %s, %s offset:%d" % (V(A1+1), V(B0,4), X2))
    planar(B1, E1, E1+4)
    a("ds_write_b128 %s, %s offset:%d" % (V(A1+2), V(B1,4), X2))
    a("s_waitcnt lgkmcnt(0)\ns_barrier")
    stamp("a_b2")
    if smap: a("s_waitcnt lgkmcnt(0)")
    a("ds_read_b128 %s, v70 offset:%d\nds_read_b128 %s, v70 offset:%d" % (V(B1,4), X2+1024, V(B0,4), X2))
    a("ds_read_b64 %s, v69 offset:%d" % (V(B2,2), X2+8))
    a("s_waitcnt lgkmcnt(2)")
    mfma(E1, M3+2, B1); mfma(E1+4, M3, B1)
    a("s_waitcnt lgkmcnt(0)")
    a("v_and_b32 %s, %s, %s\nv_and_b32 %s, %s, %s" % (V(B0+2), V(B0+2), V(A1+3), V(B0+3), V(B0+3), V(A1+3)))
    mfma(E0, M3+2, B0); mfma(E0+4, M3, B0)
    a("s_cmp_lg_u32 s24, 0\ns_cbranch_scc1 L_p1_s3a")
    mfma(E2, M3+2, B2); mfma(E2+4, M3, B2)
    a("L_p1_s3a:")
    def st1(b, E, so):
        for j in range(4):
            pk(b+j, E+j, E+4+j)
            a("buffer_store_dword %s, %s, s[8:11], %s offen sc1" % (V(b+j), V(72+j), S(so)))
    st1(B1, E1, 44); st1(B0, E0, 43)
    a("s_cbranch_scc1 L_p1_s3b")
    st1(B2, E2, 45)
    a("L_p1_s3b:")
    stamp(3)
    for j in range(4): a("v_mov_b32 %s, -1" % V(28+j))
    a("s_mul_i32 s34, s50, 17408\ns_add_u32 s34, s34, 0x%x\ns_add_u32 s36, s34, 16384\ns_lshl_b32 s3, s24, 11\ns_add_u32 s35, s34, s3" % D2)
    a("v_lshlrev_b32 v10, 13, v2\nv_mov_b32 v27, 0")
    a("s_add_u32 s45, s46, 0x%x\nv_lshrrev_b32 v126, 2, v1" % FLA2)
    a("s_cmp_eq_u32 s24, 0\ns_cselect_b32 s3, s36, 0x8000000")
    a("s_waitcnt vmcnt(0)")
    a("v_lshl_add_u64 v[12:13], v[12:13], 0, 1")
    sig(12, 46, (1 << RA) - 1, 10)
    stamp(4)
    a("s_waitcnt lgkmcnt(0)\ns_barrier")
    a("buffer_store_dwordx4 v[28:31], v1, s[8:11], s35 offen sc1\nbuffer_store_dwordx4 v[28:31], v1, s[8:11], s35 offen offset:1024 sc1")
    a("buffer_store_dwordx4 v[28:31], v1, s[8:11], s3 offen sc1")
    a("s_cmp_lt_u32 s50, 16\ns_cbranch_scc0 L_p1_nx")
    a("s_mov_b32 s25, s50\ns_mov_b32 s26, 0\ns_mov_b32 s74, %d\ns_mov_b32 s75, %d\ns_mov_b32 s76, 16384\ns_mov_b32 s77, 0x8000000" % (16*8192, 16*8192))
    a("v_mov_b32 v60, 512\ns_mov_b32 s40, 0x8000000\ns_mov_b32 s79, 0x%x" % FLA2)
    a("s_branch L_p2pre")
    a("L_p1_nx:")
    a("s_waitcnt vmcnt(0)")
    stamp("a_f2")
    sig(12, 45)
    a("L_p3a:")
    M3i, M2i, M1i, A3 = 32, 40, 56, 64
    tab_srd()
    tload(A3, 14, "A3"); tload(M2i, 14, "M2iRe"); tload(M2i+8, 14, "M2iRe", 8192); tload(M1i, 1, "M1i"); tload(76, 1, "M2iIm0")
    a("s_setprio 0")
    a("v_lshl_add_u32 v4, v2, 7, s50\nv_cvt_f32_u32 v4, v4\nv_cvt_f32_u32 v5, v3\nv_mul_f32 v6, %s, v4\nv_mul_f32 v4, %s, v4\nv_mul_f32 v6, v6, v5" % (f32(1/2048), f32(4/2048)))
    cs4(C_, Sn, 6, 4, 8)
    for j in range(4):
        pk(M3i+j, C_+j, Sn+j, False, True); pk(M3i+4+j, Sn+j, C_+j)
    a("v_lshlrev_b32 v71, 6, v3\nv_lshlrev_b32 v8, 2, v2")
    a("v_lshlrev_b32 v85, 5, v2\nv_lshl_add_u32 v85, v3, 3, v85")
    a("s_lshl_b32 s43, s24, 18\ns_lshl_b32 s3, s50, 11\ns_add_u32 s43, s43, s3\ns_add_u32 s44, s43, 0x200000")
    a("v_cmp_eq_u32 s[38:39], 0, v2")
    a("v_bfe_i32 v6, v3, 1, 1\nv_and_b32 v6, 0x80008000, v6\nv_xor_b32 v7, 0x80008000, v6")
    for j in range(4): a("v_mov_b32 %s, 0" % V(B2+j))
    a("s_mov_b32 s42, %d" % SPIN)
    a("s_waitcnt vmcnt(0)")
    for j in range(4): a("v_xor_b32 %s, 0x80000000, %s" % (V(M1i+4+j), V(M1i+j)))
    derive(M2i, 7, 6); derive(M2i+8, 7, 6)
    a("s_setprio 3")
    a("s_cmp_lg_u32 s24, 0\ns_cbranch_scc1 L_h2ap")
    for j in range(4): a("v_mov_b32 %s, %s" % (V(M2i+4+j), V(76+j)))
    stamp("a_p3pre")
    prepoll("h2ap", 8, 35, 1984)
    stamp("a_pp")
    a("L_h2a:")
    for j in range(8): a("buffer_load_dword %s, v126, s[8:11], s35 offen offset:%d sc1" % (V(B0+j), 256*j))
    a("s_cmp_lg_u32 s24, 0\ns_cbranch_scc1 L_h2a_w")
    for j in range(4): a("buffer_load_dword %s, v71, s[8:11], s36 offen offset:%d sc1" % (V(B2+j), 256*j))
    a("L_h2a_w:\ns_waitcnt vmcnt(0)")
    a("v_max3_u32 v4, v88, v89, v90\nv_max3_u32 v5, v91, v92, v93\nv_max3_u32 v6, v94, v95, v96\nv_max3_u32 v7, v97, v98, v99")
    a("v_max3_u32 v4, v4, v5, v6\nv_max_u32 v4, v4, v7\nv_cmp_eq_u32 vcc, -1, v4")
    a("s_sub_u32 s42, s42, 1\ns_cbranch_scc1 L_h2a_done\ns_cbranch_vccnz L_h2a")
    a("L_h2a_done:")
    stamp(8)
    mfma(E1, M3i, B1); mfma(E1+4, M3i+4, B1)
    mfma(E0, M3i, B0); mfma(E0+4, M3i+4, B0)
    mfma(E2, M3i, B2)
    planar(B1, E1, E1+4)
    a("ds_write_b128 %s, %s offset:1280" % (V(A3), V(B1,4)))
    planar(B0, E0, E0+4)
    a("s_cmp_lg_u32 s24, 0\ns_cbranch_scc1 L_p3_a")
    pk2(B2, E2)
    a("v_cndmask_b32 %s, %s, %s, s[38:39]\nv_cndmask_b32 %s, %s, %s, s[38:39]" % (V(B0+2), V(B0+2), V(B2), V(B0+3), V(B0+3), V(B2+1)))
    a("L_p3_a:")
    a("ds_write_b128 %s, %s" % (V(A3), V(B0,4)))
    a("s_waitcnt lgkmcnt(0)\ns_barrier")
    stamp("a_3b1")
    if smap: a("s_waitcnt lgkmcnt(0)")
    for p,b in ((1,B0),(2,B1)):
        a("ds_read_b64_tr_b16 %s, %s\nds_read_b64_tr_b16 %s, %s offset:8" % (V(b,2), V(A3+p), V(b+2,2), V(A3+p)))
    a("s_waitcnt lgkmcnt(2)")
    mfma(E0, M2i, B0); mfma(E0+4, M2i+4, B0)
    a("s_waitcnt lgkmcnt(0)")
    mfma(E1, M2i+8, B1); mfma(E1+4, M2i+12, B1)
    planar(B0, E0, E0+4)
    a("ds_write_b128 %s, %s" % (V(A3+3), V(B0,4)))
    planar(B1, E1, E1+4)
    a("ds_write_b128 %s, %s offset:512" % (V(A3+3), V(B1,4)))
    a("s_waitcnt lgkmcnt(0)\ns_barrier")
    stamp("a_3b2")
    if smap: a("s_waitcnt lgkmcnt(0)")
    for e,b in ((0,B0),(1,B1)):
        a("ds_read_b64_tr_b16 %s, v15 offset:%d\nds_read_b64_tr_b16 %s, v15 offset:%d" % (V(b,2), X1I+8320*e, V(b+2,2), X1I+8320*e+8))
    a("s_waitcnt lgkmcnt(2)")
    mfma(E0, B0, M1i); mfma(E0+4, B0, M1i+4)
    a("s_waitcnt lgkmcnt(0)")
    mfma(E1, B1, M1i); mfma(E1+4, B1, M1i+4)
    planar(B0, E0, E0+4)
    a("buffer_store_dwordx2 %s, v85, s[12:15], s43 offen %s\nbuffer_store_dwordx2 %s, v85, s[12:15], s43 offen offset:512 %s" % (V(B0,2), osc, V(B0+2,2), osc))
    planar(B1, E1, E1+4)
    a("buffer_store_dwordx2 %s, v85, s[12:15], s44 offen %s\nbuffer_store_dwordx2 %s, v85, s[12:15], s44 offen offset:512 %s" % (V(B1,2), osc, V(B1+2,2), osc))
    stamp("a_3st")
    a("s_or_b32 s3, s50, s24\ns_cmp_lg_u32 s3, 0\ns_cbranch_scc1 L_p3_c")
    a("s_mov_b32 s3, 0x%x\nbuffer_store_dwordx2 v[12:13], off, s[8:11], s3 sc1" % EPA)
    a("L_p3_c:")
    if stamps: a("s_waitcnt vmcnt(0)")
    stamp(9)
    write_stamps(10, "a")
    a("s_endpgm")

    a("L_type2:")
    K1, K2, GA = 24, 28, 32
    a("s_setprio 1")
    srd_consts(8, WS_USED)
    a("s_lshr_b32 s24, s24, 6")
    a("s_bfe_u32 s26, s24, 0x10001\ns_mul_i32 s27, s26, %d\ns_add_u32 s27, s27, %d\ns_mul_i32 s28, s26, %d" % (CCH, CP, USTR))
    a("s_and_b32 s29, s24, 1\ns_lshr_b32 s32, s24, 2\ns_lshl_b32 s3, s32, 1\ns_add_u32 s29, s29, s3")
    a("v_and_b32 v4, 127, v0\nv_lshl_add_u32 %s, v4, 2, s27" % V(K1))
    a("v_mul_u32_u24 v4, %d, v2\nv_lshl_add_u32 v4, v3, 4, v4\nv_add_u32 %s, s27, v4" % (TP, V(K1+1)))
    a("s_mul_i32 s3, s29, %d\ns_add_u32 s3, s3, %d\nv_add_u32 %s, s3, %s" % (16*TP, 16*TP, V(K1+2), V(K1+1)))
    a("s_lshl_b32 s3, s29, 10\ns_add_u32 s3, s3, s28\ns_add_u32 s3, s3, %d\nv_lshlrev_b32 v4, 2, v2\nv_lshl_add_u32 v4, v3, 8, v4\nv_add_u32 %s, s3, v4" % (UPAD, V(K1+3)))
    a("v_and_b32 v4, 3, v2\nv_mul_u32_u24 v4, %d, v4\nv_lshrrev_b32 v10, 2, v2\nv_sub_u32 v10, v3, v10\nv_lshl_add_u32 v4, v10, 4, v4\ns_add_u32 s3, s27, %d\nv_add_u32 %s, s3, v4" % (CSTR, 2*(2040-256*7)-64, V(K2)))
    a("v_and_b32 v7, 1, v2\nv_lshrrev_b32 v4, 1, v2\nv_lshlrev_b32 v4, 6, v4\nv_lshl_add_u32 v4, v3, 4, v4\nv_mul_u32_u24 v10, %d, v7\ns_add_u32 s3, s28, %d\nv_add3_u32 %s, v4, v10, s3\nv_lshl_add_u32 %s, v7, 3, v4" % (UCP, UPAD-64, V(K2+1), V(K2+2)))
    a("s_mul_i32 s3, s32, %d\ns_add_u32 s3, s3, %d\nv_lshl_add_u32 %s, v6, 4, s3" % (CCH, CP, V(K2+3)))
    a("v_mul_u32_u24 v4, %d, v7\nv_lshrrev_b32 v47, 1, v0\nv_lshl_add_u32 v15, v47, 4, v4" % USTR)
    for j in range(4): a("v_mov_b32 %s, 0" % V(120+j))
    a("v_cmp_gt_u32 vcc, 72, v0\ns_and_saveexec_b64 s[40:41], vcc\nds_write_b128 v15, v[120:123]\nds_write_b128 v15, v[120:123] offset:%d\ns_mov_b64 exec, -1" % UCP)
    a("s_lshr_b32 s3, s25, 5\ns_lshl_b32 s3, s3, 7\ns_add_u32 s46, s3, 0x%x" % EPB)
    a("s_lshl_b32 s44, s25, 13\ns_add_u32 s45, s44, 0x%x\ns_add_u32 s44, s44, 0x%x" % (UT, YT))
    a("s_lshr_b32 s39, s25, 4\ns_lshl_b32 s39, s39, 9\ns_lshl_b32 s3, s24, 6\ns_add_u32 s39, s39, s3\ns_add_u32 s39, s39, 0x%x\nv_and_b32 v22, 7, v2\nv_lshlrev_b32 v22, 3, v22" % FLB)
    tab_srd()
    a("s_waitcnt lgkmcnt(0)")
    a("s_lshl_b32 s3, s26, 4\ns_lshr_b32 s30, s30, s3\ns_lshl_b32 s30, s30, 16\ns_lshl_b32 s3, s32, 4\ns_lshr_b32 s31, s31, s3\ns_lshl_b32 s31, s31, 16")
    a("v_mov_b32 v46, %s\nv_mul_f32 v46, s30, v46\nv_exp_f32 v46, v46\nv_cvt_pk_bf16_f32 v46, v46, v46\nv_and_b32 v46, 0xffff0000, v46" % f32(1.4426950408889634))
    a("s_cmp_ge_u32 s24, 4")
    a("s_waitcnt vmcnt(0)")
    stamp(2)
    a("v_mul_f32 v44, v46, v16\nv_mul_f32 v45, v46, v17\nv_mul_f32 v44, %s, v44\nv_mul_f32 v45, 0.15915494, v45" % f32(1.4426950408889634))
    a("buffer_load_dwordx2 v[12:13], off, s[8:11], s46")
    tload(114, 14, "G")
    a("v_lshrrev_b32 v4, 1, v14\ns_mov_b32 s3, 0x%x\nbuffer_load_dwordx2 v[118:119], v4, s[52:55], s3 offen" % TOFF["G2"])
    def direct(d, p):
        a("v_mul_f32 v4, %s, v44\nv_mul_f32 v5, %s, v45\nv_exp_f32 v4, v4\nv_fract_f32 v5, v5\nv_cos_f32 %s, v5\nv_sin_f32 %s, v5" % (f32(p), f32(p), V(d), V(d+1)))
        a("v_pk_mul_f32 %s, %s, v[4:5] op_sel_hi:[1,0]" % (V(d,2), V(d,2)))
    def cmul1(z, x, y): a("v_pk_mul_f32 %s, %s, %s op_sel:[0,0] op_sel_hi:[0,1]" % (V(z,2), V(x,2), V(y,2)))
    def cmul2(z, x, y): a("v_pk_fma_f32 %s, %s, %s, %s op_sel:[1,1,0] op_sel_hi:[1,0,1] neg_lo:[1,0,0]" % (V(z,2), V(x,2), V(y,2), V(z,2)))
    def cmuls(ops):
        for z,x,y in ops: cmul1(z,x,y)
        for z,x,y in ops: cmul2(z,x,y)
    tcount = [0]
    def put(rows, neg=False):
        ts = []
        for row, r in rows:
            t = 4 + (tcount[0] % 8); tcount[0] += 1; ts.append(t)
            pk(t, r, r+1, False, neg)
        for (row, r), t in zip(rows, ts):
            a("ds_write_b32 %s, %s offset:%d" % (V(K1), V(t), row*TP))
    a("s_cbranch_scc1 L_kg1")
    e8, e32, e128, e256 = 48, 50, 52, 54
    direct(e8, 8.0); direct(e128, 128.0); direct(96, 1024.0)
    EE = 64
    a("v_pk_mul_f32 v[18:19], v[18:19], v[46:47] op_sel_hi:[1,0]")
    cmuls([(EE, 20, 18), (56, e8, e8), (e256, e128, e128), (98, 96, e128)])
    cmuls([(EE+2, EE, e8), (EE+4, EE, 56), (e32, 56, 56), (100, 96, e256), (102, 98, e256)])
    cmuls([(EE+6, EE+2, 56), (104, 100, e256), (106, 102, e256)])
    put([(48+i, 96+2*i) for i in range(4)])
    for blk in range(1,4):
        ops = [(EE+8*blk+2*i, EE+8*(blk-1)+2*i, e32) for i in range(4)]
        if blk == 1: ops += [(108, 104, e256), (110, 106, e256)]
        if blk == 2: ops += [(112, 108, e256)]
        cmuls(ops)
        put([(4*(blk-1)+i, EE+8*(blk-1)+2*i) for i in range(4)], True)
    put([(12+i, EE+24+2*i) for i in range(4)], True)
    put([(52+i, 104+2*i) for i in range(5)])
    a("s_branch L_kg2")
    a("L_kg1:")
    LO = 48
    BL = 64; TM = 80
    direct(LO+2, 1.0); direct(BL+2, 128.0)
    a("v_mov_b32 v4, 0x3f80\nds_write_b32 %s, v4 offset:%d" % (V(K1), 16*TP))
    cmuls([(LO+4, LO+2, LO+2), (BL+4, BL+2, BL+2)])
    cmuls([(LO+6, LO+4, LO+2), (LO+8, LO+4, LO+4), (BL+6, BL+4, BL+2), (BL+8, BL+4, BL+4)])
    cmuls([(LO+10, LO+8, LO+2), (LO+12, LO+8, LO+4), (LO+14, LO+8, LO+6), (BL+10, BL+8, BL+2), (BL+12, BL+8, BL+4), (BL+14, BL+8, BL+6)])
    put([(16+kx, LO+2*kx) for kx in range(1,8)])
    cmuls([(TM+2*kx, LO+2*kx, BL+2) for kx in range(1,8)])
    put([(24, BL+2), (32, BL+4), (36, BL+6), (40, BL+8), (42, BL+10), (44, BL+12), (46, BL+14)])
    cmuls([(TM+16+2*i, LO+4*(1+i%3), BL+4+2*(i//3)) for i in range(6)])
    put([(24+kx, TM+2*kx) for kx in range(1,8)])
    cmuls([(TM+2*i, LO+8, BL+8+2*i) for i in range(4)])
    put([(33+(i%3)+4*(i//3), TM+16+2*i) for i in range(6)])
    put([(41+2*i, TM+2*i) for i in range(4)])
    a("L_kg2:")
    a("s_waitcnt vmcnt(0)")
    a("buffer_load_dwordx2 v[16:17], v22, s[8:11], s39 offen sc1")
    for i in range(6):
        a("v_and_b32 %s, 0xffff, %s" % (V(GA+2*i), V(114+i)))
        if i < 5: a("v_lshrrev_b32 %s, 16, %s" % (V(GA+2*i+1), V(114+i)))
    a("v_lshl_add_u64 v[12:13], v[12:13], 0, 1")
    a("s_waitcnt lgkmcnt(0)\ns_barrier")
    stamp(3)
    if stamps: a("s_waitcnt lgkmcnt(0)")
    a("s_and_b32 s3, s24, 5\ns_cmp_eq_u32 s3, 5\ns_cbranch_scc1 L_kg3")
    for ks in range(8):
        a("ds_read_b128 %s, %s offset:%d\nds_read_b128 %s, %s offset:%d" % (V(48+8*ks,4), V(K1+2), 64*ks, V(52+8*ks,4), V(K1+1), 64*ks))
    for ks in range(8):
        a("s_waitcnt lgkmcnt(%d)" % (14-2*ks))
        mfma(112, 48+8*ks, 52+8*ks, "0" if ks == 0 else 112)
    for j in range(4): a("ds_write_b32 %s, %s offset:%d" % (V(K1+3), V(112+j), 64*j))
    a("L_kg3:")
    a("s_waitcnt vmcnt(0)")
    a("v_cmp_ne_u64 vcc, v[16:17], v[12:13]")
    a("s_mov_b32 s33, 0\ns_cbranch_vccnz L_kg3b")
    a("buffer_load_dwordx4 v[16:19], v14, s[8:11], s45 offen sc1\ns_mov_b32 s33, 1")
    a("L_kg3b:")
    a("s_waitcnt lgkmcnt(0)\ns_barrier")
    stamp("c_kf")
    for i in range(11): a("ds_read_b32 %s, %s" % (V(80+i), V(GA+i)))
    a("v_and_b32 v6, 255, v0\nv_cmp_eq_u32 vcc, 255, v6\nv_mov_b32 v23, s31\nv_cndmask_b32 v23, 0, v23, vcc")
    a("v_cmp_lt_u32 vcc, 252, v6\ns_and_saveexec_b64 s[40:41], vcc\ns_cbranch_execz L_kg4")
    for s_ in range(4): a("ds_write_b128 %s, v[120:123] offset:%d" % (V(K2+3), s_*CSTR+48))
    a("L_kg4:\ns_mov_b64 exec, -1")
    a("s_lshl_b32 s3, s26, 12\ns_add_u32 s44, s44, s3")
    a("s_waitcnt lgkmcnt(0)")
    a("v_add_f32 v87, v87, v23")
    for d in range(4):
        for kx in range(4): pk(48+4*d+kx, 80+d+2*kx, 80+d+2*kx+1)
        a("ds_write_b128 %s, %s offset:%d" % (V(K2+3), V(48+4*d,4), (3-d)*CSTR))
    stamp(4)
    a("s_setprio 2")
    a("s_cmp_lg_u32 s33, 0\ns_cbranch_scc1 L_uok")
    poll_flags("h1b", 22, 39, 12)
    a("buffer_load_dwordx4 v[16:19], v14, s[8:11], s45 offen sc1")
    a("L_uok:")
    stamp(5)
    a("s_barrier")
    a("s_mov_b32 s42, 8\ns_waitcnt vmcnt(0)")
    stamp(6)
    a("ds_write_b128 v15, v[16:19] offset:%d" % (UCP+UPAD))
    a("ds_write_b64 v15, v[16:17] offset:%d\nds_write_b64 v15, v[18:19] offset:%d" % (UPAD+8, UPAD+16))
    a("v_cmp_gt_u32 vcc, 2, v0\ns_and_saveexec_b64 s[40:41], vcc\nds_write_b64 v15, v[120:121] offset:%d\ns_mov_b64 exec, -1" % UPAD)
    ACC = 32; FR = 48
    for j in range(16): a("v_mov_b32 %s, 0" % V(ACC+j))
    a("s_waitcnt lgkmcnt(0)\ns_barrier")
    stamp("c_b")
    if smap: a("s_waitcnt lgkmcnt(0)")
    a("s_cmp_ge_u32 s24, 4\ns_cbranch_scc1 L_fchk")
    a("s_bitcmp1_b32 s24, 0\ns_cbranch_scc1 L_cv1")
    def conv(tag, tiles, seq):
        n = len(seq)
        keys = []
        for _,x,y in seq:
            for kx in (x,y):
                if kx not in keys: keys.append(kx)
        reg = {kx: FR+4*i for i,kx in enumerate(keys)}
        assert FR+4*len(keys) <= 120
        last = {}; first = {}
        for i,(_,x,y) in enumerate(seq):
            for kx in (x,y):
                last[kx] = i; first.setdefault(kx, i)
        used = {n-1}; gap = {}
        for kx in sorted(keys, key=lambda q: (first[q]+n, last[q])):
            gq = last[kx]
            while gq % n in used and len(used) < n: gq += 1
            if first[kx] + n - gq < 7: gq = last[kx]
            used.add(gq % n); gap[kx] = gq
        free = [i for i in range(n-1) if i not in {gq % n for gq in gap.values()}]
        dec = {"A": (free + [3])[0], "B": (free[1:] + [9])[0]}
        def rd(kx, rel):
            if kx[0] == "A": a("ds_read_b128 %s, %s offset:%d" % (V(reg[kx],4), V(K2), (7-kx[1])*512 + rel))
            else: a("ds_read_b128 %s, %s offset:%d" % (V(reg[kx],4), V(K2+1), kx[1]*512 + rel))
        order = sorted(keys, key=lambda q: (gap[q] % n, keys.index(q)))
        for kx in order:
            if gap[kx] < n: rd(kx, 64)
        a("L_cvl%s:" % tag)
        WG_ = opt.get("waitgroup", 4)
        for i,(ti,x,y) in enumerate(seq):
            if i % WG_ == 0:
                need = [kx for ii in range(i, min(i+WG_, n)) for kx in seq[ii][1:] if first[kx] == ii]
                if need:
                    def age(kx):
                        g0 = gap[kx] - n
                        assert g0 < i
                        cnt = 0
                        for q in order:
                            for gg in ((gap[q] % n,) if gap[q] >= n else (gap[q] - n, gap[q])):
                                if gg < i and (gg > g0 or (gg == g0 and order.index(q) > order.index(kx))): cnt += 1
                        return cnt
                    a("s_waitcnt lgkmcnt(%d)" % min(min(age(kx) for kx in need), 15))
            mfma(ACC+4*ti, reg[x], reg[y], ACC+4*ti)
            for kx in order:
                if gap[kx] % n == i:
                    rel = (64 if gap[kx] >= n else 0) + (64 if i > dec[kx[0]] else 0)
                    rd(kx, rel)
            for kk,rg in (("A",K2),("B",K2+1)):
                if dec[kk] == i: a("v_subrev_u32 %s, 64, %s" % (V(rg), V(rg)))
            if i == 5: a("s_sub_u32 s42, s42, 1")
            if i == 6: a("s_cmp_lg_u32 s42, 0")
        a("s_cbranch_scc1 L_cvl%s" % tag)
        a("s_barrier")
        stamp(7)
        for ti,e in reversed(list(enumerate(tiles))):
            pk2(4+2*ti, ACC+4*ti)
            a("buffer_store_dwordx2 %s, %s, s[8:11], s44 offen offset:%d sc1" % (V(4+2*ti,2), V(K2+2), e*512))
        if stamps: a("s_waitcnt vmcnt(0)")
        stamp(8)
    seq0 = [(0,("A",0),("B",7)), (1,("A",0),("B",6)), (2,("A",0),("B",1,"x")), (3,("A",0),("B",0,"x")),
            (0,("A",1),("B",6)), (1,("A",1),("B",5)), (2,("A",1),("B",0,"x"))]
    for m in range(2,8):
        seq0.append((0,("A",m),("B",7-m)))
        if m < 7: seq0.append((1,("A",m),("B",6-m)))
    conv("0", [7,6,1,0], seq0)
    write_stamps(9, "c")
    a("s_endpgm")
    a("L_cv1:")
    seq1 = []
    for m in range(6):
        for ti,e in enumerate([5,4,3,2]):
            if m <= e: seq1.append((ti,("A",m),("B",e-m)))
    conv("1", [5,4,3,2], seq1)
    if opt.get("stampwave",0) & 1: write_stamps(9, "d")
    a("s_endpgm")
    a("L_fchk:")
    for j in range(4): a("v_mov_b32 %s, -1" % V(116+j))
    a("s_add_u32 s45, s45, 0x%x\ns_sub_u32 s44, s45, 4096" % (YT-UT))
    a("buffer_store_dwordx4 v[116:119], v14, s[8:11], s44 offen sc1\nbuffer_store_dwordx4 v[116:119], v14, s[8:11], s45 offen sc1")
    a("s_lshr_b32 s3, s25, 4\ns_lshl_b32 s3, s3, 2\ns_add_u32 s3, s3, s24\ns_lshl_b32 s3, s3, 7\ns_and_b32 s33, s25, 15\ns_lshl_b32 s33, s33, 3\ns_add_u32 s3, s3, s33\ns_add_u32 s3, s3, 0x%x" % (FLB+FLB2-512))
    a("s_waitcnt vmcnt(0)")
    sig(12, 3)
    a("s_barrier")
    a("L_end:\ns_endpgm\nLcode_end:")
    a.raw(""".section .rodata,"a"
.p2align 6
.amdhsa_kernel %s
  .amdhsa_next_free_vgpr 128
  .amdhsa_next_free_sgpr %d
  .amdhsa_accum_offset 128
  .amdhsa_group_segment_fixed_size 0
  .amdhsa_kernarg_size 120
  .amdhsa_user_sgpr_count 2
  .amdhsa_user_sgpr_kernarg_segment_ptr 1
  .amdhsa_system_sgpr_workgroup_id_x 1
.end_amdhsa_kernel""" % (k, 100 if stamps else 80))
    a.raw(".p2align 8\nLtab:")
    flat = np.concatenate(TAB)
    for i in range(0, flat.size, 16):
        a.raw(".long " + ",".join("0x%x" % x for x in flat[i:i+16]))
    return a
def t2only(s):
    return s.replace("L_A:\n","L_A:\n    s_endpgm\n",1).replace("L_T:\n","L_T:\n    s_endpgm\n",1).replace("s_mov_b32 s42, %d" % SPIN,"s_mov_b32 s42, 0")
if __name__ == "__main__":
    a = gen(False); open("k.s","w").write(a.text()); print("instructions", a.ninst, "table bytes", TABSZ, "src", len(a.text()))
    a = gen(True); open("k_st.s","w").write(a.text())
    for p in sys.argv[1:]:
        a = gen(True, (p[0], int(p[1:]))); open("k_pr_%s.s" % p,"w").write(a.text())
```

```python
import sys, struct
import numpy as np
from asmlib import Asm
NAME = "concat_heads__spectral_gfnet__ssm_conv_s4__prompt"
def f32(x): return "0x%08x" % struct.unpack("<I", struct.pack("<f", x))[0]
def V(a, n=1): return "v%d" % a if n == 1 else "v[%d:%d]" % (a, a+n-1)
def S(a, n=1): return "s%d" % a if n == 1 else "s[%d:%d]" % (a, a+n-1)
def bf(x):
    x = np.asarray(x, np.float64); x = np.where(np.abs(x) < 1e-12, 0.0, x)
    u = x.astype(np.float32).view(np.uint32)
    return ((u + 0x7fff + ((u >> 16) & 1)) >> 16).astype(np.uint32)
def frag(vals):
    b = bf(vals); return (b[..., 0::2] | (b[..., 1::2] << 16)).astype(np.uint32)

D1 = 0x000000; D2 = 0x240000; UT = 0x480000; YT = 0x680000
FLA = 0x880000; FLA2 = 0x20000; FLB = 0x8A8000; FLB2 = 0x2000; EPA = 0x8B0000; EPB = 0x8B0080
WS_USED = 0x8C0000
STAMP_OFF = 0xC800000
SPIN = 100000
RAW = 0; X1 = 16384; X2 = 33792; LY = 0; LYS = 16*528; LY2 = 3*LYS; LY2S = 8*1040; TR = 50432
X2I = X2; X1I = X2I + 20480; BNC = 0
UPAD = 576; UCP = UPAD + 4096 + 32; USTR = 2*UCP; CP = 2*USTR; CSTR = 4160; TP = 544; CCH = 57*TP
LDS_TOTAL = CP + 2*CCH
assert LDS_TOTAL <= 81920 and UCP % 64 == 32
assert LY2 + 3*LY2S <= TR and X1I + 16*1040 <= LDS_TOTAL

def gen(stamps=False, probe=None, opt=None):
    opt = opt or {}
    RA = opt.get('RA', 2)
    opt.setdefault('pm_h1a', 'atom'); opt.setdefault('g_early', 0); opt.setdefault('pm_h1b', 'atom'); opt.setdefault('pm_h1g', 'atom')
    a = Asm()
    if probe is not None: stamps = True
    ST = 80
    smap = opt.get("smap")
    def stamp(i):
        if smap is not None: i = smap.get(i)
        elif not isinstance(i, int): i = None
        if stamps and i is not None: a("s_memrealtime %s" % S(ST+2*i, 2))
    def write_stamps(n, tag):
        if not stamps: return
        a("s_waitcnt lgkmcnt(0)")
        if probe is not None:
            role, idx = probe
            if role != tag: return
            a("s_add_u32 s56, s%d, 3000" % (ST+2*idx))
            a("Lpr_%s:\ns_memrealtime s[58:59]\ns_waitcnt lgkmcnt(0)\ns_sub_u32 s57, s58, s56\ns_cmp_lt_i32 s57, 0\ns_cbranch_scc1 Lpr_%s" % (tag, tag))
            return
        sw = opt.get("stampwave", 0)
        a("v_cmp_eq_u32 vcc, %d, v0\ns_and_saveexec_b64 s[58:59], vcc\ns_cbranch_execz Lst_%s" % (64*sw, tag))
        a("s_mov_b32 s10, 0x10000000")
        a("s_lshl_b32 s57, s2, 7\ns_add_u32 s57, s57, 0x%x\nv_mov_b32 v100, s57" % STAMP_OFF)
        for i in range(n):
            a("v_mov_b32 v102, s%d\nv_mov_b32 v103, s%d" % (ST+2*i, ST+1+2*i))
            a("buffer_store_dwordx2 v[102:103], v100, s[8:11], 0 offen offset:%d\ns_nop 1" % (8*i))
        a("Lst_%s:" % tag)
    def cs4(c, s, f0, step, t):
        a("v_add_f32 %s, %s, %s" % (V(t), V(f0), V(step)))
        a("v_fma_f32 %s, 2.0, %s, %s" % (V(t+1), V(step), V(f0)))
        a("v_fma_f32 %s, 2.0, %s, %s" % (V(t+2), V(step), V(t)))
        src = [f0, t, t+1, t+2]
        for j in range(4):
            a("v_cos_f32 %s, %s" % (V(c+j), V(src[j])))
            a("v_sin_f32 %s, %s" % (V(s+j), V(src[j])))
    def pk(d, x, y, nx=False, ny=False):
        a("v_cvt_pk_bf16_f32 %s, %s%s, %s%s" % (V(d), "-" if nx else "", V(x), "-" if ny else "", V(y)))
    def pk2(d, x, neg=False):
        pk(d, x, x+1, neg, neg); pk(d+1, x+2, x+3, neg, neg)
    def planar(d, re, im): pk2(d, re); pk2(d+2, im)
    def inter(d, re, im):
        for j in range(4): pk(d+j, re+j, im+j)
    def mfma(d, x, y, c="0"):
        a("v_mfma_f32_16x16x32_bf16 %s, %s, %s, %s" % (V(d,4), V(x,4), V(y,4), c if c == "0" else V(c,4)))
    def srd_consts(d, nbytes):
        a("s_mov_b32 %s, 0x%x\ns_mov_b32 %s, 0x20000" % (S(d+2), nbytes, S(d+3)))
    def tab_srd():
        a("s_getpc_b64 s[52:53]\ns_add_u32 s52, s52, Ltab@rel32@lo+4\ns_addc_u32 s53, s53, Ltab@rel32@hi+12")
        srd_consts(52, TABSZ)
    def tload(d, voff, name, extra=0):
        off = TOFF[name] + extra
        if off < 4096: a("buffer_load_dwordx4 %s, %s, s[52:55], 0 offen offset:%d" % (V(d,4), V(voff), off))
        else: a("s_mov_b32 s3, 0x%x\nbuffer_load_dwordx4 %s, %s, s[52:55], s3 offen" % (off, V(d,4), V(voff)))
    def poll_flags(tag, voff, soff, vtag):
        mode = opt.get("pm_"+tag, "load")
        def loop(lab, atom, sl):
            a("L_%s:" % lab)
            if sl: a("s_sleep %d" % sl)
            if atom: a("v_mov_b32 v4, 0\nv_mov_b32 v5, 0\nbuffer_atomic_or_x2 v[4:5], %s, s[8:11], %s offen sc0 sc1\ns_waitcnt vmcnt(0)" % (V(voff), S(soff)))
            else: a("buffer_load_dwordx2 v[4:5], %s, s[8:11], %s offen sc1\ns_waitcnt vmcnt(0)" % (V(voff), S(soff)))
            a("v_cmp_ne_u64 vcc, v[4:5], %s" % V(vtag,2))
            a("s_sub_u32 s42, s42, 1\ns_cbranch_scc1 L_%s_out\ns_cbranch_vccnz L_%s" % (tag, lab))
        a("s_mov_b32 s42, %d" % SPIN)
        sl = opt.get("sl_"+tag, 0)
        if mode.startswith("two"):
            a("s_mov_b64 exec, 0x8000")
            loop(tag+"_1", True, sl); sl = 0
        a("s_mov_b64 exec, 0xffff")
        loop(tag, mode in ("atom","twoa"), sl)
        a("L_%s_out:\ns_mov_b64 exec, -1" % tag)
        a("L_%s_done:" % tag)
    def prepoll(tag, voff, soff, off):
        mode = opt.get("pm_"+tag, "load")
        a("L_%s:" % tag)
        if mode == "none": return
        allp = mode.startswith("all")
        lead = opt.get("lead_"+tag)
        if lead: a("s_cmp_lg_u32 s24, 0\ns_cbranch_scc1 L_%s_o" % tag)
        a("s_mov_b64 exec, %s" % ("0xffffffff" if allp else "1"))
        a("L_%s_l:" % tag)
        if opt.get("sl_"+tag): a("s_sleep %d" % opt["sl_"+tag])
        ad = "%s, s[8:11], %s offen" % (V(voff), S(soff)) if allp else "off, s[8:11], %s offset:%d" % (S(soff), off)
        if mode in ("atom","alla"): a("v_mov_b32 v4, 0\nbuffer_atomic_or v4, %s sc0 sc1\ns_waitcnt vmcnt(0)" % ad)
        else: a("buffer_load_dword v4, %s sc1\ns_waitcnt vmcnt(0)" % ad)
        a("v_cmp_eq_u32 vcc, -1, v4")
        a("s_sub_u32 s42, s42, 1\ns_cbranch_scc1 L_%s_o\ns_cbranch_vccnz L_%s_l" % (tag, tag))
        a("L_%s_o:\ns_mov_b64 exec, -1\ns_mov_b32 s42, %d" % (tag, SPIN))
        if lead: a("s_barrier")

    a.raw("; @launch grid=(512,1,1) block=(512,1,1) lds=%d" % LDS_TOTAL)
    a.raw('.amdgcn_target "amdgcn-amd-amdhsa--gfx950"\n.text')
    k = NAME + "_kernel"
    a.raw(".globl %s\n.p2align 8\n.type %s,@function\n%s:" % (k,k,k))
    B0, B1, B2 = 88, 92, 96
    E0, E1, E2 = 100, 108, 116
    C_, Sn = 116, 120
    Ma, Fb, Mi, A2 = 32, 40, 50, 56
    Wa = 64; F0, F1 = 16, 80
    M1re, M1im, M3, M2, A1 = 32, 36, 40, 48, 64
    osc = opt.get("osc", "")
    W3 = 16
    def t1_late():
        a("s_load_dwordx2 s[12:13], s[0:1], 96")
        srd_consts(8, WS_USED); srd_consts(12, 0x400000)
    def sig(vt, soff, mask=1, voff=None):
        a("s_mov_b64 exec, 0x%x" % mask)
        if voff is None: a("buffer_store_dwordx2 %s, off, s[8:11], %s sc1" % (V(vt,2), S(soff)))
        else: a("buffer_store_dwordx2 %s, %s, s[8:11], %s offen sc1" % (V(vt,2), V(voff), S(soff)))
        a("s_mov_b64 exec, -1")
    def derive(m, m1, m2):
        a("v_xor_b32 %s, %s, %s\nv_xor_b32 %s, %s, %s" % (V(m+4), V(m+2), V(m1), V(m+5), V(m+3), V(m1)))
        a("v_xor_b32 %s, %s, %s\nv_xor_b32 %s, %s, %s" % (V(m+6), V(m), V(m2), V(m+7), V(m+1), V(m2)))
    def poll12(tag, loads, cond):
        a("L_%s:" % tag)
        if opt.get("sl_"+tag): a("s_sleep %d" % opt["sl_"+tag])
        loads(0); loads(1)
        a("%s\ns_cbranch_scc0 L_%s_w" % (cond, tag))
        loads(2)
        a("L_%s_w:\ns_waitcnt vmcnt(0)" % tag)
        a("v_max3_u32 v4, v88, v89, v90\nv_max3_u32 v5, v91, v92, v93\nv_max3_u32 v6, v94, v95, v96\nv_max3_u32 v7, v97, v98, v99")
        a("v_max3_u32 v4, v4, v5, v6\nv_max_u32 v4, v4, v7\nv_cmp_eq_u32 vcc, -1, v4")
        a("s_sub_u32 s42, s42, 1\ns_cbranch_scc1 L_%s_done\ns_cbranch_vccnz L_%s" % (tag, tag))
        a("L_%s_done:" % tag)
    def prefetch():
        if not opt.get("pf", 1): return
        a("s_getpc_b64 s[72:73]\nLpf%d:\ns_and_b32 s74, s2, 0x78\ns_add_u32 s74, s74, s24\ns_lshl_b32 s74, s74, 7\ns_min_u32 s74, s74, Lcode_end-%s-4" % (npf[0], k))
        a("s_sub_u32 s72, s72, Lpf%d-%s\ns_subb_u32 s73, s73, 0\ns_load_dword s75, s[72:73], s74" % (npf[0], k))
        npf[0] += 1
    npf = [0]
    stamp(0)
    a("s_load_dwordx2 s[8:9], s[0:1], 112")
    if opt.get("swap", 1): a("s_xor_b32 s2, s2, 256")
    a("s_cmp_lt_u32 s2, 128\ns_cselect_b32 s3, 24, 0")
    a("s_load_dwordx2 s[4:5], s[0:1], s3")
    a("s_load_dwordx16 s[56:71], s[0:1], 32")
    a("s_setprio 3")
    a("v_readfirstlane_b32 s24, v0")
    a("v_lshlrev_b32 v14, 4, v0\nv_and_b32 v2, 15, v0\nv_bfe_u32 v3, v0, 4, 2\nv_and_b32 v1, 0x3f0, v14")
    srd_consts(4, 0x200000)
    a("s_cbranch_scc1 L_T")
    a("s_cmp_lt_u32 s2, 256\ns_cbranch_scc1 L_A")
    a("s_cmp_ge_u32 s2, 512\ns_cbranch_scc1 L_end")
    a("s_sub_u32 s25, s2, 256")
    a("s_lshl_b32 s3, s25, 9\nv_and_b32 v6, 255, v0\nv_lshl_add_u32 v5, v6, 1, s3")
    a("s_lshl_b32 s3, s25, 2\ns_cmp_ge_u32 s24, 256")
    for i in range(6): a("v_mov_b32 %s, 0" % V(16+i))
    a("s_waitcnt lgkmcnt(0)")
    stamp(1)
    a("s_load_dword s30, s[68:69], s3\ns_load_dword s31, s[70:71], s3")
    for i in range(2): a("global_load_short_d16_hi %s, v5, %s" % (V(16+i), S(56+2*i,2)))
    a("s_cbranch_scc1 L_type2")
    for i in range(2,6): a("global_load_short_d16_hi %s, v5, %s" % (V(16+i), S(56+2*i,2)))
    a("s_branch L_type2")
    a("L_A:")
    a("s_lshr_b32 s24, s24, 6\ns_sub_u32 s50, s2, 128")
    a("s_lshl_b32 s31, s24, 17\ns_lshl_b32 s3, s50, 10\ns_add_u32 s31, s31, s3\ns_add_u32 s32, s31, 0x100000")
    a("s_lshl_b32 s33, s24, 10\ns_mov_b32 m0, s33")
    a("s_cmp_lg_u32 s24, 0\ns_cselect_b32 s41, 0x8000000, 0\ns_cselect_b32 s38, s24, 16")
    srd_consts(8, WS_USED)
    a("s_sub_u32 s26, 7, s24")
    a("s_and_b32 s3, s50, 7\ns_lshl_b32 s3, s3, 4\ns_lshr_b32 s37, s50, 3\ns_add_u32 s37, s37, s3")
    a("s_lshl_b32 s47, s37, 3\ns_lshl_b32 s3, s26, 10\ns_add_u32 s46, s47, s3\ns_add_u32 s46, s46, 0x%x\ns_add_u32 s47, s47, 0x%x" % (FLA, FLA+FLA2))
    a("s_lshl_b32 s37, s37, 6\ns_lshl_b32 s3, s26, 14\ns_add_u32 s43, s37, s3\ns_add_u32 s44, s43, 8192\ns_add_u32 s45, s44, 8192\ns_add_u32 s45, s45, s41")
    a("s_mul_i32 s34, s50, 17408\ns_add_u32 s34, s34, 0x%x\ns_add_u32 s36, s34, 16384\ns_lshl_b32 s3, s26, 11\ns_add_u32 s35, s34, s3\ns_add_u32 s48, s36, s41" % D2)
    for j in range(4): a("v_mov_b32 %s, -1" % V(28+j))
    a("v_cvt_f32_u32 v71, v2\nv_cvt_f32_u32 v87, v3\nv_mul_f32 v4, %s, v71\nv_mul_f32 v87, 4.0, v87\nv_mul_f32 v6, v87, v4" % f32(1/32))
    cs4(C_, Sn, 6, 4, 8)
    a("v_cmp_eq_u32 s[52:53], 0, v2\nv_mov_b32 v76, 0xbf803f80")
    a("v_lshlrev_b32 v4, 31, v2\nv_lshrrev_b32 v5, 16, v4\nv_or_b32 v4, v4, v5")
    pk2(M1re, C_); pk2(M1im, Sn, True)
    a("v_cndmask_b32 v36, v36, v76, s[52:53]\nv_cndmask_b32 v37, v37, v76, s[52:53]")
    a("v_xor_b32 v34, v32, v4\nv_xor_b32 v35, v33, v4\nv_xor_b32 v38, v36, v4\nv_xor_b32 v39, v37, v4")
    a("s_waitcnt lgkmcnt(0)")
    stamp(1)
    a("buffer_load_dwordx4 v1, s[4:7], s31 offen lds")
    a("s_add_u32 m0, s33, 8192")
    a("buffer_load_dwordx4 v1, s[4:7], s32 offen lds")
    a("s_mov_b32 s3, 0x%x\nbuffer_load_dwordx2 v[12:13], off, s[8:11], s3" % EPA)
    prefetch()
    a("v_lshrrev_b32 v68, 1, v1\nv_add_u32 v68, s33, v68")
    a("s_lshl_b32 s3, s24, 4\nv_add_u32 v15, s3, v14")
    a("v_lshlrev_b32 v69, 8, v3\nv_mul_u32_u24 v4, 1040, v2\nv_add3_u32 %s, v4, v69, s3" % V(A1))
    a("v_bfe_i32 v86, v2, 3, 1\nv_and_b32 v84, 0x80008000, v86\nv_xor_b32 v85, 0x80008000, v84")
    a("v_xor_b32 v4, v2, v86\nv_and_b32 v4, 7, v4\nv_mul_u32_u24 v4, 2064, v4\nv_add_u32 v4, v4, v69")
    a("s_lshl_b32 s38, s38, 4\ns_sub_u32 s38, 1280, s38\ns_sub_u32 s39, 1152, s3\ns_add_u32 s40, s3, 128")
    a("v_cmp_gt_u32 vcc, 8, v2\nv_mov_b32 v5, s38\nv_mov_b32 v6, s3\nv_mov_b32 v7, s39\nv_mov_b32 v8, s40")
    a("v_cndmask_b32 v5, v5, v6, vcc\nv_cndmask_b32 v7, v7, v8, vcc\nv_add_u32 %s, v4, v5\nv_add_u32 %s, v4, v7" % (V(A1+1), V(A1+2)))
    a("v_and_b32 v4, 0x1cf, v0\nv_cmp_ne_u32 vcc, 0x1c0, v4\nv_cndmask_b32 %s, 0, -1, vcc" % V(A1+3))
    EARLY = 0
    FP = opt.get("fillpos", 1)
    def fill2():
        a("buffer_store_dwordx4 v[28:31], v1, s[8:11], s35 offen sc1\nbuffer_store_dwordx4 v[28:31], v1, s[8:11], s35 offen offset:1024 sc1")
        a("buffer_store_dwordx4 v[28:31], v1, s[8:11], s48 offen sc1")
    if FP == 0: fill2()
    a("v_lshl_add_u32 v5, v2, 5, s24\nv_add_u32 v4, 8, v5\nv_cvt_f32_u32 v4, v4\nv_mul_f32 v4, %s, v4\nv_mul_f32 v6, v87, v4" % f32(1/512))
    cs4(C_, Sn, 6, 4, 8)
    a("s_cmp_eq_u32 s24, 0\ns_cselect_b32 s3, 16, 0\nv_and_b32 v4, s3, v86\nv_add_u32 v4, v4, v5\nv_cvt_f32_u32 v4, v4\nv_mul_f32 v4, %s, v4\nv_mul_f32 v6, v87, v4" % f32(1/512))
    pk2(M2+8, C_); pk2(M2+10, Sn)
    cs4(C_, Sn, 6, 4, 8)
    derive(M2+8, 85, 84)
    pk2(M2, C_); pk2(M2+2, Sn)
    derive(M2, 85, 84)
    stamp("a_pre")
    a("s_cbranch_scc0 L_p1_m2")
    a("v_cndmask_b32 %s, %s, v76, s[52:53]\nv_cndmask_b32 %s, %s, v76, s[52:53]" % (V(M2+4), V(M2+4), V(M2+5), V(M2+5)))
    for m in (M2, M2+4):
        for j in range(2):
            a("v_and_b32 %s, %s, v86\nv_xor_b32 %s, %s, %s" % (V(m+2+j), V(m+j), V(m+j), V(m+j), V(m+2+j)))
    a("L_p1_m2:")
    a("v_lshl_add_u32 v4, v3, 9, s50\nv_mul_u32_u24 v4, v4, v2\nv_cvt_f32_u32 v6, v4\nv_mul_f32 v6, %s, v6\nv_mul_f32 v4, %s, v71" % (f32(1/2048), f32(1/16)))
    cs4(C_, Sn, 6, 4, 8)
    pk2(M3, Sn, True); pk2(M3+2, C_); pk2(M3+4, Sn)
    a("s_mul_i32 s3, s26, 2064\nv_add_u32 v70, s3, v1")
    a("v_mul_u32_u24 v72, %d, v3\nv_lshl_add_u32 v72, v2, 2, v72\nv_add_u32 v73, %d, v72\nv_add_u32 v74, %d, v72\nv_add_u32 v75, %d, v72" % (4*17*8192, 17*8192, 2*17*8192, 3*17*8192))
    a("v_mov_b32 %s, 0\nv_mov_b32 %s, 0\nv_lshlrev_b32 v10, 13, v2" % (V(B2+2), V(B2+3)))
    a("s_waitcnt vmcnt(%d) lgkmcnt(0)" % (4 if FP == 0 else 1))
    stamp(2)
    a("ds_read_b64_tr_b16 v[88:89], v68\nds_read_b64_tr_b16 v[90:91], v68 offset:512")
    a("ds_read_b64_tr_b16 v[92:93], v68 offset:8192\nds_read_b64_tr_b16 v[94:95], v68 offset:8704")
    if FP == 1: fill2()
    if stamps: a("s_waitcnt lgkmcnt(0)")
    a("s_waitcnt lgkmcnt(2)")
    mfma(E0, B0, M1re); mfma(E0+4, B0, M1im)
    a("s_waitcnt lgkmcnt(0)")
    mfma(E1, B1, M1re); mfma(E1+4, B1, M1im)
    planar(B0, E0, E0+4)
    a("ds_write_b128 %s, %s offset:%d" % (V(A1), V(B0,4), X1))
    planar(B1, E1, E1+4)
    a("ds_write_b128 %s, %s offset:%d" % (V(A1), V(B1,4), X1+128))
    stamp("a_s1")
    def sig_a1():
        a("s_waitcnt vmcnt(0)")
        a("v_lshl_add_u64 v[12:13], v[12:13], 0, 1")
        sig(12, 46, (1 << RA) - 1, 10)
        stamp(4)
    if EARLY == 1: sig_a1()
    a("s_waitcnt lgkmcnt(0)\ns_barrier")
    stamp("a_b1")
    if smap: a("s_waitcnt lgkmcnt(0)")
    a("ds_read_b128 %s, v15 offset:%d\nds_read_b128 %s, v15 offset:%d" % (V(B0,4), X1, V(B1,4), X1+8320))
    if FP == 2: fill2()
    a("s_waitcnt lgkmcnt(1)")
    mfma(E0, B0, M2); mfma(E0+4, B0, M2+4)
    a("s_waitcnt lgkmcnt(0)")
    mfma(E1, B1, M2+8); mfma(E1+4, B1, M2+12)
    planar(B0, E0, E0+4)
    a("ds_write_b128 %s, %s offset:%d" % (V(A1+1), V(B0,4), X2))
    planar(B1, E1, E1+4)
    a("ds_write_b128 %s, %s offset:%d" % (V(A1+2), V(B1,4), X2))
    if EARLY == 2: sig_a1()
    a("s_waitcnt lgkmcnt(0)\ns_barrier")
    stamp("a_b2")
    if smap: a("s_waitcnt lgkmcnt(0)")
    a("ds_read_b128 %s, v70 offset:%d\nds_read_b128 %s, v70 offset:%d" % (V(B1,4), X2+1024, V(B0,4), X2))
    a("ds_read_b64 %s, v69 offset:%d" % (V(B2,2), X2+8))
    a("s_waitcnt lgkmcnt(2)")
    mfma(E1, M3+2, B1); mfma(E1+4, M3, B1)
    a("s_waitcnt lgkmcnt(0)")
    a("v_and_b32 %s, %s, %s\nv_and_b32 %s, %s, %s" % (V(B0+2), V(B0+2), V(A1+3), V(B0+3), V(B0+3), V(A1+3)))
    mfma(E0, M3+2, B0); mfma(E0+4, M3, B0)
    a("s_cmp_lg_u32 s24, 0\ns_cbranch_scc1 L_p1_s3a")
    mfma(E2, M3+2, B2); mfma(E2+4, M3, B2)
    a("L_p1_s3a:")
    def st1(b, E, so):
        for j in range(4):
            pk(b+j, E+j, E+4+j)
            a("buffer_store_dword %s, %s, s[8:11], %s offen sc1" % (V(b+j), V(72+j), S(so)))
    st1(B1, E1, 44); st1(B0, E0, 43)
    a("s_cbranch_scc1 L_p1_s3b")
    st1(B2, E2, 45)
    a("L_p1_s3b:")
    stamp(3)
    a("s_lshl_b32 s3, s24, 11\ns_add_u32 s35, s34, s3")
    sig_a1()
    a("s_barrier")
    M3i, M2i, M1i, A3 = 32, 40, 56, 64
    a("s_setprio 0")
    a("s_load_dwordx2 s[12:13], s[0:1], 96")
    srd_consts(12, 0x400000)
    a("v_lshl_add_u32 v4, v2, 7, s50\nv_cvt_f32_u32 v4, v4\nv_cvt_f32_u32 v5, v3\nv_mul_f32 v6, %s, v4\nv_mul_f32 v4, %s, v4\nv_mul_f32 v6, v6, v5" % (f32(1/2048), f32(4/2048)))
    cs4(C_, Sn, 6, 4, 8)
    for j in range(4):
        pk(M3i+j, C_+j, Sn+j, False, True); pk(M3i+4+j, Sn+j, C_+j)
    a("v_lshrrev_b32 v126, 2, v1")
    a("v_lshlrev_b32 v83, 5, v2\nv_lshl_add_u32 v83, v3, 3, v83")
    a("s_lshl_b32 s43, s24, 18\ns_lshl_b32 s3, s50, 11\ns_add_u32 s43, s43, s3\ns_add_u32 s44, s43, 0x200000")
    a("v_bfe_i32 v86, v3, 1, 1\nv_and_b32 v84, 0x80008000, v86\nv_xor_b32 v85, 0x80008000, v84")
    for j in range(4): a("v_mov_b32 %s, 0" % V(B2+j))
    a("v_lshlrev_b32 v5, 4, v3\nv_mul_u32_u24 v4, 80, v2\ns_mul_i32 s3, s24, 2560\ns_add_u32 s3, s3, %d\nv_add3_u32 %s, v4, v5, s3" % (X2I, V(A3)))
    a("v_mul_u32_u24 v4, 1040, v2\ns_lshl_b32 s3, s24, 6\ns_add_u32 s3, s3, %d\nv_add3_u32 %s, v4, v5, s3" % (X1I, V(A3+3)))
    a("s_cmp_eq_u32 s24, 0\ns_cselect_b32 s3, 16, 0\nv_and_b32 v82, s3, v86")
    a("v_bfe_u32 v4, v0, 2, 4\nv_lshl_add_u32 v4, v4, 5, s24\nv_add_u32 v5, 8, v4\nv_add_u32 v4, v4, v82")
    a("v_and_b32 v6, 48, v14\nv_add_u32 v6, %d, v6\nv_and_b32 v7, 513, v86" % X2I)
    for p,r in ((1,4),(2,5)):
        a("v_xor_b32 %s, %s, v86\nv_add_u32 %s, %s, v7\nv_mul_u32_u24 %s, 80, %s\nv_add_u32 %s, %s, v6" % (V(r),V(r),V(r),V(r),V(r),V(r),V(A3+p),V(r)))
    a("v_lshl_add_u32 v5, v3, 7, s24\nv_add_u32 v7, 8, v5\nv_mul_u32_u24 v7, v7, v2\nv_cvt_f32_u32 v6, v7\nv_mul_f32 v6, %s, v6\nv_mul_f32 v4, %s, v71" % (f32(1/512), f32(1/16)))
    cs4(C_, Sn, 6, 4, 8)
    a("v_add_u32 v7, v5, v82\nv_mul_u32_u24 v7, v7, v2\nv_cvt_f32_u32 v6, v7\nv_mul_f32 v6, %s, v6" % f32(1/512))
    def m2i(m):
        pk2(m, C_); pk2(m+4, Sn)
        a("v_xor_b32 %s, %s, v85\nv_xor_b32 %s, %s, v85\nv_xor_b32 %s, %s, v84\nv_xor_b32 %s, %s, v84" % (V(m+2),V(m+4),V(m+3),V(m+5),V(m+6),V(m),V(m+7),V(m+1)))
    m2i(M2i+8)
    cs4(C_, Sn, 6, 4, 8)
    a("v_lshlrev_b32 v7, 31, v2\nv_cmp_eq_u32 vcc, 0, v3")
    a("s_cbranch_scc0 L_p3_m2")
    a("v_xor_b32 v5, %s, v7\nv_mov_b32 v4, 0.5\nv_cndmask_b32 %s, %s, v4, vcc\nv_cndmask_b32 %s, %s, v5, vcc" % (f32(-0.5), V(C_), V(C_), V(Sn), V(Sn)))
    a("L_p3_m2:")
    m2i(M2i)
    a("s_cbranch_scc0 L_p3_m3")
    for j in range(4): a("v_and_b32 %s, %s, v86\nv_xor_b32 %s, %s, %s" % (V(M2i+4+j), V(M2i+j), V(M2i+j), V(M2i+j), V(M2i+4+j)))
    a("L_p3_m3:")
    a("v_mul_f32 v4, %s, v71\nv_mul_f32 v6, v87, v4" % f32(1/32))
    cs4(C_, Sn, 6, 4, 8)
    a("v_xor_b32 v5, -1.0, v7\nv_cndmask_b32 %s, %s, v5, vcc" % (V(Sn), V(Sn)))
    for j in range(8): a("v_mul_f32 %s, %s, %s" % (V(C_+j), f32(2.0**-19), V(C_+j)))
    pk2(M1i, C_); pk2(M1i+2, Sn, True)
    for j in range(4): a("v_xor_b32 %s, 0x80000000, %s" % (V(M1i+4+j), V(M1i+j)))
    a("s_mov_b32 s42, %d" % SPIN)
    a("s_setprio 3\ns_waitcnt lgkmcnt(0)")
    stamp(6)
    a("s_add_u32 s37, s35, 1024\ns_cmp_eq_u32 s24, 0\ns_cselect_b32 s37, s36, s37")
    prepoll("h2ap", 8, 37, 960)
    stamp(7)
    def ld3(b):
        for j in range(4): a("buffer_load_dword %s, v126, s[8:11], %s offen offset:%d sc1" % (V(B0+4*b+j), S(36 if b == 2 else 35), 256*j + (1024 if b == 1 else 0)))
    poll12("h2a", ld3, "s_cmp_eq_u32 s24, 0")
    stamp(8)
    mfma(E1, M3i, B1); mfma(E1+4, M3i+4, B1)
    mfma(E0, M3i, B0); mfma(E0+4, M3i+4, B0)
    mfma(E2, M3i, B2)
    planar(B1, E1, E1+4)
    a("ds_write_b128 %s, %s offset:1280" % (V(A3), V(B1,4)))
    planar(B0, E0, E0+4)
    a("s_cmp_lg_u32 s24, 0\ns_cbranch_scc1 L_p3_a")
    pk2(B2, E2)
    a("v_cndmask_b32 %s, %s, %s, s[52:53]\nv_cndmask_b32 %s, %s, %s, s[52:53]" % (V(B0+2), V(B0+2), V(B2), V(B0+3), V(B0+3), V(B2+1)))
    a("L_p3_a:")
    a("ds_write_b128 %s, %s" % (V(A3), V(B0,4)))
    a("s_waitcnt lgkmcnt(0)\ns_barrier")
    stamp("a_3b1")
    if smap: a("s_waitcnt lgkmcnt(0)")
    for p,b in ((1,B0),(2,B1)):
        a("ds_read_b64_tr_b16 %s, %s\nds_read_b64_tr_b16 %s, %s offset:8" % (V(b,2), V(A3+p), V(b+2,2), V(A3+p)))
    a("s_waitcnt lgkmcnt(2)")
    mfma(E0, M2i, B0); mfma(E0+4, M2i+4, B0)
    a("s_waitcnt lgkmcnt(0)")
    mfma(E1, M2i+8, B1); mfma(E1+4, M2i+12, B1)
    planar(B0, E0, E0+4)
    a("ds_write_b128 %s, %s" % (V(A3+3), V(B0,4)))
    planar(B1, E1, E1+4)
    a("ds_write_b128 %s, %s offset:512" % (V(A3+3), V(B1,4)))
    a("s_waitcnt lgkmcnt(0)\ns_barrier")
    stamp("a_3b2")
    if smap: a("s_waitcnt lgkmcnt(0)")
    for e,b in ((0,B0),(1,B1)):
        a("ds_read_b64_tr_b16 %s, v15 offset:%d\nds_read_b64_tr_b16 %s, v15 offset:%d" % (V(b,2), X1I+8320*e, V(b+2,2), X1I+8320*e+8))
    a("s_waitcnt lgkmcnt(2)")
    mfma(E0, B0, M1i); mfma(E0+4, B0, M1i+4)
    a("s_waitcnt lgkmcnt(0)")
    mfma(E1, B1, M1i); mfma(E1+4, B1, M1i+4)
    planar(B0, E0, E0+4)
    a("buffer_store_dwordx2 %s, v83, s[12:15], s43 offen %s\nbuffer_store_dwordx2 %s, v83, s[12:15], s43 offen offset:512 %s" % (V(B0,2), osc, V(B0+2,2), osc))
    planar(B1, E1, E1+4)
    a("buffer_store_dwordx2 %s, v83, s[12:15], s44 offen %s\nbuffer_store_dwordx2 %s, v83, s[12:15], s44 offen offset:512 %s" % (V(B1,2), osc, V(B1+2,2), osc))
    stamp("a_3st")
    a("s_or_b32 s3, s50, s24\ns_cmp_lg_u32 s3, 0\ns_cbranch_scc1 L_p3_c")
    a("s_mov_b32 s3, 0x%x\nbuffer_store_dwordx2 v[12:13], off, s[8:11], s3 sc1" % EPA)
    a("L_p3_c:")
    if stamps: a("s_waitcnt vmcnt(0)")
    stamp(9)
    write_stamps(10, "a")
    a("s_endpgm")
    a("L_T:")
    a("s_lshr_b32 s24, s24, 6")
    a("s_and_b32 s31, s2, 7\ns_lshr_b32 s32, s2, 3")
    a("s_lshr_b32 s33, s24, 1\ns_and_b32 s34, s24, 1")
    a("s_lshl_b32 s32, s32, 2\ns_add_u32 s32, s32, s33")
    a("s_lshl_b32 s35, s31, 1\ns_add_u32 s35, s35, s34")
    a("v_bfe_u32 v4, v0, 2, 4\nv_and_b32 v5, 48, v14\nv_lshl_add_u32 v6, v4, 10, v5\nv_lshl_add_u32 v27, v4, 12, v5")
    a("s_lshl_b32 s36, s32, 15\ns_lshl_b32 s3, s35, 6\ns_add_u32 s36, s36, s3\ns_add_u32 s37, s36, 0x4000")
    a("s_lshl_b32 s38, s24, 11\ns_add_u32 s38, s38, %d\ns_mov_b32 m0, s38" % TR)
    a("s_waitcnt lgkmcnt(0)")
    stamp(1)
    a("buffer_load_dwordx4 v6, s[4:7], s36 offen lds")
    a("s_add_u32 m0, s38, 1024")
    a("buffer_load_dwordx4 v6, s[4:7], s37 offen lds")
    a("s_load_dwordx2 s[16:17], s[0:1], 8\ns_load_dwordx2 s[20:21], s[0:1], 16")
    prefetch()
    t1_late()
    srd_consts(16, 2048*514); srd_consts(20, 2048*514)
    a("s_lshl_b32 s3, s31, 7\ns_add_u32 s49, s3, 0x%x" % EPB)
    a("buffer_load_dwordx2 v[124:125], off, s[8:11], s49")
    a("s_mov_b32 s3, 0x%x\nbuffer_load_dwordx2 v[12:13], off, s[8:11], s3" % EPA)
    a("s_lshl_b32 s43, s35, 17\ns_lshl_b32 s3, s32, 6\ns_add_u32 s43, s43, s3")
    a("s_add_u32 s47, s43, 0x%x\ns_add_u32 s48, s47, 0x10000" % YT)
    a("v_lshrrev_b32 v8, 2, v2\nv_lshl_add_u32 v8, v3, 3, v8\nv_and_b32 v9, 3, v2\nv_lshlrev_b32 v9, 3, v9\nv_lshl_add_u32 v8, v8, 6, v9\nv_add_u32 v26, s38, v8")
    a("v_lshrrev_b32 v25, 1, v2\nv_lshlrev_b32 v25, 13, v25\nv_lshl_add_u32 v25, v3, 5, v25\nv_and_b32 v9, 16, v14\nv_add_u32 v25, v25, v9")
    a("s_add_u32 s43, s43, s3\ns_add_u32 s43, s43, 0x%x\ns_add_u32 s44, s43, 0x10000" % UT)
    a("s_lshl_b32 s46, s35, 9\ns_lshl_b32 s3, s32, 3\ns_add_u32 s46, s46, s3\ns_add_u32 s46, s46, 0x%x" % FLB)
    a("s_and_b32 s25, s2, 15\ns_lshr_b32 s26, s2, 4")
    def gen_ma():
        a("v_lshl_add_u32 v4, v3, 3, s24\nv_mul_u32_u24 v4, v4, v2\nv_cvt_f32_u32 v6, v4\nv_cvt_f32_u32 v4, v2\nv_mul_f32 v6, %s, v6\nv_mul_f32 v4, %s, v4" % (f32(1/128), f32(0.25)))
        cs4(C_, Sn, 6, 4, 8)
        for j in range(4):
            pk(Ma+j, C_+j, Sn+j); pk(Ma+4+j, Sn+j, C_+j, True, False)
    def gen_mi():
        a("v_lshl_add_u32 v4, v2, 3, s24\nv_cvt_f32_u32 v4, v4\nv_cvt_f32_u32 v5, v3\nv_mul_f32 v4, %s, v4\nv_mul_f32 v6, 4.0, v5\nv_mul_f32 v6, v6, v4" % f32(1/128))
        cs4(C_, Sn, 6, 4, 8)
        pk2(Mi, Sn); pk2(Mi+2, C_); pk2(Mi+4, Sn, True)
    gen_ma(); gen_mi()
    a("s_waitcnt vmcnt(2) lgkmcnt(0)")
    stamp(2)
    for h in range(2):
        for p in range(2):
            a("ds_read_b64_tr_b16 %s, v26 offset:%d" % (V(B0+4*h+2*p, 2), 32*h+256*p))
    if stamps: a("s_waitcnt lgkmcnt(0)")
    a("s_waitcnt lgkmcnt(2)\nbuffer_store_dwordx4 %s, v25, s[8:11], s43 offen sc1" % V(B0,4))
    a("s_waitcnt lgkmcnt(0)\nbuffer_store_dwordx4 %s, v25, s[8:11], s44 offen sc1" % V(B1,4))
    stamp(3)
    a("s_lshl_b32 s3, s24, 4\nv_add_u32 v15, s3, v14")
    a("v_lshrrev_b32 v4, 1, v3\nv_and_b32 v5, 1, v3\nv_lshlrev_b32 v6, 10, v5\nv_lshl_add_u32 v6, v4, 4, v6\nv_mul_u32_u24 v24, 514, v6\nv_lshl_add_u32 v60, v2, 1, v24")
    a("s_lshl_b32 s27, s24, 5\ns_add_u32 s27, s27, s25\ns_mul_i32 s27, s27, 514\ns_lshl_b32 s3, s26, 6\ns_add_u32 s27, s27, s3\ns_add_u32 s28, s27, %d\ns_add_u32 s29, s27, %d\ns_add_u32 s30, s27, %d" % (131584, 2*131584, 3*131584))
    for j in range(16): a("v_mov_b32 %s, 0" % V(Wa+j))
    for j in range(8): a("v_mov_b32 %s, 0" % V(W3+j))
    a("v_mul_u32_u24 v56, 528, v2\nv_lshl_add_u32 v56, v3, 4, v56\ns_lshl_b32 s3, s24, 6\nv_add_u32 v56, s3, v56")
    a("v_mul_u32_u24 v57, 528, v4\nv_and_b32 v6, 0x1f0, v1\nv_add_u32 v57, v57, v6\ns_mul_i32 s3, s24, 1056\nv_add_u32 v57, s3, v57")
    a("v_and_b32 v7, 7, v2\nv_mul_u32_u24 v58, 1040, v7\nv_lshrrev_b32 v8, 3, v2\nv_lshl_add_u32 v58, v8, 6, v58\nv_lshl_add_u32 v58, v3, 4, v58\ns_lshl_b32 s3, s24, 7\nv_add_u32 v58, s3, v58")
    a("v_cmp_eq_u32 vcc, v4, v8")
    a("s_waitcnt vmcnt(0)")
    a("v_lshl_add_u64 v[124:125], v[124:125], 0, 1")
    sig(124, 46)
    stamp(4)
    a("s_barrier")
    for e in range(2):
        for j in range(4):
            a("buffer_load_short_d16_hi %s, v60, s[16:19], %s offen offset:%d" % (V(Wa+8*e+j), S(27+j), 32*e))
            a("buffer_load_short_d16_hi %s, v60, s[20:23], %s offen offset:%d" % (V(Wa+8*e+4+j), S(27+j), 32*e))
    X3 = "s_cmp_eq_u32 s26, 7"
    a("%s\ns_cbranch_scc0 L_t_w" % X3)
    for j in range(4):
        a("buffer_load_short_d16_hi %s, v24, s[16:19], %s offen offset:64" % (V(W3+j), S(27+j)))
        a("buffer_load_short_d16_hi %s, v24, s[20:23], %s offen offset:64" % (V(W3+4+j), S(27+j)))
    a("L_t_w:")
    a("s_setprio 0")
    a("v_cvt_f32_u32 v4, v7\nv_cvt_f32_u32 v5, v5\nv_mul_f32 v4, %s, v4\nv_mul_f32 v5, 4.0, v5\nv_mul_f32 v6, v5, v4" % f32(0.125))
    cs4(C_, Sn, 6, 4, 8)
    pk2(Fb, Sn, True); pk2(Fb+2, C_); pk2(Fb+4, Sn)
    for i in range(6): a("v_cndmask_b32 %s, 0, %s, vcc" % (V(Fb+i), V(Fb+i)))
    a("v_mov_b32 %s, %s\nv_mov_b32 %s, %s\nv_mov_b32 %s, %s\nv_mov_b32 %s, %s" % (V(Fb+6),V(Fb+2),V(Fb+7),V(Fb+3),V(Fb+8),V(Fb),V(Fb+9),V(Fb+1)))
    a("v_lshl_add_u64 v[12:13], v[12:13], 0, 1")
    a("v_lshrrev_b32 v126, 2, v1\nv_lshlrev_b32 v11, 3, v2")
    a("v_mul_u32_u24 v61, %d, v3\nv_lshl_add_u32 v61, v2, 2, v61\nv_add_u32 v62, %d, v61\nv_add_u32 v63, %d, v61\nv_add_u32 v59, %d, v61" % (32*17408, 8*17408, 16*17408, 24*17408))
    a("s_mul_i32 s74, s25, %d\ns_lshl_b32 s3, s24, 10\ns_add_u32 s74, s74, s3\ns_lshl_b32 s3, s26, 14\ns_add_u32 s74, s74, s3\ns_add_u32 s75, s74, 8192\ns_add_u32 s76, s75, 8192" % (17*8192))
    a("s_mul_i32 s51, s24, 17408\ns_lshl_b32 s3, s25, 6\ns_add_u32 s51, s51, s3\ns_lshl_b32 s3, s26, 11\ns_add_u32 s51, s51, s3\ns_add_u32 s51, s51, 0x%x" % D2)
    a("s_lshl_b32 s78, s24, 7\ns_add_u32 s78, s78, 0x%x\ns_lshl_b32 s39, s26, 10\ns_add_u32 s39, s39, s78\ns_and_b32 s3, s25, %d\ns_lshl_b32 s3, s3, 13\ns_add_u32 s39, s39, s3\ns_add_u32 s78, s78, 0x%x" % (FLA, RA-1, FLA2))
    a("s_lshl_b32 s40, s35, 2\ns_lshr_b32 s3, s32, 4\ns_add_u32 s40, s40, s3\ns_lshl_b32 s40, s40, 7\ns_add_u32 s40, s40, 0x%x" % (FLB+FLB2))
    for j in range(4): a("v_mov_b32 %s, 0" % V(B2+j))
    a("s_setprio 3")
    if opt.get("lead_h1a"):
        a("s_cmp_lg_u32 s24, 0\ns_cbranch_scc1 L_h1l_done")
        opt["pm_h1l"] = opt["pm_h1a"]; opt["sl_h1l"] = opt.get("sl_h1l", 0)
        poll_flags("h1l", 11, 39, 12)
        a("s_barrier")
    poll_flags("h1a", 11, 39, 12)
    stamp("t_w")
    a("s_mov_b32 s42, %d" % (SPIN if EARLY else 0))
    if EARLY: prepoll("h1dp", 8, 74, 960)
    stamp(5)
    def ld2(b):
        for j in range(4): a("buffer_load_dword %s, v126, s[8:11], %s offen offset:%d sc1" % (V(B0+4*b+j), S(74+b), 256*j))
    poll12("h1d", ld2, X3)
    stamp(6)
    T2 = ((0,B0,E0,Wa),(1,B1,E1,Wa+8)); T3 = (2,B2,E2,W3)
    def third(tag, fn):
        a("%s\ns_cbranch_scc0 L_%s" % (X3, tag))
        fn(*T3)
        a("L_%s:" % tag)
    for e,b,E,w_ in T2: mfma(E, b, Ma); mfma(E+4, b, Ma+4)
    def sa2(e,b,E,w_):
        planar(b, E, E+4)
        a("ds_write_b128 %s, %s offset:%d" % (V(A2), V(b,4), LYS*e))
    for t_ in T2: sa2(*t_)
    def sa3(e,b,E,w_):
        mfma(E, b, Ma); mfma(E+4, b, Ma+4); sa2(e,b,E,w_)
    third("t3a", sa3)
    stamp("t_s1")
    a("s_waitcnt lgkmcnt(0)\ns_barrier")
    stamp("t_b1")
    if smap: a("s_waitcnt lgkmcnt(0)")
    for e,b,E,w_ in T2 + (T3,):
        a("ds_read_b64_tr_b16 %s, %s offset:%d\nds_read_b64_tr_b16 %s, %s offset:%d" % (V(b,2), V(A2+1), LYS*e, V(b+2,2), V(A2+1), LYS*e+8))
    if opt.get("g_early", 1): a("buffer_load_dwordx2 v[6:7], v11, s[8:11], s40 offen sc1")
    a("s_waitcnt lgkmcnt(4)")
    mfma(E0, Fb+2, B0); mfma(E0+4, Fb, B0)
    a("s_waitcnt lgkmcnt(2)")
    mfma(E1, Fb+2, B1); mfma(E1+4, Fb, B1)
    def sb1(e,b,E,w_):
        F = 80
        for j in range(4): a("v_mul_f32 %s, %s, %s\nv_mul_f32 %s, %s, %s" % (V(F+j), V(E+j), V(w_+j), V(F+4+j), V(E+j), V(w_+4+j)))
        for j in range(4): a("v_fma_f32 %s, -%s, %s, %s\nv_fmac_f32 %s, %s, %s" % (V(F+j), V(E+4+j), V(w_+4+j), V(F+j), V(F+4+j), V(E+4+j), V(w_+j)))
        planar(b, F, F+4)
        mfma(E, b, Fb+6); mfma(E+4, b, Fb+4)
    def sb2(e,b,E,w_):
        planar(b, E, E+4)
        a("ds_write_b128 %s, %s offset:%d" % (V(A2+2), V(b,4), LY2+LY2S*e))
    for t_ in T2: sb1(*t_)
    for t_ in T2: sb2(*t_)
    def sb3(e,b,E,w_):
        a("s_waitcnt lgkmcnt(2)")
        mfma(E, Fb+2, b); mfma(E+4, Fb, b); sb1(e,b,E,w_); sb2(e,b,E,w_)
    third("t3b", sb3)
    stamp("t_s2")
    a("s_waitcnt lgkmcnt(0)\ns_barrier")
    stamp("t_b2")
    if smap: a("s_waitcnt lgkmcnt(0)")
    for e,b,E,w_ in T2 + (T3,):
        a("ds_read_b64_tr_b16 %s, v15 offset:%d\nds_read_b64_tr_b16 %s, v15 offset:%d" % (V(b,2), LY2+LY2S*e, V(b+2,2), LY2+LY2S*e+8))
    a("s_waitcnt lgkmcnt(4)")
    mfma(E0, Mi+2, B0); mfma(E0+4, Mi, B0)
    a("s_waitcnt lgkmcnt(2)")
    mfma(E1, Mi+2, B1); mfma(E1+4, Mi, B1)
    a("s_waitcnt lgkmcnt(0)")
    mfma(E2, Mi+2, B2); mfma(E2+4, Mi, B2)
    stamp("t_f")
    a("s_waitcnt vmcnt(0)")
    def sc_(e,b,E,w_):
        for j,vo in enumerate((61,62,63,59)):
            pk(b+j, E+j, E+4+j)
            a("buffer_store_dword %s, %s, s[8:11], s51 offen offset:%d sc1" % (V(b+j), V(vo), 1024*e))
    for t_ in T2: sc_(*t_)
    third("t3c", sc_)
    stamp(7)
    a("v_cmp_ne_u64 vcc, v[6:7], v[124:125]")
    a("v_add_u32 v7, s38, v1")
    a("v_bfe_u32 v9, v0, 2, 4\nv_and_b32 v10, 48, v14\nv_mul_u32_u24 v24, 80, v9\nv_lshl_add_u32 v9, v9, 11, v10")
    a("s_mul_i32 s3, s24, 2560\nv_add3_u32 v24, v24, v10, s3\nv_mul_u32_u24 v25, 80, v2\nv_lshl_add_u32 v25, v3, 4, v25\nv_add_u32 v25, s3, v25")
    a("s_lshl_b32 s37, s32, 16\ns_lshl_b32 s3, s35, 6\ns_add_u32 s37, s37, s3\ns_add_u32 s37, s37, 1024\ns_add_u32 s36, s37, 0x8000")
    a("s_cbranch_vccz L_h1g_done")
    poll_flags("h1g", 11, 40, 124)
    stamp("t_g")
    a("s_mov_b32 s42, %d" % SPIN)
    prepoll("h2bp", 8, 47, 0)
    stamp("t_pp")
    a("L_h2b:")
    if opt.get("sl_h2b"): a("s_sleep %d" % opt["sl_h2b"])
    a("buffer_load_dwordx4 v[88:91], v27, s[8:11], s47 offen sc1\nbuffer_load_dwordx4 v[92:95], v27, s[8:11], s48 offen sc1")
    a("s_waitcnt vmcnt(0)")
    a("v_max3_u32 v4, v88, v89, v90\nv_max3_u32 v5, v91, v92, v93\nv_max3_u32 v4, v4, v94, v95\nv_max_u32 v4, v4, v5\nv_cmp_eq_u32 vcc, -1, v4")
    a("s_sub_u32 s42, s42, 1\ns_cbranch_scc1 L_h2b_done\ns_cbranch_vccnz L_h2b")
    a("L_h2b_done:")
    stamp(8)
    a("ds_write_b128 v7, v[88:91]\nds_write_b128 v7, v[92:95] offset:1024")
    if stamps: a("s_waitcnt lgkmcnt(0)")
    for h in range(2):
        for p in range(2):
            a("ds_read_b64_tr_b16 %s, v26 offset:%d" % (V(96+4*h+2*p, 2), 32*h+256*p))
    a("s_waitcnt lgkmcnt(2)\nds_write_b128 v25, v[96:99] offset:%d" % BNC)
    a("s_waitcnt lgkmcnt(1)\nds_write_b128 v25, v[100:103] offset:%d" % (BNC+1280))
    a("ds_read_b128 v[88:91], v24 offset:%d\nds_read_b128 v[92:95], v24 offset:%d" % (BNC, BNC+1280))
    a("s_waitcnt lgkmcnt(1)\nbuffer_store_dwordx4 v[88:91], v9, s[12:15], s37 offen %s" % osc)
    a("s_waitcnt lgkmcnt(0)\nbuffer_store_dwordx4 v[92:95], v9, s[12:15], s36 offen %s" % osc)
    a("s_cmp_ge_u32 s2, 8\ns_cbranch_scc1 L_yt_c")
    a("s_barrier")
    a("s_cmp_lg_u32 s24, 0\ns_cbranch_scc1 L_yt_c")
    a("buffer_store_dwordx2 v[124:125], off, s[8:11], s49 sc1")
    a("L_yt_c:")
    if stamps: a("s_waitcnt vmcnt(0)")
    stamp(9)
    write_stamps(10, "y")
    a("s_endpgm")

    a("L_type2:")
    K1, K2, GA = 24, 28, 32
    a("s_setprio 1")
    srd_consts(8, WS_USED)
    a("s_lshr_b32 s24, s24, 6")
    a("s_bfe_u32 s26, s24, 0x10001\ns_mul_i32 s27, s26, %d\ns_add_u32 s27, s27, %d\ns_mul_i32 s28, s26, %d" % (CCH, CP, USTR))
    a("s_and_b32 s29, s24, 1\ns_lshr_b32 s32, s24, 2\ns_lshl_b32 s3, s32, 1\ns_add_u32 s29, s29, s3")
    a("v_and_b32 v4, 127, v0\nv_lshl_add_u32 %s, v4, 2, s27" % V(K1))
    a("v_mul_u32_u24 v4, %d, v2\nv_lshl_add_u32 v4, v3, 4, v4\nv_add_u32 %s, s27, v4" % (TP, V(K1+1)))
    a("s_mul_i32 s3, s29, %d\ns_add_u32 s3, s3, %d\nv_add_u32 %s, s3, %s" % (16*TP, 16*TP, V(K1+2), V(K1+1)))
    a("v_and_b32 v4, 3, v2\nv_mul_u32_u24 v4, %d, v4\nv_lshrrev_b32 v10, 2, v2\nv_sub_u32 v10, v3, v10\nv_lshl_add_u32 v4, v10, 4, v4\ns_add_u32 s3, s27, %d\nv_add_u32 %s, s3, v4" % (CSTR, 2*(2040-256*7)-64, V(K2)))
    a("v_and_b32 v7, 1, v2\nv_lshrrev_b32 v4, 1, v2\nv_lshlrev_b32 v4, 6, v4\nv_lshl_add_u32 v4, v3, 4, v4\nv_mul_u32_u24 v10, %d, v7\ns_add_u32 s3, s28, %d\nv_add3_u32 %s, v4, v10, s3\nv_lshl_add_u32 %s, v7, 3, v4" % (UCP, UPAD-64, V(K2+1), V(K2+2)))
    a("s_mul_i32 s3, s32, %d\ns_add_u32 s3, s3, %d\nv_lshl_add_u32 %s, v6, 4, s3" % (CCH, CP, V(K2+3)))
    a("v_mul_u32_u24 v4, %d, v7\nv_lshrrev_b32 v47, 1, v0\nv_lshl_add_u32 v15, v47, 4, v4" % USTR)
    for j in range(4): a("v_mov_b32 %s, 0" % V(120+j))
    a("v_cmp_gt_u32 vcc, 72, v0\ns_and_saveexec_b64 s[40:41], vcc\nds_write_b128 v15, v[120:123]\nds_write_b128 v15, v[120:123] offset:%d\ns_mov_b64 exec, -1" % UCP)
    a("s_lshr_b32 s3, s25, 5\ns_lshl_b32 s3, s3, 7\ns_add_u32 s46, s3, 0x%x" % EPB)
    a("s_lshl_b32 s44, s25, 13\ns_add_u32 s45, s44, 0x%x\ns_add_u32 s44, s44, 0x%x" % (UT, YT))
    a("s_lshr_b32 s39, s25, 4\ns_lshl_b32 s39, s39, 9\ns_lshl_b32 s3, s24, 6\ns_add_u32 s39, s39, s3\ns_add_u32 s39, s39, 0x%x\nv_and_b32 v22, 7, v2\nv_lshlrev_b32 v22, 3, v22" % FLB)
    a("v_lshlrev_b32 v4, 3, v6\nv_sub_u32 v4, 2047, v4\nv_max_u32 v5, 143, v4\nv_sub_u32 v4, v4, v5\nv_cvt_f32_u32 v5, v5")
    a("s_mul_i32 s34, s32, %d\ns_add_u32 s3, s34, %d\nv_mov_b32 v9, s34\nv_lshl_add_u32 v4, v4, 2, s3" % (USTR, UPAD - 4*0x4280))
    for i in range(0, 12, 2):
        a("v_subrev_f32 v7, %s, v5\nv_subrev_f32 v8, %s, v5\nv_cvt_pk_bf16_f32 v7, v7, v8\nv_and_b32 v8, 0xffff, v7\nv_lshl_add_u32 %s, v8, 2, v4" % (f32(float(i)), f32(float(i+1)), V(GA+i)))
        if i < 10: a("v_lshrrev_b32 v7, 16, v7\nv_lshl_add_u32 %s, v7, 2, v4" % V(GA+i+1))
    a("v_cmp_eq_u32 vcc, 255, v6")
    for i in range(8,11): a("v_cndmask_b32 %s, %s, v9, vcc" % (V(GA+i), V(GA+i)))
    a("s_waitcnt lgkmcnt(0)")
    a("s_lshl_b32 s3, s26, 4\ns_lshr_b32 s30, s30, s3\ns_lshl_b32 s30, s30, 16\ns_lshl_b32 s3, s32, 4\ns_lshr_b32 s31, s31, s3\ns_lshl_b32 s31, s31, 16")
    a("v_mov_b32 v46, %s\nv_mul_f32 v46, s30, v46\nv_exp_f32 v46, v46\nv_cvt_pk_bf16_f32 v46, v46, v46\nv_and_b32 v46, 0xffff0000, v46" % f32(1.4426950408889634))
    a("s_cmp_ge_u32 s24, 4")
    a("s_waitcnt vmcnt(0)")
    stamp(2)
    a("v_mul_f32 v44, v46, v16\nv_mul_f32 v45, v46, v17\nv_mul_f32 v44, %s, v44\nv_mul_f32 v45, 0.15915494, v45" % f32(1.4426950408889634))
    a("buffer_load_dwordx2 v[12:13], off, s[8:11], s46")
    def direct(d, p):
        a("v_mul_f32 v4, %s, v44\nv_mul_f32 v5, %s, v45\nv_exp_f32 v4, v4\nv_fract_f32 v5, v5\nv_cos_f32 %s, v5\nv_sin_f32 %s, v5" % (f32(p), f32(p), V(d), V(d+1)))
        a("v_pk_mul_f32 %s, %s, v[4:5] op_sel_hi:[1,0]" % (V(d,2), V(d,2)))
    def cmul1(z, x, y): a("v_pk_mul_f32 %s, %s, %s op_sel:[0,0] op_sel_hi:[0,1]" % (V(z,2), V(x,2), V(y,2)))
    def cmul2(z, x, y): a("v_pk_fma_f32 %s, %s, %s, %s op_sel:[1,1,0] op_sel_hi:[1,0,1] neg_lo:[1,0,0]" % (V(z,2), V(x,2), V(y,2), V(z,2)))
    def cmuls(ops):
        for z,x,y in ops: cmul1(z,x,y)
        for z,x,y in ops: cmul2(z,x,y)
    tcount = [0]
    def put(rows, neg=False):
        ts = []
        for row, r in rows:
            t = 4 + (tcount[0] % 8); tcount[0] += 1; ts.append(t)
            pk(t, r, r+1, False, neg)
        for (row, r), t in zip(rows, ts):
            a("ds_write_b32 %s, %s offset:%d" % (V(K1), V(t), row*TP))
    a("s_cbranch_scc1 L_kg1")
    e8, e32, e128, e256 = 48, 50, 52, 54
    direct(e8, 8.0); direct(e128, 128.0); direct(96, 1024.0)
    EE = 64
    a("v_pk_mul_f32 v[18:19], v[18:19], v[46:47] op_sel_hi:[1,0]")
    cmuls([(EE, 20, 18), (56, e8, e8), (e256, e128, e128), (98, 96, e128)])
    cmuls([(EE+2, EE, e8), (EE+4, EE, 56), (e32, 56, 56), (100, 96, e256), (102, 98, e256)])
    cmuls([(EE+6, EE+2, 56), (104, 100, e256), (106, 102, e256)])
    put([(48+i, 96+2*i) for i in range(4)])
    for blk in range(1,4):
        ops = [(EE+8*blk+2*i, EE+8*(blk-1)+2*i, e32) for i in range(4)]
        if blk == 1: ops += [(108, 104, e256), (110, 106, e256)]
        if blk == 2: ops += [(112, 108, e256)]
        cmuls(ops)
        put([(4*(blk-1)+i, EE+8*(blk-1)+2*i) for i in range(4)], True)
    put([(12+i, EE+24+2*i) for i in range(4)], True)
    put([(52+i, 104+2*i) for i in range(5)])
    a("s_branch L_kg2")
    a("L_kg1:")
    LO = 48
    BL = 64; TM = 80
    direct(LO+2, 1.0); direct(BL+2, 128.0)
    a("v_mov_b32 v4, 0x3f80\nds_write_b32 %s, v4 offset:%d" % (V(K1), 16*TP))
    cmuls([(LO+4, LO+2, LO+2), (BL+4, BL+2, BL+2)])
    cmuls([(LO+6, LO+4, LO+2), (LO+8, LO+4, LO+4), (BL+6, BL+4, BL+2), (BL+8, BL+4, BL+4)])
    cmuls([(LO+10, LO+8, LO+2), (LO+12, LO+8, LO+4), (LO+14, LO+8, LO+6), (BL+10, BL+8, BL+2), (BL+12, BL+8, BL+4), (BL+14, BL+8, BL+6)])
    put([(16+kx, LO+2*kx) for kx in range(1,8)])
    cmuls([(TM+2*kx, LO+2*kx, BL+2) for kx in range(1,8)])
    put([(24, BL+2), (32, BL+4), (36, BL+6), (40, BL+8), (42, BL+10), (44, BL+12), (46, BL+14)])
    cmuls([(TM+16+2*i, LO+4*(1+i%3), BL+4+2*(i//3)) for i in range(6)])
    put([(24+kx, TM+2*kx) for kx in range(1,8)])
    cmuls([(TM+2*i, LO+8, BL+8+2*i) for i in range(4)])
    put([(33+(i%3)+4*(i//3), TM+16+2*i) for i in range(6)])
    put([(41+2*i, TM+2*i) for i in range(4)])
    a("L_kg2:")
    a("s_waitcnt vmcnt(0)")
    if opt.get("b_early", 1): a("buffer_load_dwordx2 v[16:17], v22, s[8:11], s39 offen sc1")
    a("v_lshl_add_u64 v[12:13], v[12:13], 0, 1")
    a("s_waitcnt lgkmcnt(0)\ns_barrier")
    stamp(3)
    if stamps: a("s_waitcnt lgkmcnt(0)")
    a("s_and_b32 s3, s24, 5\ns_cmp_eq_u32 s3, 5\ns_cbranch_scc1 L_kg3")
    for ks in range(8):
        a("ds_read_b128 %s, %s offset:%d\nds_read_b128 %s, %s offset:%d" % (V(48+8*ks,4), V(K1+2), 64*ks, V(52+8*ks,4), V(K1+1), 64*ks))
    a("s_add_u32 s35, s28, %d\ns_cmp_eq_u32 s29, 1\ns_cbranch_scc1 L_ka1\ns_cmp_eq_u32 s29, 0\ns_cbranch_scc1 L_ka0" % UPAD)
    a("v_lshlrev_b32 v4, 2, v2\nv_lshl_add_u32 v4, v3, 8, v4\nv_add_u32 v4, 2048, v4\nv_mov_b32 v5, 64\nv_mov_b32 v6, 128\ns_branch L_ka2")
    a("L_ka0:\nv_lshrrev_b32 v5, 1, v3\nv_lshlrev_b32 v4, 5, v2\nv_lshl_add_u32 v4, v5, 9, v4\nv_and_b32 v5, 1, v3\nv_lshl_add_u32 v4, v5, 4, v4\nv_mov_b32 v5, 4\nv_mov_b32 v6, 8\ns_branch L_ka2")
    a("L_ka1:\nv_lshrrev_b32 v5, 1, v3\nv_sub_u32 v4, 4, v5\nv_lshlrev_b32 v4, v4, v2\nv_lshl_add_u32 v4, v3, 8, v4\nv_add_u32 v4, 1024, v4\nv_mul_u32_u24 v6, 120, v5\nv_add_u32 v6, 8, v6\nv_mov_b32 v5, 4")
    a("L_ka2:\nv_add_u32 v4, s35, v4\nv_add_u32 v6, v4, v6\nv_add_u32 v7, v6, v5\nv_add_u32 v5, v4, v5")
    for ks in range(8):
        a("s_waitcnt lgkmcnt(%d)" % (14-2*ks))
        mfma(112, 48+8*ks, 52+8*ks, "0" if ks == 0 else 112)
    for j in range(4): a("ds_write_b32 %s, %s" % (V(4+j), V(112+j)))
    a("L_kg3:")
    a("s_waitcnt vmcnt(0)")
    a("v_cmp_ne_u64 vcc, v[16:17], v[12:13]")
    a("s_mov_b32 s33, 0\ns_cbranch_vccnz L_kg3b")
    a("buffer_load_dwordx4 v[16:19], v14, s[8:11], s45 offen sc1\ns_mov_b32 s33, 1")
    a("L_kg3b:")
    a("s_waitcnt lgkmcnt(0)\ns_barrier")
    stamp("c_kf")
    for i in range(11): a("ds_read_b32 %s, %s" % (V(80+i), V(GA+i)))
    a("v_and_b32 v6, 255, v0\nv_cmp_eq_u32 vcc, 255, v6\nv_mov_b32 v23, s31\nv_cndmask_b32 v23, 0, v23, vcc")
    a("v_cmp_lt_u32 vcc, 252, v6\ns_and_saveexec_b64 s[40:41], vcc\ns_cbranch_execz L_kg4")
    for s_ in range(4): a("ds_write_b128 %s, v[120:123] offset:%d" % (V(K2+3), s_*CSTR+48))
    a("L_kg4:\ns_mov_b64 exec, -1")
    a("s_lshl_b32 s3, s26, 12\ns_add_u32 s44, s44, s3")
    a("s_waitcnt lgkmcnt(0)")
    a("v_add_f32 v87, v87, v23")
    for d in range(4):
        for kx in range(4): pk(48+4*d+kx, 80+d+2*kx, 80+d+2*kx+1)
        a("ds_write_b128 %s, %s offset:%d" % (V(K2+3), V(48+4*d,4), (3-d)*CSTR))
    stamp(4)
    a("s_setprio 2")
    a("s_cmp_lg_u32 s33, 0\ns_cbranch_scc1 L_uok")
    poll_flags("h1b", 22, 39, 12)
    a("buffer_load_dwordx4 v[16:19], v14, s[8:11], s45 offen sc1")
    a("L_uok:")
    stamp(5)
    a("s_barrier")
    a("s_mov_b32 s42, 8\ns_waitcnt vmcnt(0)")
    stamp(6)
    a("ds_write_b128 v15, v[16:19] offset:%d" % (UCP+UPAD))
    a("ds_write_b64 v15, v[16:17] offset:%d\nds_write_b64 v15, v[18:19] offset:%d" % (UPAD+8, UPAD+16))
    a("v_cmp_gt_u32 vcc, 2, v0\ns_and_saveexec_b64 s[40:41], vcc\nds_write_b64 v15, v[120:121] offset:%d\ns_mov_b64 exec, -1" % UPAD)
    ACC = 32; FR = 48
    for j in range(16): a("v_mov_b32 %s, 0" % V(ACC+j))
    a("s_waitcnt lgkmcnt(0)\ns_barrier")
    stamp("c_b")
    if smap: a("s_waitcnt lgkmcnt(0)")
    a("s_cmp_ge_u32 s24, 4\ns_cbranch_scc1 L_fchk")
    a("s_bitcmp1_b32 s24, 0\ns_cbranch_scc1 L_cv1")
    def conv(tag, tiles, seq):
        n = len(seq)
        keys = []
        for _,x,y in seq:
            for kx in (x,y):
                if kx not in keys: keys.append(kx)
        reg = {kx: FR+4*i for i,kx in enumerate(keys)}
        assert FR+4*len(keys) <= 120
        last = {}; first = {}
        for i,(_,x,y) in enumerate(seq):
            for kx in (x,y):
                last[kx] = i; first.setdefault(kx, i)
        used = {n-1}; gap = {}
        for kx in sorted(keys, key=lambda q: (first[q]+n, last[q])):
            gq = last[kx]
            while gq % n in used and len(used) < n: gq += 1
            if first[kx] + n - gq < 7: gq = last[kx]
            used.add(gq % n); gap[kx] = gq
        free = [i for i in range(n-1) if i not in {gq % n for gq in gap.values()}]
        dec = {"A": (free + [3])[0], "B": (free[1:] + [9])[0]}
        def rd(kx, rel):
            if kx[0] == "A": a("ds_read_b128 %s, %s offset:%d" % (V(reg[kx],4), V(K2), (7-kx[1])*512 + rel))
            else: a("ds_read_b128 %s, %s offset:%d" % (V(reg[kx],4), V(K2+1), kx[1]*512 + rel))
        order = sorted(keys, key=lambda q: (gap[q] % n, keys.index(q)))
        for kx in order:
            if gap[kx] < n: rd(kx, 64)
        a("L_cvl%s:" % tag)
        WG_ = opt.get("waitgroup", 4)
        for i,(ti,x,y) in enumerate(seq):
            if i % WG_ == 0:
                need = [kx for ii in range(i, min(i+WG_, n)) for kx in seq[ii][1:] if first[kx] == ii]
                if need:
                    def age(kx):
                        g0 = gap[kx] - n
                        assert g0 < i
                        cnt = 0
                        for q in order:
                            for gg in ((gap[q] % n,) if gap[q] >= n else (gap[q] - n, gap[q])):
                                if gg < i and (gg > g0 or (gg == g0 and order.index(q) > order.index(kx))): cnt += 1
                        return cnt
                    a("s_waitcnt lgkmcnt(%d)" % min(min(age(kx) for kx in need), 15))
            mfma(ACC+4*ti, reg[x], reg[y], ACC+4*ti)
            for kx in order:
                if gap[kx] % n == i:
                    rel = (64 if gap[kx] >= n else 0) + (64 if i > dec[kx[0]] else 0)
                    rd(kx, rel)
            for kk,rg in (("A",K2),("B",K2+1)):
                if dec[kk] == i: a("v_subrev_u32 %s, 64, %s" % (V(rg), V(rg)))
            if i == 5: a("s_sub_u32 s42, s42, 1")
            if i == 6: a("s_cmp_lg_u32 s42, 0")
        a("s_cbranch_scc1 L_cvl%s" % tag)
        a("s_barrier")
        stamp(7)
        for ti,e in reversed(list(enumerate(tiles))):
            pk2(4+2*ti, ACC+4*ti)
            a("buffer_store_dwordx2 %s, %s, s[8:11], s44 offen offset:%d sc1" % (V(4+2*ti,2), V(K2+2), e*512))
        if stamps: a("s_waitcnt vmcnt(0)")
        stamp(8)
    seq0 = [(0,("A",0),("B",7)), (1,("A",0),("B",6)), (2,("A",0),("B",1,"x")), (3,("A",0),("B",0,"x")),
            (0,("A",1),("B",6)), (1,("A",1),("B",5)), (2,("A",1),("B",0,"x"))]
    for m in range(2,8):
        seq0.append((0,("A",m),("B",7-m)))
        if m < 7: seq0.append((1,("A",m),("B",6-m)))
    conv("0", [7,6,1,0], seq0)
    write_stamps(9, "c")
    a("s_endpgm")
    a("L_cv1:")
    seq1 = []
    for m in range(6):
        for ti,e in enumerate([5,4,3,2]):
            if m <= e: seq1.append((ti,("A",m),("B",e-m)))
    conv("1", [5,4,3,2], seq1)
    if opt.get("stampwave",0) & 1: write_stamps(9, "d")
    a("s_endpgm")
    a("L_fchk:")
    for j in range(4): a("v_mov_b32 %s, -1" % V(116+j))
    a("s_add_u32 s45, s45, 0x%x\ns_sub_u32 s44, s45, 4096" % (YT-UT))
    a("buffer_store_dwordx4 v[116:119], v14, s[8:11], s44 offen sc1\nbuffer_store_dwordx4 v[116:119], v14, s[8:11], s45 offen sc1")
    a("s_lshr_b32 s3, s25, 4\ns_lshl_b32 s3, s3, 2\ns_add_u32 s3, s3, s24\ns_lshl_b32 s3, s3, 7\ns_and_b32 s33, s25, 15\ns_lshl_b32 s33, s33, 3\ns_add_u32 s3, s3, s33\ns_add_u32 s3, s3, 0x%x" % (FLB+FLB2-512))
    a("s_waitcnt vmcnt(0)")
    sig(12, 3)
    a("s_barrier")
    a("L_end:\ns_endpgm\nLcode_end:")
    a.raw(""".section .rodata,"a"
.p2align 6
.amdhsa_kernel %s
  .amdhsa_next_free_vgpr 128
  .amdhsa_next_free_sgpr %d
  .amdhsa_accum_offset 128
  .amdhsa_group_segment_fixed_size 0
  .amdhsa_kernarg_size 120
  .amdhsa_user_sgpr_count 2
  .amdhsa_user_sgpr_kernarg_segment_ptr 1
  .amdhsa_system_sgpr_workgroup_id_x 1
.end_amdhsa_kernel""" % (k, 100 if stamps else 80))
    return a
def t2only(s):
    return s.replace("L_A:\n","L_A:\n    s_endpgm\n",1).replace("L_T:\n","L_T:\n    s_endpgm\n",1).replace("s_mov_b32 s42, %d" % SPIN,"s_mov_b32 s42, 0")
if __name__ == "__main__":
    a = gen(False); open("k.s","w").write(a.text()); print("instructions", a.ninst, "src", len(a.text()))
    a = gen(True); open("k_st.s","w").write(a.text())
    for p in sys.argv[1:]:
        a = gen(True, (p[0], int(p[1:]))); open("k_pr_%s.s" % p,"w").write(a.text())
```

```python
import sys, struct
import numpy as np
from asmlib import Asm
NAME = "concat_heads__spectral_gfnet__ssm_conv_s4__prompt"
def f32(x): return "0x%08x" % struct.unpack("<I", struct.pack("<f", x))[0]
def V(a, n=1): return "v%d" % a if n == 1 else "v[%d:%d]" % (a, a+n-1)
def S(a, n=1): return "s%d" % a if n == 1 else "s[%d:%d]" % (a, a+n-1)
def bf(x):
    x = np.asarray(x, np.float64); x = np.where(np.abs(x) < 1e-12, 0.0, x)
    u = x.astype(np.float32).view(np.uint32)
    return ((u + 0x7fff + ((u >> 16) & 1)) >> 16).astype(np.uint32)
def frag(vals):
    b = bf(vals); return (b[..., 0::2] | (b[..., 1::2] << 16)).astype(np.uint32)

D1 = 0x000000; D2 = 0x240000; UT = 0x480000; YT = 0x680000
FLA = 0x880000; FLA2 = 0x20000; FLB = 0x8A8000; FLB2 = 0x2000; EPA = 0x8B0000; EPB = 0x8B0080
WS_USED = 0x8C0000
STAMP_OFF = 0xC800000
SPIN = 100000
RAW = 0; X1 = 16384; X2 = 33792; LY = 0; LYS = 16*528; LY2 = 3*LYS; LY2S = 8*1040; TR = 50432
X2I = X2; X1I = X2I + 20480; BNC = 0
UPAD = 576; UCP = UPAD + 4096 + 32; USTR = 2*UCP; CP = 2*USTR; CSTR = 4160; GP = 57*16; CCH = 32*GP
LDS_TOTAL = CP + 2*CCH
assert LDS_TOTAL <= 81920 and UCP % 64 == 32
assert LY2 + 3*LY2S <= TR and X1I + 16*1040 <= LDS_TOTAL

def gen(stamps=False, probe=None, opt=None):
    opt = opt or {}
    RA = opt.get('RA', 2)
    opt.setdefault('pm_h1a', 'atom'); opt.setdefault('g_early', 0); opt.setdefault('pm_h1b', 'atom'); opt.setdefault('pm_h1g', 'atom'); opt.setdefault('lead_h2ap', 1); opt.setdefault('lead_h2bp', 1); opt.setdefault('sl_h1g', 4); opt.setdefault('sl_h1a', 2)
    a = Asm()
    if probe is not None: stamps = True
    ST = 80
    smap = opt.get("smap")
    def stamp(i):
        if smap is not None: i = smap.get(i)
        elif not isinstance(i, int): i = None
        if stamps and i is not None: a("s_memrealtime %s" % S(ST+2*i, 2))
    def write_stamps(n, tag):
        if not stamps: return
        a("s_waitcnt lgkmcnt(0)")
        if probe is not None:
            role, idx = probe
            if role != tag: return
            a("s_add_u32 s56, s%d, 3000" % (ST+2*idx))
            a("Lpr_%s:\ns_memrealtime s[58:59]\ns_waitcnt lgkmcnt(0)\ns_sub_u32 s57, s58, s56\ns_cmp_lt_i32 s57, 0\ns_cbranch_scc1 Lpr_%s" % (tag, tag))
            return
        sw = opt.get("stampwave", 0)
        a("v_cmp_eq_u32 vcc, %d, v0\ns_and_saveexec_b64 s[58:59], vcc\ns_cbranch_execz Lst_%s" % (64*sw, tag))
        a("s_mov_b32 s10, 0x10000000")
        a("s_lshl_b32 s57, s2, 7\ns_add_u32 s57, s57, 0x%x\nv_mov_b32 v100, s57" % STAMP_OFF)
        for i in range(n):
            a("v_mov_b32 v102, s%d\nv_mov_b32 v103, s%d" % (ST+2*i, ST+1+2*i))
            a("buffer_store_dwordx2 v[102:103], v100, s[8:11], 0 offen offset:%d\ns_nop 1" % (8*i))
        a("Lst_%s:" % tag)
    def cs4(c, s, f0, step, t):
        a("v_add_f32 %s, %s, %s" % (V(t), V(f0), V(step)))
        a("v_fma_f32 %s, 2.0, %s, %s" % (V(t+1), V(step), V(f0)))
        a("v_fma_f32 %s, 2.0, %s, %s" % (V(t+2), V(step), V(t)))
        src = [f0, t, t+1, t+2]
        for j in range(4):
            a("v_cos_f32 %s, %s" % (V(c+j), V(src[j])))
            a("v_sin_f32 %s, %s" % (V(s+j), V(src[j])))
    def pk(d, x, y, nx=False, ny=False):
        a("v_cvt_pk_bf16_f32 %s, %s%s, %s%s" % (V(d), "-" if nx else "", V(x), "-" if ny else "", V(y)))
    def pk2(d, x, neg=False):
        pk(d, x, x+1, neg, neg); pk(d+1, x+2, x+3, neg, neg)
    def planar(d, re, im): pk2(d, re); pk2(d+2, im)
    def inter(d, re, im):
        for j in range(4): pk(d+j, re+j, im+j)
    def mfma(d, x, y, c="0"):
        a("v_mfma_f32_16x16x32_bf16 %s, %s, %s, %s" % (V(d,4), V(x,4), V(y,4), c if c == "0" else V(c,4)))
    def srd_consts(d, nbytes):
        a("s_mov_b32 %s, 0x%x\ns_mov_b32 %s, 0x20000" % (S(d+2), nbytes, S(d+3)))
    def tab_srd():
        a("s_getpc_b64 s[52:53]\ns_add_u32 s52, s52, Ltab@rel32@lo+4\ns_addc_u32 s53, s53, Ltab@rel32@hi+12")
        srd_consts(52, TABSZ)
    def tload(d, voff, name, extra=0):
        off = TOFF[name] + extra
        if off < 4096: a("buffer_load_dwordx4 %s, %s, s[52:55], 0 offen offset:%d" % (V(d,4), V(voff), off))
        else: a("s_mov_b32 s3, 0x%x\nbuffer_load_dwordx4 %s, %s, s[52:55], s3 offen" % (off, V(d,4), V(voff)))
    def poll_flags(tag, voff, soff, vtag, lanes="0xffff"):
        mode = opt.get("pm_"+tag, "load")
        def loop(lab, atom, sl):
            a("L_%s:" % lab)
            if sl: a("s_sleep %d" % sl)
            if atom: a("v_mov_b32 v4, 0\nv_mov_b32 v5, 0\nbuffer_atomic_or_x2 v[4:5], %s, s[8:11], %s offen sc0 sc1\ns_waitcnt vmcnt(0)" % (V(voff), S(soff)))
            else: a("buffer_load_dwordx2 v[4:5], %s, s[8:11], %s offen sc1\ns_waitcnt vmcnt(0)" % (V(voff), S(soff)))
            a("v_cmp_ne_u64 vcc, v[4:5], %s" % V(vtag,2))
            a("s_sub_u32 s42, s42, 1\ns_cbranch_scc1 L_%s_out\ns_cbranch_vccnz L_%s" % (tag, lab))
        a("s_mov_b32 s42, %d" % SPIN)
        sl = opt.get("sl_"+tag, 0)
        if mode.startswith("two"):
            a("s_mov_b64 exec, 0x8000")
            loop(tag+"_1", True, sl); sl = 0
        a("s_mov_b64 exec, %s" % lanes)
        loop(tag, mode in ("atom","twoa"), sl)
        a("L_%s_out:\ns_mov_b64 exec, -1" % tag)
        a("L_%s_done:" % tag)
    def prepoll(tag, voff, soff, off):
        mode = opt.get("pm_"+tag, "load")
        a("L_%s:" % tag)
        if mode == "none": return
        allp = mode.startswith("all")
        lead = opt.get("lead_"+tag)
        if lead: a("s_cmp_lg_u32 s24, 0\ns_cbranch_scc1 L_%s_o" % tag)
        a("s_mov_b64 exec, %s" % ("0xffffffff" if allp else "1"))
        a("L_%s_l:" % tag)
        if opt.get("sl_"+tag): a("s_sleep %d" % opt["sl_"+tag])
        ad = "%s, s[8:11], %s offen" % (V(voff), S(soff)) if allp else "off, s[8:11], %s offset:%d" % (S(soff), off)
        if mode in ("atom","alla"): a("v_mov_b32 v4, 0\nbuffer_atomic_or v4, %s sc0 sc1\ns_waitcnt vmcnt(0)" % ad)
        else: a("buffer_load_dword v4, %s sc1\ns_waitcnt vmcnt(0)" % ad)
        a("v_cmp_eq_u32 vcc, -1, v4")
        a("s_sub_u32 s42, s42, 1\ns_cbranch_scc1 L_%s_o\ns_cbranch_vccnz L_%s_l" % (tag, tag))
        a("L_%s_o:\ns_mov_b64 exec, -1\ns_mov_b32 s42, %d" % (tag, SPIN))
        if lead: a("s_barrier")

    a.raw("; @launch grid=(512,1,1) block=(512,1,1) lds=%d" % LDS_TOTAL)
    a.raw('.amdgcn_target "amdgcn-amd-amdhsa--gfx950"\n.text')
    k = NAME + "_kernel"
    a.raw(".globl %s\n.p2align 8\n.type %s,@function\n%s:" % (k,k,k))
    B0, B1, B2 = 88, 92, 96
    E0, E1, E2 = 100, 108, 116
    C_, Sn = 116, 120
    Ma, Fb, Mi, A2 = 32, 40, 50, 56
    Wa = 64; F0, F1 = 16, 80
    M1re, M1im, M3, M2, A1 = 32, 36, 40, 48, 64
    osc = opt.get("osc", "")
    W3 = 16
    def t1_late():
        a("s_load_dwordx2 s[12:13], s[0:1], 96")
        srd_consts(8, WS_USED); srd_consts(12, 0x400000)
    def sig(vt, soff, mask=1, voff=None):
        a("s_mov_b64 exec, 0x%x" % mask)
        if voff is None: a("buffer_store_dwordx2 %s, off, s[8:11], %s sc1" % (V(vt,2), S(soff)))
        else: a("buffer_store_dwordx2 %s, %s, s[8:11], %s offen sc1" % (V(vt,2), V(voff), S(soff)))
        a("s_mov_b64 exec, -1")
    def derive(m, m1, m2):
        a("v_xor_b32 %s, %s, %s\nv_xor_b32 %s, %s, %s" % (V(m+4), V(m+2), V(m1), V(m+5), V(m+3), V(m1)))
        a("v_xor_b32 %s, %s, %s\nv_xor_b32 %s, %s, %s" % (V(m+6), V(m), V(m2), V(m+7), V(m+1), V(m2)))
    def poll12(tag, loads, cond):
        a("L_%s:" % tag)
        if opt.get("sl_"+tag): a("s_sleep %d" % opt["sl_"+tag])
        loads(0); loads(1)
        a("%s\ns_cbranch_scc0 L_%s_w" % (cond, tag))
        loads(2)
        a("L_%s_w:\ns_waitcnt vmcnt(0)" % tag)
        a("v_max3_u32 v4, v88, v89, v90\nv_max3_u32 v5, v91, v92, v93\nv_max3_u32 v6, v94, v95, v96\nv_max3_u32 v7, v97, v98, v99")
        a("v_max3_u32 v4, v4, v5, v6\nv_max_u32 v4, v4, v7\nv_cmp_eq_u32 vcc, -1, v4")
        a("s_sub_u32 s42, s42, 1\ns_cbranch_scc1 L_%s_done\ns_cbranch_vccnz L_%s" % (tag, tag))
        a("L_%s_done:" % tag)
    def prefetch():
        if not opt.get("pf", 1): return
        a("s_getpc_b64 s[72:73]\nLpf%d:\ns_and_b32 s74, s2, 0x78\ns_add_u32 s74, s74, s24\ns_lshl_b32 s74, s74, 7\ns_min_u32 s74, s74, Lcode_end-%s-4" % (npf[0], k))
        a("s_sub_u32 s72, s72, Lpf%d-%s\ns_subb_u32 s73, s73, 0\ns_load_dword s75, s[72:73], s74" % (npf[0], k))
        npf[0] += 1
    npf = [0]
    stamp(0)
    a("s_load_dwordx2 s[8:9], s[0:1], 112")
    if opt.get("swap", 1): a("s_xor_b32 s2, s2, 256")
    a("s_cmp_lt_u32 s2, 128\ns_cselect_b32 s3, 24, 0")
    a("s_load_dwordx2 s[4:5], s[0:1], s3")
    a("s_load_dwordx16 s[56:71], s[0:1], 32")
    a("s_setprio 3")
    a("v_readfirstlane_b32 s24, v0")
    a("v_lshlrev_b32 v14, 4, v0\nv_and_b32 v2, 15, v0\nv_bfe_u32 v3, v0, 4, 2\nv_and_b32 v1, 0x3f0, v14")
    srd_consts(4, 0x200000)
    a("s_cbranch_scc1 L_T")
    a("s_cmp_lt_u32 s2, 256\ns_cbranch_scc1 L_A")
    a("s_cmp_ge_u32 s2, 512\ns_cbranch_scc1 L_end")
    a("s_sub_u32 s25, s2, 256")
    a("s_lshl_b32 s3, s25, 9\nv_and_b32 v6, 255, v0\nv_lshl_add_u32 v5, v6, 1, s3")
    a("s_lshl_b32 s3, s25, 2\ns_cmp_ge_u32 s24, 256")
    for i in range(6): a("v_mov_b32 %s, 0" % V(16+i))
    a("s_waitcnt lgkmcnt(0)")
    stamp(1)
    a("s_load_dword s30, s[68:69], s3\ns_load_dword s31, s[70:71], s3")
    for i in range(2): a("global_load_short_d16_hi %s, v5, %s" % (V(16+i), S(56+2*i,2)))
    a("s_cbranch_scc1 L_type2")
    for i in range(2,6): a("global_load_short_d16_hi %s, v5, %s" % (V(16+i), S(56+2*i,2)))
    a("L_type2:")
    K1, K2, GA = 24, 28, 32
    a("s_setprio 1")
    srd_consts(8, WS_USED)
    a("s_lshr_b32 s24, s24, 6")
    a("s_bfe_u32 s26, s24, 0x10001\ns_mul_i32 s27, s26, %d\ns_add_u32 s27, s27, %d\ns_mul_i32 s28, s26, %d" % (CCH, CP, USTR))
    a("s_and_b32 s29, s24, 1\ns_lshr_b32 s32, s24, 2\ns_lshl_b32 s3, s32, 1\ns_add_u32 s29, s29, s3")
    a("v_bfe_u32 v4, v0, 2, 5\nv_mul_u32_u24 v4, %d, v4\nv_and_b32 v7, 3, v0\nv_lshl_add_u32 v4, v7, 2, v4\nv_add_u32 %s, s27, v4" % (GP, V(K1)))
    a("v_bfrev_b32 v4, v3\nv_lshrrev_b32 v4, 27, v4\nv_mul_u32_u24 v4, %d, v4\nv_lshl_add_u32 v4, v2, 4, v4\nv_add_u32 %s, s27, v4" % (GP, V(K1+1)))
    a("s_lshl_b32 s3, s29, 8\nv_add_u32 %s, s3, %s" % (V(K1+2), V(K1+1)))
    a("v_and_b32 v4, 3, v2\nv_mul_u32_u24 v4, %d, v4\nv_lshrrev_b32 v10, 2, v2\nv_sub_u32 v10, v3, v10\nv_lshl_add_u32 v4, v10, 4, v4\ns_add_u32 s3, s27, %d\nv_add_u32 %s, s3, v4" % (CSTR, 2*(2040-256*7)-64, V(K2)))
    a("v_and_b32 v7, 1, v2\nv_lshrrev_b32 v4, 1, v2\nv_lshlrev_b32 v4, 6, v4\nv_lshl_add_u32 v4, v3, 4, v4\nv_mul_u32_u24 v10, %d, v7\ns_add_u32 s3, s28, %d\nv_add3_u32 %s, v4, v10, s3\nv_lshl_add_u32 %s, v7, 3, v4" % (UCP, UPAD-64, V(K2+1), V(K2+2)))
    a("s_mul_i32 s3, s32, %d\ns_add_u32 s3, s3, %d\nv_lshl_add_u32 %s, v6, 4, s3" % (CCH, CP, V(K2+3)))
    a("v_mul_u32_u24 v4, %d, v7\nv_lshrrev_b32 v47, 1, v0\nv_lshl_add_u32 v15, v47, 4, v4" % USTR)
    for j in range(4): a("v_mov_b32 %s, 0" % V(120+j))
    a("v_cmp_gt_u32 vcc, 72, v0\ns_and_saveexec_b64 s[40:41], vcc\nds_write_b128 v15, v[120:123]\nds_write_b128 v15, v[120:123] offset:%d\ns_mov_b64 exec, -1" % UCP)
    a("s_lshr_b32 s3, s25, 5\ns_lshl_b32 s3, s3, 7\ns_add_u32 s46, s3, 0x%x" % EPB)
    a("s_lshl_b32 s44, s25, 13\ns_add_u32 s45, s44, 0x%x\ns_add_u32 s44, s44, 0x%x" % (UT, YT))
    a("s_lshr_b32 s39, s25, 4\ns_lshl_b32 s39, s39, 9\ns_add_u32 s39, s39, 0x%x\nv_lshrrev_b32 v22, 1, v1" % FLB)
    a("v_lshlrev_b32 v4, 3, v6\nv_sub_u32 v4, 2047, v4\nv_max_u32 v5, 143, v4\nv_sub_u32 v4, v4, v5\nv_cvt_f32_u32 v5, v5")
    a("s_mul_i32 s34, s32, %d\ns_add_u32 s3, s34, %d\nv_mov_b32 v9, s34\nv_lshl_add_u32 v4, v4, 2, s3" % (USTR, UPAD - 4*0x4280))
    for i in range(0, 12, 2):
        a("v_subrev_f32 v7, %s, v5\nv_subrev_f32 v8, %s, v5\nv_cvt_pk_bf16_f32 v7, v7, v8\nv_and_b32 v8, 0xffff, v7\nv_lshl_add_u32 %s, v8, 2, v4" % (f32(float(i)), f32(float(i+1)), V(GA+i)))
        if i < 10: a("v_lshrrev_b32 v7, 16, v7\nv_lshl_add_u32 %s, v7, 2, v4" % V(GA+i+1))
    a("v_cmp_eq_u32 vcc, 255, v6")
    for i in range(8,11): a("v_cndmask_b32 %s, %s, v9, vcc" % (V(GA+i), V(GA+i)))
    a("s_waitcnt lgkmcnt(0)")
    a("s_lshl_b32 s3, s26, 4\ns_lshr_b32 s30, s30, s3\ns_lshl_b32 s30, s30, 16\ns_lshl_b32 s3, s32, 4\ns_lshr_b32 s31, s31, s3\ns_lshl_b32 s31, s31, 16")
    a("v_mov_b32 v46, %s\nv_mul_f32 v46, s30, v46\nv_exp_f32 v46, v46\nv_cvt_pk_bf16_f32 v46, v46, v46\nv_and_b32 v46, 0xffff0000, v46" % f32(1.4426950408889634))
    a("s_cmp_ge_u32 s24, 4")
    a("s_waitcnt vmcnt(0)")
    stamp(2)
    a("v_mul_f32 v44, v46, v16\nv_mul_f32 v45, v46, v17\nv_mul_f32 v44, %s, v44\nv_mul_f32 v45, 0.15915494, v45" % f32(1.4426950408889634))
    a("buffer_load_dwordx2 v[12:13], off, s[8:11], s46")
    def directs(lst):
        for i,(d,p) in enumerate(lst): a("v_mul_f32 %s, %s, v44\nv_mul_f32 %s, %s, v45" % (V(4+2*i), f32(p), V(5+2*i), f32(p)))
        for i,(d,p) in enumerate(lst): a("v_fract_f32 %s, %s" % (V(5+2*i), V(5+2*i)))
        for i,(d,p) in enumerate(lst): a("v_exp_f32 %s, %s\nv_cos_f32 %s, %s\nv_sin_f32 %s, %s" % (V(4+2*i), V(4+2*i), V(d), V(5+2*i), V(d+1), V(5+2*i)))
        for i,(d,p) in enumerate(lst): a("v_pk_mul_f32 %s, %s, %s op_sel_hi:[1,0]" % (V(d,2), V(d,2), V(4+2*i,2)))
    def cmul1(z, x, y): a("v_pk_mul_f32 %s, %s, %s op_sel:[0,0] op_sel_hi:[0,1]" % (V(z,2), V(x,2), V(y,2)))
    def cmul2(z, x, y): a("v_pk_fma_f32 %s, %s, %s, %s op_sel:[1,1,0] op_sel_hi:[1,0,1] neg_lo:[1,0,0]" % (V(z,2), V(x,2), V(y,2), V(z,2)))
    def cmuls(ops):
        for z,x,y in ops: cmul1(z,x,y)
        for z,x,y in ops: cmul2(z,x,y)
    tcount = [0]; pend = []
    def put(rows, neg=False):
        ts = []
        for row, r in rows:
            t = 4 + (tcount[0] % 8); tcount[0] += 1; ts.append(t)
            pk(t, r, r+1, False, neg)
        pend.extend((row, t) for (row, r), t in zip(rows, ts))
        while len(pend) >= 2:
            (r0,t0),(r1,t1) = pend.pop(0), pend.pop(0)
            a("ds_write2_b32 %s, %s, %s offset0:%d offset1:%d" % (V(K1), V(t0), V(t1), 4*r0, 4*r1))
    def putflush():
        while pend:
            r0,t0 = pend.pop(0); a("ds_write_b32 %s, %s offset:%d" % (V(K1), V(t0), 16*r0))
    a("s_cbranch_scc1 L_kg1")
    e8, e32, e128, e256 = 48, 50, 52, 54
    directs([(e8, 8.0), (e128, 128.0), (96, 1024.0)])
    EE = 64
    a("v_pk_mul_f32 v[18:19], v[18:19], v[46:47] op_sel_hi:[1,0]")
    cmuls([(EE, 20, 18), (56, e8, e8), (e256, e128, e128), (98, 96, e128)])
    cmuls([(EE+2, EE, e8), (EE+4, EE, 56), (e32, 56, 56), (100, 96, e256), (102, 98, e256)])
    cmuls([(EE+6, EE+2, 56), (104, 100, e256), (106, 102, e256)])
    put([(48+i, 96+2*i) for i in range(4)])
    for blk in range(1,4):
        ops = [(EE+8*blk+2*i, EE+8*(blk-1)+2*i, e32) for i in range(4)]
        if blk == 1: ops += [(108, 104, e256), (110, 106, e256)]
        if blk == 2: ops += [(112, 108, e256)]
        cmuls(ops)
        put([(4*(blk-1)+i, EE+8*(blk-1)+2*i) for i in range(4)], True)
    put([(12+i, EE+24+2*i) for i in range(4)], True)
    put([(52+i, 104+2*i) for i in range(5)])
    putflush()
    a("s_branch L_kg2")
    a("L_kg1:")
    LO = 48
    BL = 64; TM = 80
    directs([(LO+2, 1.0), (BL+2, 128.0)])
    a("v_mov_b32 v48, 0x3f80"); pend.append((16, 48))
    cmuls([(LO+4, LO+2, LO+2), (BL+4, BL+2, BL+2)])
    cmuls([(LO+6, LO+4, LO+2), (LO+8, LO+4, LO+4), (BL+6, BL+4, BL+2), (BL+8, BL+4, BL+4)])
    cmuls([(LO+10, LO+8, LO+2), (LO+12, LO+8, LO+4), (LO+14, LO+8, LO+6), (BL+10, BL+8, BL+2), (BL+12, BL+8, BL+4), (BL+14, BL+8, BL+6)])
    put([(16+kx, LO+2*kx) for kx in range(1,8)])
    cmuls([(TM+2*kx, LO+2*kx, BL+2) for kx in range(1,8)])
    put([(24, BL+2), (32, BL+4), (36, BL+6), (40, BL+8), (42, BL+10), (44, BL+12), (46, BL+14)])
    cmuls([(TM+16+2*i, LO+4*(1+i%3), BL+4+2*(i//3)) for i in range(6)])
    put([(24+kx, TM+2*kx) for kx in range(1,8)])
    cmuls([(TM+2*i, LO+8, BL+8+2*i) for i in range(4)])
    put([(33+(i%3)+4*(i//3), TM+16+2*i) for i in range(6)])
    put([(41+2*i, TM+2*i) for i in range(4)])
    putflush()
    a("L_kg2:")
    a("s_waitcnt vmcnt(0) lgkmcnt(0)\ns_barrier")
    stamp(3)
    if stamps: a("s_waitcnt lgkmcnt(0)")
    a("v_lshl_add_u64 v[12:13], v[12:13], 0, 1")
    a("s_cmp_eq_u32 s24, 7\ns_cbranch_scc1 L_upoll")
    a("s_and_b32 s3, s24, 5\ns_cmp_eq_u32 s3, 5\ns_cbranch_scc1 L_kg3")
    for ks in range(8):
        a("ds_read_b128 %s, %s offset:%d\nds_read_b128 %s, %s offset:%d" % (V(48+8*ks,4), V(K1+2), GP*ks+256, V(52+8*ks,4), V(K1+1), GP*ks))
    a("s_add_u32 s35, s28, %d\ns_cmp_eq_u32 s29, 1\ns_cbranch_scc1 L_ka1\ns_cmp_eq_u32 s29, 0\ns_cbranch_scc1 L_ka0" % UPAD)
    a("v_lshlrev_b32 v4, 2, v2\nv_lshl_add_u32 v4, v3, 8, v4\nv_add_u32 v4, 2048, v4\nv_mov_b32 v5, 64\nv_mov_b32 v6, 128\ns_branch L_ka2")
    a("L_ka0:\nv_lshrrev_b32 v5, 1, v3\nv_lshlrev_b32 v4, 5, v2\nv_lshl_add_u32 v4, v5, 9, v4\nv_and_b32 v5, 1, v3\nv_lshl_add_u32 v4, v5, 4, v4\nv_mov_b32 v5, 4\nv_mov_b32 v6, 8\ns_branch L_ka2")
    a("L_ka1:\nv_lshrrev_b32 v5, 1, v3\nv_sub_u32 v4, 4, v5\nv_lshlrev_b32 v4, v4, v2\nv_lshl_add_u32 v4, v3, 8, v4\nv_add_u32 v4, 1024, v4\nv_mul_u32_u24 v6, 120, v5\nv_add_u32 v6, 8, v6\nv_mov_b32 v5, 4")
    a("L_ka2:\nv_add_u32 v4, s35, v4\nv_add_u32 v6, v4, v6\nv_add_u32 v7, v6, v5\nv_add_u32 v5, v4, v5")
    for ks in range(8):
        a("s_waitcnt lgkmcnt(%d)" % (14-2*ks))
        mfma(112, 48+8*ks, 52+8*ks, "0" if ks == 0 else 112)
    for j in range(4): a("ds_write_b32 %s, %s" % (V(4+j), V(112+j)))
    a("L_kg3:")
    a("s_waitcnt lgkmcnt(0)\ns_barrier")
    a("buffer_load_dwordx4 v[16:19], v14, s[8:11], s45 offen sc1")
    stamp("c_kf")
    for i in range(11): a("ds_read_b32 %s, %s" % (V(80+i), V(GA+i)))
    a("v_and_b32 v6, 255, v0\nv_cmp_eq_u32 vcc, 255, v6\nv_mov_b32 v23, s31\nv_cndmask_b32 v23, 0, v23, vcc")
    a("v_cmp_lt_u32 vcc, 252, v6\ns_and_saveexec_b64 s[40:41], vcc\ns_cbranch_execz L_kg4")
    for s_ in range(4): a("ds_write_b128 %s, v[120:123] offset:%d" % (V(K2+3), s_*CSTR+48))
    a("L_kg4:\ns_mov_b64 exec, -1")
    a("s_lshl_b32 s3, s26, 12\ns_add_u32 s44, s44, s3")
    a("s_waitcnt lgkmcnt(0)")
    a("v_add_f32 v87, v87, v23")
    for d in range(4):
        for kx in range(4): pk(48+4*d+kx, 80+d+2*kx, 80+d+2*kx+1)
        a("ds_write_b128 %s, %s offset:%d" % (V(K2+3), V(48+4*d,4), (3-d)*CSTR))
    stamp(4)
    a("s_setprio 2")
    ACC = 32; FR = 48
    for j in range(16): a("v_mov_b32 %s, 0" % V(ACC+j))
    stamp(5)
    a("s_barrier")
    a("s_mov_b32 s42, 8\ns_waitcnt vmcnt(0)")
    stamp(6)
    a("ds_write_b128 v15, v[16:19] offset:%d" % (UCP+UPAD))
    a("ds_write_b64 v15, v[16:17] offset:%d\nds_write_b64 v15, v[18:19] offset:%d" % (UPAD+8, UPAD+16))
    a("v_cmp_gt_u32 vcc, 2, v0\ns_and_saveexec_b64 s[40:41], vcc\nds_write_b64 v15, v[120:121] offset:%d\ns_mov_b64 exec, -1" % UPAD)
    a("s_waitcnt lgkmcnt(0)\ns_barrier")
    stamp("c_b")
    if smap: a("s_waitcnt lgkmcnt(0)")
    a("s_cmp_ge_u32 s24, 4\ns_cbranch_scc1 L_fchk")
    a("s_bitcmp1_b32 s24, 0\ns_cbranch_scc1 L_cv1")
    def conv(tag, tiles, seq):
        n = len(seq)
        keys = []
        for _,x,y in seq:
            for kx in (x,y):
                if kx not in keys: keys.append(kx)
        reg = {kx: FR+4*i for i,kx in enumerate(keys)}
        assert FR+4*len(keys) <= 120
        last = {}; first = {}
        for i,(_,x,y) in enumerate(seq):
            for kx in (x,y):
                last[kx] = i; first.setdefault(kx, i)
        used = {n-1}; gap = {}
        for kx in sorted(keys, key=lambda q: (first[q]+n, last[q])):
            gq = last[kx]
            while gq % n in used and len(used) < n: gq += 1
            if first[kx] + n - gq < 7: gq = last[kx]
            used.add(gq % n); gap[kx] = gq
        free = [i for i in range(n-1) if i not in {gq % n for gq in gap.values()}]
        dec = {"A": (free + [3])[0], "B": (free[1:] + [9])[0]}
        def rd(kx, rel):
            if kx[0] == "A": a("ds_read_b128 %s, %s offset:%d" % (V(reg[kx],4), V(K2), (7-kx[1])*512 + rel))
            else: a("ds_read_b128 %s, %s offset:%d" % (V(reg[kx],4), V(K2+1), kx[1]*512 + rel))
        order = sorted(keys, key=lambda q: (gap[q] % n, keys.index(q)))
        for kx in order:
            if gap[kx] < n: rd(kx, 64)
        a("L_cvl%s:" % tag)
        WG_ = opt.get("waitgroup", 4)
        for i,(ti,x,y) in enumerate(seq):
            if i % WG_ == 0:
                need = [kx for ii in range(i, min(i+WG_, n)) for kx in seq[ii][1:] if first[kx] == ii]
                if need:
                    def age(kx):
                        g0 = gap[kx] - n
                        assert g0 < i
                        cnt = 0
                        for q in order:
                            for gg in ((gap[q] % n,) if gap[q] >= n else (gap[q] - n, gap[q])):
                                if gg < i and (gg > g0 or (gg == g0 and order.index(q) > order.index(kx))): cnt += 1
                        return cnt
                    a("s_waitcnt lgkmcnt(%d)" % min(min(age(kx) for kx in need), 15))
            mfma(ACC+4*ti, reg[x], reg[y], ACC+4*ti)
            for kx in order:
                if gap[kx] % n == i:
                    rel = (64 if gap[kx] >= n else 0) + (64 if i > dec[kx[0]] else 0)
                    rd(kx, rel)
            for kk,rg in (("A",K2),("B",K2+1)):
                if dec[kk] == i: a("v_subrev_u32 %s, 64, %s" % (V(rg), V(rg)))
            if i == 5: a("s_sub_u32 s42, s42, 1")
            if i == 6: a("s_cmp_lg_u32 s42, 0")
        a("s_cbranch_scc1 L_cvl%s" % tag)
        a("s_barrier")
        stamp(7)
        for ti,e in reversed(list(enumerate(tiles))):
            pk2(4+2*ti, ACC+4*ti)
            a("buffer_store_dwordx2 %s, %s, s[8:11], s44 offen offset:%d sc1" % (V(4+2*ti,2), V(K2+2), e*512))
        if stamps: a("s_waitcnt vmcnt(0)")
        stamp(8)
    seq0 = [(0,("A",0),("B",7)), (1,("A",0),("B",6)), (2,("A",0),("B",1,"x")), (3,("A",0),("B",0,"x")),
            (0,("A",1),("B",6)), (1,("A",1),("B",5)), (2,("A",1),("B",0,"x"))]
    for m in range(2,8):
        seq0.append((0,("A",m),("B",7-m)))
        if m < 7: seq0.append((1,("A",m),("B",6-m)))
    conv("0", [7,6,1,0], seq0)
    write_stamps(9, "c")
    a("s_endpgm")
    a("L_cv1:")
    seq1 = []
    for m in range(6):
        for ti,e in enumerate([5,4,3,2]):
            if m <= e: seq1.append((ti,("A",m),("B",e-m)))
    conv("1", [5,4,3,2], seq1)
    if opt.get("stampwave",0) & 1: write_stamps(9, "d")
    a("s_endpgm")
    a("L_upoll:")
    poll_flags("h1b", 22, 39, 12, "-1")
    a("s_branch L_kg3")
    a("L_fchk:")
    for j in range(4): a("v_mov_b32 %s, -1" % V(116+j))
    a("s_add_u32 s45, s45, 0x%x\ns_sub_u32 s44, s45, 4096" % (YT-UT))
    a("buffer_store_dwordx4 v[116:119], v14, s[8:11], s44 offen sc1\nbuffer_store_dwordx4 v[116:119], v14, s[8:11], s45 offen sc1")
    a("s_lshr_b32 s3, s25, 4\ns_lshl_b32 s3, s3, 2\ns_add_u32 s3, s3, s24\ns_lshl_b32 s3, s3, 7\ns_and_b32 s33, s25, 15\ns_lshl_b32 s33, s33, 3\ns_add_u32 s3, s3, s33\ns_add_u32 s3, s3, 0x%x" % (FLB+FLB2-512))
    a("s_waitcnt vmcnt(0)")
    sig(12, 3)
    a("s_barrier")
    a("s_endpgm")
    a("L_A:")
    a("s_lshr_b32 s24, s24, 6\ns_sub_u32 s50, s2, 128")
    a("s_lshl_b32 s31, s24, 17\ns_lshl_b32 s3, s50, 10\ns_add_u32 s31, s31, s3\ns_add_u32 s32, s31, 0x100000")
    a("s_lshl_b32 s33, s24, 10\ns_mov_b32 m0, s33")
    a("s_cmp_lg_u32 s24, 0\ns_cselect_b32 s41, 0x8000000, 0\ns_cselect_b32 s38, s24, 16")
    srd_consts(8, WS_USED)
    a("s_sub_u32 s26, 7, s24")
    a("s_and_b32 s3, s50, 7\ns_lshl_b32 s3, s3, 4\ns_lshr_b32 s37, s50, 3\ns_add_u32 s37, s37, s3")
    a("s_lshl_b32 s47, s37, 3\ns_lshl_b32 s3, s26, 10\ns_add_u32 s46, s47, s3\ns_add_u32 s46, s46, 0x%x\ns_add_u32 s47, s47, 0x%x" % (FLA, FLA+FLA2))
    a("s_lshl_b32 s37, s37, 6\ns_lshl_b32 s3, s26, 14\ns_add_u32 s43, s37, s3\ns_add_u32 s44, s43, 8192\ns_add_u32 s45, s44, 8192\ns_add_u32 s45, s45, s41")
    a("s_mul_i32 s34, s50, 17408\ns_add_u32 s34, s34, 0x%x\ns_add_u32 s36, s34, 16384\ns_lshl_b32 s3, s26, 11\ns_add_u32 s35, s34, s3\ns_add_u32 s48, s36, s41" % D2)
    for j in range(4): a("v_mov_b32 %s, -1" % V(28+j))
    a("v_cvt_f32_u32 v71, v2\nv_cvt_f32_u32 v87, v3\nv_mul_f32 v4, %s, v71\nv_mul_f32 v87, 4.0, v87\nv_mul_f32 v6, v87, v4" % f32(1/32))
    cs4(C_, Sn, 6, 4, 8)
    a("v_cmp_eq_u32 s[52:53], 0, v2\nv_mov_b32 v76, 0xbf803f80")
    a("v_lshlrev_b32 v4, 31, v2\nv_lshrrev_b32 v5, 16, v4\nv_or_b32 v4, v4, v5")
    pk2(M1re, C_); pk2(M1im, Sn, True)
    a("v_cndmask_b32 v36, v36, v76, s[52:53]\nv_cndmask_b32 v37, v37, v76, s[52:53]")
    a("v_xor_b32 v34, v32, v4\nv_xor_b32 v35, v33, v4\nv_xor_b32 v38, v36, v4\nv_xor_b32 v39, v37, v4")
    a("s_waitcnt lgkmcnt(0)")
    stamp(1)
    a("buffer_load_dwordx4 v1, s[4:7], s31 offen lds")
    a("s_add_u32 m0, s33, 8192")
    a("buffer_load_dwordx4 v1, s[4:7], s32 offen lds")
    a("s_mov_b32 s3, 0x%x\nbuffer_load_dwordx2 v[12:13], off, s[8:11], s3" % EPA)
    prefetch()
    a("v_lshrrev_b32 v68, 1, v1\nv_add_u32 v68, s33, v68")
    a("s_lshl_b32 s3, s24, 4\nv_add_u32 v15, s3, v14")
    a("v_lshlrev_b32 v69, 8, v3\nv_mul_u32_u24 v4, 1040, v2\nv_add3_u32 %s, v4, v69, s3" % V(A1))
    a("v_bfe_i32 v86, v2, 3, 1\nv_and_b32 v84, 0x80008000, v86\nv_xor_b32 v85, 0x80008000, v84")
    a("v_xor_b32 v4, v2, v86\nv_and_b32 v4, 7, v4\nv_mul_u32_u24 v4, 2064, v4\nv_add_u32 v4, v4, v69")
    a("s_lshl_b32 s38, s38, 4\ns_sub_u32 s38, 1280, s38\ns_sub_u32 s39, 1152, s3\ns_add_u32 s40, s3, 128")
    a("v_cmp_gt_u32 vcc, 8, v2\nv_mov_b32 v5, s38\nv_mov_b32 v6, s3\nv_mov_b32 v7, s39\nv_mov_b32 v8, s40")
    a("v_cndmask_b32 v5, v5, v6, vcc\nv_cndmask_b32 v7, v7, v8, vcc\nv_add_u32 %s, v4, v5\nv_add_u32 %s, v4, v7" % (V(A1+1), V(A1+2)))
    a("v_and_b32 v4, 0x1cf, v0\nv_cmp_ne_u32 vcc, 0x1c0, v4\nv_cndmask_b32 %s, 0, -1, vcc" % V(A1+3))
    EARLY = 0
    FP = opt.get("fillpos", 1)
    def fill2():
        a("buffer_store_dwordx4 v[28:31], v1, s[8:11], s35 offen sc1\nbuffer_store_dwordx4 v[28:31], v1, s[8:11], s35 offen offset:1024 sc1")
        a("buffer_store_dwordx4 v[28:31], v1, s[8:11], s48 offen sc1")
    if FP == 0: fill2()
    a("v_lshl_add_u32 v5, v2, 5, s24\nv_add_u32 v4, 8, v5\nv_cvt_f32_u32 v4, v4\nv_mul_f32 v4, %s, v4\nv_mul_f32 v6, v87, v4" % f32(1/512))
    cs4(C_, Sn, 6, 4, 8)
    a("s_cmp_eq_u32 s24, 0\ns_cselect_b32 s3, 16, 0\nv_and_b32 v4, s3, v86\nv_add_u32 v4, v4, v5\nv_cvt_f32_u32 v4, v4\nv_mul_f32 v4, %s, v4\nv_mul_f32 v6, v87, v4" % f32(1/512))
    pk2(M2+8, C_); pk2(M2+10, Sn)
    cs4(C_, Sn, 6, 4, 8)
    derive(M2+8, 85, 84)
    pk2(M2, C_); pk2(M2+2, Sn)
    derive(M2, 85, 84)
    stamp("a_pre")
    a("s_cbranch_scc0 L_p1_m2")
    a("v_cndmask_b32 %s, %s, v76, s[52:53]\nv_cndmask_b32 %s, %s, v76, s[52:53]" % (V(M2+4), V(M2+4), V(M2+5), V(M2+5)))
    for m in (M2, M2+4):
        for j in range(2):
            a("v_and_b32 %s, %s, v86\nv_xor_b32 %s, %s, %s" % (V(m+2+j), V(m+j), V(m+j), V(m+j), V(m+2+j)))
    a("L_p1_m2:")
    a("v_lshl_add_u32 v4, v3, 9, s50\nv_mul_u32_u24 v4, v4, v2\nv_cvt_f32_u32 v6, v4\nv_mul_f32 v6, %s, v6\nv_mul_f32 v4, %s, v71" % (f32(1/2048), f32(1/16)))
    cs4(C_, Sn, 6, 4, 8)
    pk2(M3, Sn, True); pk2(M3+2, C_); pk2(M3+4, Sn)
    a("s_mul_i32 s3, s26, 2064\nv_add_u32 v70, s3, v1")
    a("v_mul_u32_u24 v72, %d, v3\nv_lshl_add_u32 v72, v2, 2, v72\nv_add_u32 v73, %d, v72\nv_add_u32 v74, %d, v72\nv_add_u32 v75, %d, v72" % (4*17*8192, 17*8192, 2*17*8192, 3*17*8192))
    a("v_mov_b32 %s, 0\nv_mov_b32 %s, 0\nv_lshlrev_b32 v10, 13, v2" % (V(B2+2), V(B2+3)))
    a("s_waitcnt vmcnt(%d) lgkmcnt(0)" % (4 if FP == 0 else 1))
    stamp(2)
    a("ds_read_b64_tr_b16 v[88:89], v68\nds_read_b64_tr_b16 v[90:91], v68 offset:512")
    a("ds_read_b64_tr_b16 v[92:93], v68 offset:8192\nds_read_b64_tr_b16 v[94:95], v68 offset:8704")
    if FP == 1: fill2()
    if stamps: a("s_waitcnt lgkmcnt(0)")
    a("s_waitcnt lgkmcnt(2)")
    mfma(E0, B0, M1re); mfma(E0+4, B0, M1im)
    a("s_waitcnt lgkmcnt(0)")
    mfma(E1, B1, M1re); mfma(E1+4, B1, M1im)
    planar(B0, E0, E0+4)
    a("ds_write_b128 %s, %s offset:%d" % (V(A1), V(B0,4), X1))
    planar(B1, E1, E1+4)
    a("ds_write_b128 %s, %s offset:%d" % (V(A1), V(B1,4), X1+128))
    stamp("a_s1")
    def sig_a1():
        a("s_waitcnt vmcnt(0)")
        a("v_lshl_add_u64 v[12:13], v[12:13], 0, 1")
        sig(12, 46, (1 << RA) - 1, 10)
        stamp(4)
    if EARLY == 1: sig_a1()
    a("s_waitcnt lgkmcnt(0)\ns_barrier")
    stamp("a_b1")
    if smap: a("s_waitcnt lgkmcnt(0)")
    a("ds_read_b128 %s, v15 offset:%d\nds_read_b128 %s, v15 offset:%d" % (V(B0,4), X1, V(B1,4), X1+8320))
    if FP == 2: fill2()
    a("s_waitcnt lgkmcnt(1)")
    mfma(E0, B0, M2); mfma(E0+4, B0, M2+4)
    a("s_waitcnt lgkmcnt(0)")
    mfma(E1, B1, M2+8); mfma(E1+4, B1, M2+12)
    planar(B0, E0, E0+4)
    a("ds_write_b128 %s, %s offset:%d" % (V(A1+1), V(B0,4), X2))
    planar(B1, E1, E1+4)
    a("ds_write_b128 %s, %s offset:%d" % (V(A1+2), V(B1,4), X2))
    if EARLY == 2: sig_a1()
    a("s_waitcnt lgkmcnt(0)\ns_barrier")
    stamp("a_b2")
    if smap: a("s_waitcnt lgkmcnt(0)")
    a("ds_read_b128 %s, v70 offset:%d\nds_read_b128 %s, v70 offset:%d" % (V(B1,4), X2+1024, V(B0,4), X2))
    a("ds_read_b64 %s, v69 offset:%d" % (V(B2,2), X2+8))
    a("s_waitcnt lgkmcnt(2)")
    mfma(E1, M3+2, B1); mfma(E1+4, M3, B1)
    a("s_waitcnt lgkmcnt(0)")
    a("v_and_b32 %s, %s, %s\nv_and_b32 %s, %s, %s" % (V(B0+2), V(B0+2), V(A1+3), V(B0+3), V(B0+3), V(A1+3)))
    mfma(E0, M3+2, B0); mfma(E0+4, M3, B0)
    a("s_cmp_lg_u32 s24, 0\ns_cbranch_scc1 L_p1_s3a")
    mfma(E2, M3+2, B2); mfma(E2+4, M3, B2)
    a("L_p1_s3a:")
    def st1(b, E, so):
        for j in range(4):
            pk(b+j, E+j, E+4+j)
            a("buffer_store_dword %s, %s, s[8:11], %s offen sc1" % (V(b+j), V(72+j), S(so)))
    st1(B1, E1, 44); st1(B0, E0, 43)
    a("s_cbranch_scc1 L_p1_s3b")
    st1(B2, E2, 45)
    a("L_p1_s3b:")
    stamp(3)
    a("s_lshl_b32 s3, s24, 11\ns_add_u32 s35, s34, s3")
    sig_a1()
    a("s_barrier")
    M3i, M2i, M1i, A3 = 32, 40, 56, 64
    a("s_setprio 0")
    a("s_load_dwordx2 s[12:13], s[0:1], 96")
    srd_consts(12, 0x400000)
    a("v_lshl_add_u32 v4, v2, 7, s50\nv_cvt_f32_u32 v4, v4\nv_cvt_f32_u32 v5, v3\nv_mul_f32 v6, %s, v4\nv_mul_f32 v4, %s, v4\nv_mul_f32 v6, v6, v5" % (f32(1/2048), f32(4/2048)))
    cs4(C_, Sn, 6, 4, 8)
    for j in range(4):
        pk(M3i+j, C_+j, Sn+j, False, True); pk(M3i+4+j, Sn+j, C_+j)
    a("v_lshrrev_b32 v126, 2, v1")
    a("v_lshlrev_b32 v83, 5, v2\nv_lshl_add_u32 v83, v3, 3, v83")
    a("s_lshl_b32 s43, s24, 18\ns_lshl_b32 s3, s50, 11\ns_add_u32 s43, s43, s3\ns_add_u32 s44, s43, 0x200000")
    a("v_bfe_i32 v86, v3, 1, 1\nv_and_b32 v84, 0x80008000, v86\nv_xor_b32 v85, 0x80008000, v84")
    for j in range(4): a("v_mov_b32 %s, 0" % V(B2+j))
    a("v_lshlrev_b32 v5, 4, v3\nv_mul_u32_u24 v4, 80, v2\ns_mul_i32 s3, s24, 2560\ns_add_u32 s3, s3, %d\nv_add3_u32 %s, v4, v5, s3" % (X2I, V(A3)))
    a("v_mul_u32_u24 v4, 1040, v2\ns_lshl_b32 s3, s24, 6\ns_add_u32 s3, s3, %d\nv_add3_u32 %s, v4, v5, s3" % (X1I, V(A3+3)))
    a("s_cmp_eq_u32 s24, 0\ns_cselect_b32 s3, 16, 0\nv_and_b32 v82, s3, v86")
    a("v_bfe_u32 v4, v0, 2, 4\nv_lshl_add_u32 v4, v4, 5, s24\nv_add_u32 v5, 8, v4\nv_add_u32 v4, v4, v82")
    a("v_and_b32 v6, 48, v14\nv_add_u32 v6, %d, v6\nv_and_b32 v7, 513, v86" % X2I)
    for p,r in ((1,4),(2,5)):
        a("v_xor_b32 %s, %s, v86\nv_add_u32 %s, %s, v7\nv_mul_u32_u24 %s, 80, %s\nv_add_u32 %s, %s, v6" % (V(r),V(r),V(r),V(r),V(r),V(r),V(A3+p),V(r)))
    a("v_lshl_add_u32 v5, v3, 7, s24\nv_add_u32 v7, 8, v5\nv_mul_u32_u24 v7, v7, v2\nv_cvt_f32_u32 v6, v7\nv_mul_f32 v6, %s, v6\nv_mul_f32 v4, %s, v71" % (f32(1/512), f32(1/16)))
    cs4(C_, Sn, 6, 4, 8)
    a("v_add_u32 v7, v5, v82\nv_mul_u32_u24 v7, v7, v2\nv_cvt_f32_u32 v6, v7\nv_mul_f32 v6, %s, v6" % f32(1/512))
    def m2i(m):
        pk2(m, C_); pk2(m+4, Sn)
        a("v_xor_b32 %s, %s, v85\nv_xor_b32 %s, %s, v85\nv_xor_b32 %s, %s, v84\nv_xor_b32 %s, %s, v84" % (V(m+2),V(m+4),V(m+3),V(m+5),V(m+6),V(m),V(m+7),V(m+1)))
    m2i(M2i+8)
    cs4(C_, Sn, 6, 4, 8)
    a("v_lshlrev_b32 v7, 31, v2\nv_cmp_eq_u32 vcc, 0, v3")
    a("s_cbranch_scc0 L_p3_m2")
    a("v_xor_b32 v5, %s, v7\nv_mov_b32 v4, 0.5\nv_cndmask_b32 %s, %s, v4, vcc\nv_cndmask_b32 %s, %s, v5, vcc" % (f32(-0.5), V(C_), V(C_), V(Sn), V(Sn)))
    a("L_p3_m2:")
    m2i(M2i)
    a("s_cbranch_scc0 L_p3_m3")
    for j in range(4): a("v_and_b32 %s, %s, v86\nv_xor_b32 %s, %s, %s" % (V(M2i+4+j), V(M2i+j), V(M2i+j), V(M2i+j), V(M2i+4+j)))
    a("L_p3_m3:")
    a("v_mul_f32 v4, %s, v71\nv_mul_f32 v6, v87, v4" % f32(1/32))
    cs4(C_, Sn, 6, 4, 8)
    a("v_xor_b32 v5, -1.0, v7\nv_cndmask_b32 %s, %s, v5, vcc" % (V(Sn), V(Sn)))
    for j in range(8): a("v_mul_f32 %s, %s, %s" % (V(C_+j), f32(2.0**-19), V(C_+j)))
    pk2(M1i, C_); pk2(M1i+2, Sn, True)
    for j in range(4): a("v_xor_b32 %s, 0x80000000, %s" % (V(M1i+4+j), V(M1i+j)))
    a("s_mov_b32 s42, %d" % SPIN)
    a("s_setprio 3\ns_waitcnt lgkmcnt(0)")
    stamp(6)
    a("s_add_u32 s37, s35, 1024\ns_cmp_eq_u32 s24, 0\ns_cselect_b32 s37, s36, s37")
    prepoll("h2ap", 8, 37, 960)
    stamp(7)
    def ld3(b):
        for j in range(4): a("buffer_load_dword %s, v126, s[8:11], %s offen offset:%d sc1" % (V(B0+4*b+j), S(36 if b == 2 else 35), 256*j + (1024 if b == 1 else 0)))
    poll12("h2a", ld3, "s_cmp_eq_u32 s24, 0")
    stamp(8)
    mfma(E1, M3i, B1); mfma(E1+4, M3i+4, B1)
    mfma(E0, M3i, B0); mfma(E0+4, M3i+4, B0)
    mfma(E2, M3i, B2)
    planar(B1, E1, E1+4)
    a("ds_write_b128 %s, %s offset:1280" % (V(A3), V(B1,4)))
    planar(B0, E0, E0+4)
    a("s_cmp_lg_u32 s24, 0\ns_cbranch_scc1 L_p3_a")
    pk2(B2, E2)
    a("v_cndmask_b32 %s, %s, %s, s[52:53]\nv_cndmask_b32 %s, %s, %s, s[52:53]" % (V(B0+2), V(B0+2), V(B2), V(B0+3), V(B0+3), V(B2+1)))
    a("L_p3_a:")
    a("ds_write_b128 %s, %s" % (V(A3), V(B0,4)))
    a("s_waitcnt lgkmcnt(0)\ns_barrier")
    stamp("a_3b1")
    if smap: a("s_waitcnt lgkmcnt(0)")
    for p,b in ((1,B0),(2,B1)):
        a("ds_read_b64_tr_b16 %s, %s\nds_read_b64_tr_b16 %s, %s offset:8" % (V(b,2), V(A3+p), V(b+2,2), V(A3+p)))
    a("s_waitcnt lgkmcnt(2)")
    mfma(E0, M2i, B0); mfma(E0+4, M2i+4, B0)
    a("s_waitcnt lgkmcnt(0)")
    mfma(E1, M2i+8, B1); mfma(E1+4, M2i+12, B1)
    planar(B0, E0, E0+4)
    a("ds_write_b128 %s, %s" % (V(A3+3), V(B0,4)))
    planar(B1, E1, E1+4)
    a("ds_write_b128 %s, %s offset:512" % (V(A3+3), V(B1,4)))
    a("s_waitcnt lgkmcnt(0)\ns_barrier")
    stamp("a_3b2")
    if smap: a("s_waitcnt lgkmcnt(0)")
    for e,b in ((0,B0),(1,B1)):
        a("ds_read_b64_tr_b16 %s, v15 offset:%d\nds_read_b64_tr_b16 %s, v15 offset:%d" % (V(b,2), X1I+8320*e, V(b+2,2), X1I+8320*e+8))
    a("s_waitcnt lgkmcnt(2)")
    mfma(E0, B0, M1i); mfma(E0+4, B0, M1i+4)
    a("s_waitcnt lgkmcnt(0)")
    mfma(E1, B1, M1i); mfma(E1+4, B1, M1i+4)
    planar(B0, E0, E0+4)
    a("buffer_store_dwordx2 %s, v83, s[12:15], s43 offen %s\nbuffer_store_dwordx2 %s, v83, s[12:15], s43 offen offset:512 %s" % (V(B0,2), osc, V(B0+2,2), osc))
    planar(B1, E1, E1+4)
    a("buffer_store_dwordx2 %s, v83, s[12:15], s44 offen %s\nbuffer_store_dwordx2 %s, v83, s[12:15], s44 offen offset:512 %s" % (V(B1,2), osc, V(B1+2,2), osc))
    stamp("a_3st")
    a("s_or_b32 s3, s50, s24\ns_cmp_lg_u32 s3, 0\ns_cbranch_scc1 L_p3_c")
    a("s_mov_b32 s3, 0x%x\nbuffer_store_dwordx2 v[12:13], off, s[8:11], s3 sc1" % EPA)
    a("L_p3_c:")
    if stamps: a("s_waitcnt vmcnt(0)")
    stamp(9)
    write_stamps(10, "a")
    a("s_endpgm")
    a("L_T:")
    a("s_lshr_b32 s24, s24, 6")
    a("s_and_b32 s31, s2, 7\ns_lshr_b32 s32, s2, 3")
    a("s_lshr_b32 s33, s24, 1\ns_and_b32 s34, s24, 1")
    a("s_lshl_b32 s32, s32, 2\ns_add_u32 s32, s32, s33")
    a("s_lshl_b32 s35, s31, 1\ns_add_u32 s35, s35, s34")
    a("v_bfe_u32 v4, v0, 2, 4\nv_and_b32 v5, 48, v14\nv_lshl_add_u32 v6, v4, 10, v5\nv_lshl_add_u32 v27, v4, 12, v5")
    a("s_lshl_b32 s36, s32, 15\ns_lshl_b32 s3, s35, 6\ns_add_u32 s36, s36, s3\ns_add_u32 s37, s36, 0x4000")
    a("s_lshl_b32 s38, s24, 11\ns_add_u32 s38, s38, %d\ns_mov_b32 m0, s38" % TR)
    a("s_waitcnt lgkmcnt(0)")
    stamp(1)
    a("buffer_load_dwordx4 v6, s[4:7], s36 offen lds")
    a("s_add_u32 m0, s38, 1024")
    a("buffer_load_dwordx4 v6, s[4:7], s37 offen lds")
    a("s_load_dwordx2 s[16:17], s[0:1], 8\ns_load_dwordx2 s[20:21], s[0:1], 16")
    prefetch()
    t1_late()
    srd_consts(16, 2048*514); srd_consts(20, 2048*514)
    a("s_lshl_b32 s3, s31, 7\ns_add_u32 s49, s3, 0x%x" % EPB)
    a("buffer_load_dwordx2 v[124:125], off, s[8:11], s49")
    a("s_mov_b32 s3, 0x%x\nbuffer_load_dwordx2 v[12:13], off, s[8:11], s3" % EPA)
    a("s_lshl_b32 s43, s35, 17\ns_lshl_b32 s3, s32, 6\ns_add_u32 s43, s43, s3")
    a("s_add_u32 s47, s43, 0x%x\ns_add_u32 s48, s47, 0x10000" % YT)
    a("v_lshrrev_b32 v8, 2, v2\nv_lshl_add_u32 v8, v3, 3, v8\nv_and_b32 v9, 3, v2\nv_lshlrev_b32 v9, 3, v9\nv_lshl_add_u32 v8, v8, 6, v9\nv_add_u32 v26, s38, v8")
    a("v_lshrrev_b32 v25, 1, v2\nv_lshlrev_b32 v25, 13, v25\nv_lshl_add_u32 v25, v3, 5, v25\nv_and_b32 v9, 16, v14\nv_add_u32 v25, v25, v9")
    a("s_add_u32 s43, s43, s3\ns_add_u32 s43, s43, 0x%x\ns_add_u32 s44, s43, 0x10000" % UT)
    a("s_lshl_b32 s46, s35, 9\ns_lshl_b32 s3, s32, 3\ns_add_u32 s46, s46, s3\ns_add_u32 s46, s46, 0x%x" % FLB)
    a("s_and_b32 s25, s2, 15\ns_lshr_b32 s26, s2, 4")
    def gen_ma():
        a("v_lshl_add_u32 v4, v3, 3, s24\nv_mul_u32_u24 v4, v4, v2\nv_cvt_f32_u32 v6, v4\nv_cvt_f32_u32 v4, v2\nv_mul_f32 v6, %s, v6\nv_mul_f32 v4, %s, v4" % (f32(1/128), f32(0.25)))
        cs4(C_, Sn, 6, 4, 8)
        for j in range(4):
            pk(Ma+j, C_+j, Sn+j); pk(Ma+4+j, Sn+j, C_+j, True, False)
    def gen_mi():
        a("v_lshl_add_u32 v4, v2, 3, s24\nv_cvt_f32_u32 v4, v4\nv_cvt_f32_u32 v5, v3\nv_mul_f32 v4, %s, v4\nv_mul_f32 v6, 4.0, v5\nv_mul_f32 v6, v6, v4" % f32(1/128))
        cs4(C_, Sn, 6, 4, 8)
        pk2(Mi, Sn); pk2(Mi+2, C_); pk2(Mi+4, Sn, True)
    gen_ma(); gen_mi()
    a("s_waitcnt vmcnt(2) lgkmcnt(0)")
    stamp(2)
    for h in range(2):
        for p in range(2):
            a("ds_read_b64_tr_b16 %s, v26 offset:%d" % (V(B0+4*h+2*p, 2), 32*h+256*p))
    if stamps: a("s_waitcnt lgkmcnt(0)")
    a("s_waitcnt lgkmcnt(2)\nbuffer_store_dwordx4 %s, v25, s[8:11], s43 offen sc1" % V(B0,4))
    a("s_waitcnt lgkmcnt(0)\nbuffer_store_dwordx4 %s, v25, s[8:11], s44 offen sc1" % V(B1,4))
    stamp(3)
    a("s_lshl_b32 s3, s24, 4\nv_add_u32 v15, s3, v14")
    a("v_lshrrev_b32 v4, 1, v3\nv_and_b32 v5, 1, v3\nv_lshlrev_b32 v6, 10, v5\nv_lshl_add_u32 v6, v4, 4, v6\nv_mul_u32_u24 v24, 514, v6\nv_lshl_add_u32 v60, v2, 1, v24")
    a("s_lshl_b32 s27, s24, 5\ns_add_u32 s27, s27, s25\ns_mul_i32 s27, s27, 514\ns_lshl_b32 s3, s26, 6\ns_add_u32 s27, s27, s3\ns_add_u32 s28, s27, %d\ns_add_u32 s29, s27, %d\ns_add_u32 s30, s27, %d" % (131584, 2*131584, 3*131584))
    for j in range(16): a("v_mov_b32 %s, 0" % V(Wa+j))
    for j in range(8): a("v_mov_b32 %s, 0" % V(W3+j))
    a("v_mul_u32_u24 v56, 528, v2\nv_lshl_add_u32 v56, v3, 4, v56\ns_lshl_b32 s3, s24, 6\nv_add_u32 v56, s3, v56")
    a("v_mul_u32_u24 v57, 528, v4\nv_and_b32 v6, 0x1f0, v1\nv_add_u32 v57, v57, v6\ns_mul_i32 s3, s24, 1056\nv_add_u32 v57, s3, v57")
    a("v_and_b32 v7, 7, v2\nv_mul_u32_u24 v58, 1040, v7\nv_lshrrev_b32 v8, 3, v2\nv_lshl_add_u32 v58, v8, 6, v58\nv_lshl_add_u32 v58, v3, 4, v58\ns_lshl_b32 s3, s24, 7\nv_add_u32 v58, s3, v58")
    a("v_cmp_eq_u32 vcc, v4, v8")
    a("s_waitcnt vmcnt(0)")
    a("v_lshl_add_u64 v[124:125], v[124:125], 0, 1")
    sig(124, 46)
    stamp(4)
    a("s_barrier")
    for e in range(2):
        for j in range(4):
            a("buffer_load_short_d16_hi %s, v60, s[16:19], %s offen offset:%d" % (V(Wa+8*e+j), S(27+j), 32*e))
            a("buffer_load_short_d16_hi %s, v60, s[20:23], %s offen offset:%d" % (V(Wa+8*e+4+j), S(27+j), 32*e))
    X3 = "s_cmp_eq_u32 s26, 7"
    a("%s\ns_cbranch_scc0 L_t_w" % X3)
    for j in range(4):
        a("buffer_load_short_d16_hi %s, v24, s[16:19], %s offen offset:64" % (V(W3+j), S(27+j)))
        a("buffer_load_short_d16_hi %s, v24, s[20:23], %s offen offset:64" % (V(W3+4+j), S(27+j)))
    a("L_t_w:")
    a("s_setprio 0")
    a("v_cvt_f32_u32 v4, v7\nv_cvt_f32_u32 v5, v5\nv_mul_f32 v4, %s, v4\nv_mul_f32 v5, 4.0, v5\nv_mul_f32 v6, v5, v4" % f32(0.125))
    cs4(C_, Sn, 6, 4, 8)
    pk2(Fb, Sn, True); pk2(Fb+2, C_); pk2(Fb+4, Sn)
    for i in range(6): a("v_cndmask_b32 %s, 0, %s, vcc" % (V(Fb+i), V(Fb+i)))
    a("v_mov_b32 %s, %s\nv_mov_b32 %s, %s\nv_mov_b32 %s, %s\nv_mov_b32 %s, %s" % (V(Fb+6),V(Fb+2),V(Fb+7),V(Fb+3),V(Fb+8),V(Fb),V(Fb+9),V(Fb+1)))
    a("v_lshl_add_u64 v[12:13], v[12:13], 0, 1")
    a("v_lshrrev_b32 v126, 2, v1\nv_lshlrev_b32 v11, 3, v2")
    a("v_mul_u32_u24 v61, %d, v3\nv_lshl_add_u32 v61, v2, 2, v61\nv_add_u32 v62, %d, v61\nv_add_u32 v63, %d, v61\nv_add_u32 v59, %d, v61" % (32*17408, 8*17408, 16*17408, 24*17408))
    a("s_mul_i32 s74, s25, %d\ns_lshl_b32 s3, s24, 10\ns_add_u32 s74, s74, s3\ns_lshl_b32 s3, s26, 14\ns_add_u32 s74, s74, s3\ns_add_u32 s75, s74, 8192\ns_add_u32 s76, s75, 8192" % (17*8192))
    a("s_mul_i32 s51, s24, 17408\ns_lshl_b32 s3, s25, 6\ns_add_u32 s51, s51, s3\ns_lshl_b32 s3, s26, 11\ns_add_u32 s51, s51, s3\ns_add_u32 s51, s51, 0x%x" % D2)
    a("s_lshl_b32 s78, s24, 7\ns_add_u32 s78, s78, 0x%x\ns_lshl_b32 s39, s26, 10\ns_add_u32 s39, s39, s78\ns_and_b32 s3, s25, %d\ns_lshl_b32 s3, s3, 13\ns_add_u32 s39, s39, s3\ns_add_u32 s78, s78, 0x%x" % (FLA, RA-1, FLA2))
    a("s_lshl_b32 s40, s35, 2\ns_lshr_b32 s3, s32, 4\ns_add_u32 s40, s40, s3\ns_lshl_b32 s40, s40, 7\ns_add_u32 s40, s40, 0x%x" % (FLB+FLB2))
    for j in range(4): a("v_mov_b32 %s, 0" % V(B2+j))
    a("s_setprio 3")
    if opt.get("lead_h1a"):
        a("s_cmp_lg_u32 s24, 0\ns_cbranch_scc1 L_h1l_done")
        opt["pm_h1l"] = opt["pm_h1a"]; opt["sl_h1l"] = opt.get("sl_h1l", 0)
        poll_flags("h1l", 11, 39, 12)
        a("s_barrier")
    poll_flags("h1a", 11, 39, 12)
    stamp("t_w")
    a("s_mov_b32 s42, %d" % (SPIN if EARLY else 0))
    if EARLY: prepoll("h1dp", 8, 74, 960)
    stamp(5)
    def ld2(b):
        for j in range(4): a("buffer_load_dword %s, v126, s[8:11], %s offen offset:%d sc1" % (V(B0+4*b+j), S(74+b), 256*j))
    poll12("h1d", ld2, X3)
    stamp(6)
    T2 = ((0,B0,E0,Wa),(1,B1,E1,Wa+8)); T3 = (2,B2,E2,W3)
    def third(tag, fn):
        a("%s\ns_cbranch_scc0 L_%s" % (X3, tag))
        fn(*T3)
        a("L_%s:" % tag)
    for e,b,E,w_ in T2: mfma(E, b, Ma); mfma(E+4, b, Ma+4)
    def sa2(e,b,E,w_):
        planar(b, E, E+4)
        a("ds_write_b128 %s, %s offset:%d" % (V(A2), V(b,4), LYS*e))
    for t_ in T2: sa2(*t_)
    def sa3(e,b,E,w_):
        mfma(E, b, Ma); mfma(E+4, b, Ma+4); sa2(e,b,E,w_)
    third("t3a", sa3)
    stamp("t_s1")
    a("s_waitcnt lgkmcnt(0)\ns_barrier")
    stamp("t_b1")
    if smap: a("s_waitcnt lgkmcnt(0)")
    for e,b,E,w_ in T2 + (T3,):
        a("ds_read_b64_tr_b16 %s, %s offset:%d\nds_read_b64_tr_b16 %s, %s offset:%d" % (V(b,2), V(A2+1), LYS*e, V(b+2,2), V(A2+1), LYS*e+8))
    if opt.get("g_early", 1): a("buffer_load_dwordx2 v[6:7], v11, s[8:11], s40 offen sc1")
    a("s_waitcnt lgkmcnt(4)")
    mfma(E0, Fb+2, B0); mfma(E0+4, Fb, B0)
    a("s_waitcnt lgkmcnt(2)")
    mfma(E1, Fb+2, B1); mfma(E1+4, Fb, B1)
    def sb1(e,b,E,w_):
        F = 80
        for j in range(4): a("v_mul_f32 %s, %s, %s\nv_mul_f32 %s, %s, %s" % (V(F+j), V(E+j), V(w_+j), V(F+4+j), V(E+j), V(w_+4+j)))
        for j in range(4): a("v_fma_f32 %s, -%s, %s, %s\nv_fmac_f32 %s, %s, %s" % (V(F+j), V(E+4+j), V(w_+4+j), V(F+j), V(F+4+j), V(E+4+j), V(w_+j)))
        planar(b, F, F+4)
        mfma(E, b, Fb+6); mfma(E+4, b, Fb+4)
    def sb2(e,b,E,w_):
        planar(b, E, E+4)
        a("ds_write_b128 %s, %s offset:%d" % (V(A2+2), V(b,4), LY2+LY2S*e))
    for t_ in T2: sb1(*t_)
    for t_ in T2: sb2(*t_)
    def sb3(e,b,E,w_):
        a("s_waitcnt lgkmcnt(2)")
        mfma(E, Fb+2, b); mfma(E+4, Fb, b); sb1(e,b,E,w_); sb2(e,b,E,w_)
    third("t3b", sb3)
    stamp("t_s2")
    a("s_waitcnt lgkmcnt(0)\ns_barrier")
    stamp("t_b2")
    if smap: a("s_waitcnt lgkmcnt(0)")
    for e,b,E,w_ in T2 + (T3,):
        a("ds_read_b64_tr_b16 %s, v15 offset:%d\nds_read_b64_tr_b16 %s, v15 offset:%d" % (V(b,2), LY2+LY2S*e, V(b+2,2), LY2+LY2S*e+8))
    a("s_waitcnt lgkmcnt(4)")
    mfma(E0, Mi+2, B0); mfma(E0+4, Mi, B0)
    a("s_waitcnt lgkmcnt(2)")
    mfma(E1, Mi+2, B1); mfma(E1+4, Mi, B1)
    a("s_waitcnt lgkmcnt(0)")
    mfma(E2, Mi+2, B2); mfma(E2+4, Mi, B2)
    stamp("t_f")
    a("s_waitcnt vmcnt(0)")
    def sc_(e,b,E,w_):
        for j,vo in enumerate((61,62,63,59)):
            pk(b+j, E+j, E+4+j)
            a("buffer_store_dword %s, %s, s[8:11], s51 offen offset:%d sc1" % (V(b+j), V(vo), 1024*e))
    for t_ in T2: sc_(*t_)
    third("t3c", sc_)
    stamp(7)
    a("v_cmp_ne_u64 vcc, v[6:7], v[124:125]")
    a("v_add_u32 v7, s38, v1")
    a("v_bfe_u32 v9, v0, 2, 4\nv_and_b32 v10, 48, v14\nv_mul_u32_u24 v24, 80, v9\nv_lshl_add_u32 v9, v9, 11, v10")
    a("s_mul_i32 s3, s24, 2560\nv_add3_u32 v24, v24, v10, s3\nv_mul_u32_u24 v25, 80, v2\nv_lshl_add_u32 v25, v3, 4, v25\nv_add_u32 v25, s3, v25")
    a("s_lshl_b32 s37, s32, 16\ns_lshl_b32 s3, s35, 6\ns_add_u32 s37, s37, s3\ns_add_u32 s37, s37, 1024\ns_add_u32 s36, s37, 0x8000")
    a("s_cbranch_vccz L_h1g_done")
    poll_flags("h1g", 11, 40, 124)
    stamp("t_g")
    a("s_mov_b32 s42, %d" % SPIN)
    prepoll("h2bp", 8, 47, 0)
    stamp("t_pp")
    a("L_h2b:")
    if opt.get("sl_h2b"): a("s_sleep %d" % opt["sl_h2b"])
    a("buffer_load_dwordx4 v[88:91], v27, s[8:11], s47 offen sc1\nbuffer_load_dwordx4 v[92:95], v27, s[8:11], s48 offen sc1")
    a("s_waitcnt vmcnt(0)")
    a("v_max3_u32 v4, v88, v89, v90\nv_max3_u32 v5, v91, v92, v93\nv_max3_u32 v4, v4, v94, v95\nv_max_u32 v4, v4, v5\nv_cmp_eq_u32 vcc, -1, v4")
    a("s_sub_u32 s42, s42, 1\ns_cbranch_scc1 L_h2b_done\ns_cbranch_vccnz L_h2b")
    a("L_h2b_done:")
    stamp(8)
    a("ds_write_b128 v7, v[88:91]\nds_write_b128 v7, v[92:95] offset:1024")
    if stamps: a("s_waitcnt lgkmcnt(0)")
    for h in range(2):
        for p in range(2):
            a("ds_read_b64_tr_b16 %s, v26 offset:%d" % (V(96+4*h+2*p, 2), 32*h+256*p))
    a("s_waitcnt lgkmcnt(2)\nds_write_b128 v25, v[96:99] offset:%d" % BNC)
    a("s_waitcnt lgkmcnt(1)\nds_write_b128 v25, v[100:103] offset:%d" % (BNC+1280))
    a("ds_read_b128 v[88:91], v24 offset:%d\nds_read_b128 v[92:95], v24 offset:%d" % (BNC, BNC+1280))
    a("s_waitcnt lgkmcnt(1)\nbuffer_store_dwordx4 v[88:91], v9, s[12:15], s37 offen %s" % osc)
    a("s_waitcnt lgkmcnt(0)\nbuffer_store_dwordx4 v[92:95], v9, s[12:15], s36 offen %s" % osc)
    a("s_cmp_ge_u32 s2, 8\ns_cbranch_scc1 L_yt_c")
    a("s_barrier")
    a("s_cmp_lg_u32 s24, 0\ns_cbranch_scc1 L_yt_c")
    a("buffer_store_dwordx2 v[124:125], off, s[8:11], s49 sc1")
    a("L_yt_c:")
    if stamps: a("s_waitcnt vmcnt(0)")
    stamp(9)
    write_stamps(10, "y")
    a("s_endpgm")

    a("L_end:\ns_endpgm\nLcode_end:")
    a.raw(""".section .rodata,"a"
.p2align 6
.amdhsa_kernel %s
  .amdhsa_next_free_vgpr 128
  .amdhsa_next_free_sgpr %d
  .amdhsa_accum_offset 128
  .amdhsa_group_segment_fixed_size 0
  .amdhsa_kernarg_size 120
  .amdhsa_user_sgpr_count 2
  .amdhsa_user_sgpr_kernarg_segment_ptr 1
  .amdhsa_system_sgpr_workgroup_id_x 1
.end_amdhsa_kernel""" % (k, 100 if stamps else 80))
    return a
def t2only(s):
    return s.replace("L_A:\n","L_A:\n    s_endpgm\n",1).replace("L_T:\n","L_T:\n    s_endpgm\n",1).replace("s_mov_b32 s42, %d" % SPIN,"s_mov_b32 s42, 0")
if __name__ == "__main__":
    a = gen(False); open("k.s","w").write(a.text()); print("instructions", a.ninst, "src", len(a.text()))
    a = gen(True); open("k_st.s","w").write(a.text())
    for p in sys.argv[1:]:
        a = gen(True, (p[0], int(p[1:]))); open("k_pr_%s.s" % p,"w").write(a.text())
```

```python
from gen13 import *
import gen12
def o(**k): return k
s2 = {0:0, 2:1, 3:2, "c_kf":3, 4:4, "c_b":5, 7:6, 8:7}
open("kc_0.s","w").write(t2only(gen(True, None, o(smap=s2)).text()).replace("s_memrealtime","s_memtime"))
open("mb_m.list","w").write("kc_0.s")
open("k_a.s","w").write(gen(False, None, o(pm_h1b="load")).text())
open("k_b.s","w").write(gen(False, None, o(pm_h1b="load", sl_h1b=2)).text())
open("k_c.s","w").write(gen(False, None, o(swap=0)).text())
open("k_f.s","w").write(gen12.gen(False, None, o(lead_h2ap=1, lead_h2bp=1, sl_h1b=2, sl_h1g=4, sl_h1a=2, b_early=0)).text())
```

```python
import sys, struct
import numpy as np
from asmlib import Asm
NAME = "concat_heads__spectral_gfnet__ssm_conv_s4__prompt"
def f32(x): return "0x%08x" % struct.unpack("<I", struct.pack("<f", x))[0]
def V(a, n=1): return "v%d" % a if n == 1 else "v[%d:%d]" % (a, a+n-1)
def S(a, n=1): return "s%d" % a if n == 1 else "s[%d:%d]" % (a, a+n-1)
def bf(x):
    x = np.asarray(x, np.float64); x = np.where(np.abs(x) < 1e-12, 0.0, x)
    u = x.astype(np.float32).view(np.uint32)
    return ((u + 0x7fff + ((u >> 16) & 1)) >> 16).astype(np.uint32)
def frag(vals):
    b = bf(vals); return (b[..., 0::2] | (b[..., 1::2] << 16)).astype(np.uint32)

QS = 9*16384
D1 = 0x000000; UT = 0x240000; YT = UT
FLA = 0x440000; FLA2 = 0; FLB = 0x460000; FLB2 = 0x2000; EPA = 0x464000; EPB = 0x464080
WS_USED = 0x468000
STAMP_OFF = 0xC800000
SPIN = 100000
RAW = 0; X1 = 16384; X2 = 33792; LY = 0; LYS = 16*528; LY2 = 3*LYS; LY2S = 8*1040; TR = 50432
X2I = X2; X1I = X2I + 20480; BNC = 0
UPAD = 576; UCP = UPAD + 4096 + 32; USTR = 2*UCP; CP = 2*USTR; CSTR = 4160; GP = 57*16; CCH = 32*GP
LDS_TOTAL = CP + 2*CCH
assert LDS_TOTAL <= 81920 and UCP % 64 == 32
assert LY2 + 3*LY2S <= TR and X1I + 16*1040 <= LDS_TOTAL

def gen(stamps=False, probe=None, opt=None):
    opt = opt or {}
    RA = opt.get('RA', 2)
    opt.setdefault('pm_h1a', 'atom'); opt.setdefault('g_early', 0); opt.setdefault('pm_h1b', 'atom'); opt.setdefault('pm_h1g', 'atom'); opt.setdefault('lead_h2ap', 1); opt.setdefault('lead_h2bp', 1); opt.setdefault('sl_h1g', 4); opt.setdefault('sl_h1a', 2)
    a = Asm()
    if probe is not None: stamps = True
    ST = 80
    smap = opt.get("smap")
    def stamp(i):
        if smap is not None: i = smap.get(i)
        elif not isinstance(i, int): i = None
        if stamps and i is not None: a("s_memrealtime %s" % S(ST+2*i, 2))
    def write_stamps(n, tag):
        if not stamps: return
        a("s_waitcnt lgkmcnt(0)")
        if probe is not None:
            role, idx = probe
            if role != tag: return
            a("s_add_u32 s56, s%d, 3000" % (ST+2*idx))
            a("Lpr_%s:\ns_memrealtime s[58:59]\ns_waitcnt lgkmcnt(0)\ns_sub_u32 s57, s58, s56\ns_cmp_lt_i32 s57, 0\ns_cbranch_scc1 Lpr_%s" % (tag, tag))
            return
        sw = opt.get("stampwave", 0)
        a("v_cmp_eq_u32 vcc, %d, v0\ns_and_saveexec_b64 s[58:59], vcc\ns_cbranch_execz Lst_%s" % (64*sw, tag))
        a("s_mov_b32 s10, 0x10000000")
        a("s_lshl_b32 s57, s2, 7\ns_add_u32 s57, s57, 0x%x\nv_mov_b32 v100, s57" % STAMP_OFF)
        for i in range(n):
            a("v_mov_b32 v102, s%d\nv_mov_b32 v103, s%d" % (ST+2*i, ST+1+2*i))
            a("buffer_store_dwordx2 v[102:103], v100, s[8:11], 0 offen offset:%d\ns_nop 1" % (8*i))
        a("Lst_%s:" % tag)
    def cs4(c, s, f0, step, t):
        a("v_add_f32 %s, %s, %s" % (V(t), V(f0), V(step)))
        a("v_fma_f32 %s, 2.0, %s, %s" % (V(t+1), V(step), V(f0)))
        a("v_fma_f32 %s, 2.0, %s, %s" % (V(t+2), V(step), V(t)))
        src = [f0, t, t+1, t+2]
        for j in range(4):
            a("v_cos_f32 %s, %s" % (V(c+j), V(src[j])))
            a("v_sin_f32 %s, %s" % (V(s+j), V(src[j])))
    def pk(d, x, y, nx=False, ny=False):
        a("v_cvt_pk_bf16_f32 %s, %s%s, %s%s" % (V(d), "-" if nx else "", V(x), "-" if ny else "", V(y)))
    def pk2(d, x, neg=False):
        pk(d, x, x+1, neg, neg); pk(d+1, x+2, x+3, neg, neg)
    def planar(d, re, im): pk2(d, re); pk2(d+2, im)
    def inter(d, re, im):
        for j in range(4): pk(d+j, re+j, im+j)
    def mfma(d, x, y, c="0"):
        a("v_mfma_f32_16x16x32_bf16 %s, %s, %s, %s" % (V(d,4), V(x,4), V(y,4), c if c == "0" else V(c,4)))
    def srd_consts(d, nbytes):
        a("s_mov_b32 %s, 0x%x\ns_mov_b32 %s, 0x20000" % (S(d+2), nbytes, S(d+3)))
    def tab_srd():
        a("s_getpc_b64 s[52:53]\ns_add_u32 s52, s52, Ltab@rel32@lo+4\ns_addc_u32 s53, s53, Ltab@rel32@hi+12")
        srd_consts(52, TABSZ)
    def tload(d, voff, name, extra=0):
        off = TOFF[name] + extra
        if off < 4096: a("buffer_load_dwordx4 %s, %s, s[52:55], 0 offen offset:%d" % (V(d,4), V(voff), off))
        else: a("s_mov_b32 s3, 0x%x\nbuffer_load_dwordx4 %s, %s, s[52:55], s3 offen" % (off, V(d,4), V(voff)))
    def poll_flags(tag, voff, soff, vtag, lanes="0xffff"):
        mode = opt.get("pm_"+tag, "load")
        def loop(lab, atom, sl):
            a("L_%s:" % lab)
            if sl: a("s_sleep %d" % sl)
            if atom: a("v_mov_b32 v4, 0\nv_mov_b32 v5, 0\nbuffer_atomic_or_x2 v[4:5], %s, s[8:11], %s offen sc0 sc1\ns_waitcnt vmcnt(0)" % (V(voff), S(soff)))
            else: a("buffer_load_dwordx2 v[4:5], %s, s[8:11], %s offen sc1\ns_waitcnt vmcnt(0)" % (V(voff), S(soff)))
            a("v_cmp_ne_u64 vcc, v[4:5], %s" % V(vtag,2))
            a("s_sub_u32 s42, s42, 1\ns_cbranch_scc1 L_%s_out\ns_cbranch_vccnz L_%s" % (tag, lab))
        a("s_mov_b32 s42, %d" % SPIN)
        sl = opt.get("sl_"+tag, 0)
        if mode.startswith("two"):
            a("s_mov_b64 exec, 0x8000")
            loop(tag+"_1", True, sl); sl = 0
        a("s_mov_b64 exec, %s" % lanes)
        loop(tag, mode in ("atom","twoa"), sl)
        a("L_%s_out:\ns_mov_b64 exec, -1" % tag)
        a("L_%s_done:" % tag)
    def prepoll(tag, voff, soff, off):
        mode = opt.get("pm_"+tag, "load")
        a("L_%s:" % tag)
        if mode == "none": return
        allp = mode.startswith("all")
        lead = opt.get("lead_"+tag)
        if lead: a("s_cmp_lg_u32 s24, 0\ns_cbranch_scc1 L_%s_o" % tag)
        a("s_mov_b64 exec, %s" % ("0xffffffff" if allp else "1"))
        a("L_%s_l:" % tag)
        if opt.get("sl_"+tag): a("s_sleep %d" % opt["sl_"+tag])
        ad = "%s, s[8:11], %s offen" % (V(voff), S(soff)) if allp else "off, s[8:11], %s offset:%d" % (S(soff), off)
        if mode in ("atom","alla"): a("v_mov_b32 v4, 0\nbuffer_atomic_or v4, %s sc0 sc1\ns_waitcnt vmcnt(0)" % ad)
        else: a("buffer_load_dword v4, %s sc1\ns_waitcnt vmcnt(0)" % ad)
        if tag == "h2ap": a("v_and_b32 v4, 1, v4\nv_cmp_eq_u32 vcc, 0, v4")
        else: a("v_cmp_eq_u32 vcc, -1, v4")
        a("s_sub_u32 s42, s42, 1\ns_cbranch_scc1 L_%s_o\ns_cbranch_vccnz L_%s_l" % (tag, tag))
        a("L_%s_o:\ns_mov_b64 exec, -1\ns_mov_b32 s42, %d" % (tag, SPIN))
        if lead: a("s_barrier")

    a.raw("; @launch grid=(512,1,1) block=(512,1,1) lds=%d" % LDS_TOTAL)
    a.raw('.amdgcn_target "amdgcn-amd-amdhsa--gfx950"\n.text')
    k = NAME + "_kernel"
    a.raw(".globl %s\n.p2align 8\n.type %s,@function\n%s:" % (k,k,k))
    B0, B1, B2 = 88, 92, 96
    E0, E1, E2 = 100, 108, 116
    C_, Sn = 116, 120
    Ma, Fb, Mi, A2 = 32, 40, 50, 56
    Wa = 64; F0, F1 = 16, 80
    M1re, M1im, M3, M2, A1 = 32, 36, 40, 48, 64
    osc = opt.get("osc", "")
    W3 = 16
    NT = opt.get('nt', 'nt'); NTW = opt.get('ntw', ''); WPOS = opt.get('wpos', 2)
    def t1_late():
        a("s_load_dwordx2 s[12:13], s[0:1], 96")
        srd_consts(8, WS_USED); srd_consts(12, 0x400000)
    def sig(vt, soff, mask=1, voff=None):
        a("s_mov_b64 exec, 0x%x" % mask)
        if voff is None: a("buffer_store_dwordx2 %s, off, s[8:11], %s sc1" % (V(vt,2), S(soff)))
        else: a("buffer_store_dwordx2 %s, %s, s[8:11], %s offen sc1" % (V(vt,2), V(voff), S(soff)))
        a("s_mov_b64 exec, -1")
    def derive(m, m1, m2):
        a("v_xor_b32 %s, %s, %s\nv_xor_b32 %s, %s, %s" % (V(m+4), V(m+2), V(m1), V(m+5), V(m+3), V(m1)))
        a("v_xor_b32 %s, %s, %s\nv_xor_b32 %s, %s, %s" % (V(m+6), V(m), V(m2), V(m+7), V(m+1), V(m2)))
    def poll12(tag, loads, cond, check=True):
        a("L_%s:" % tag)
        if opt.get("sl_"+tag): a("s_sleep %d" % opt["sl_"+tag])
        loads(0); loads(1)
        a("%s\ns_cbranch_scc0 L_%s_w" % (cond, tag))
        loads(2)
        a("L_%s_w:\ns_waitcnt vmcnt(0)" % tag)
        if not check: return
        for i in range(4): a("v_bitop3_b32 %s, %s, %s, %s bitop3:0x80" % (V(4+i), V(88+3*i), V(89+3*i), V(90+3*i)))
        a("v_bitop3_b32 v4, v4, v5, v6 bitop3:0x80\nv_bitop3_b32 v4, v4, v7, 1 bitop3:0x80\nv_cmp_eq_u32 vcc, 0, v4")
        a("s_sub_u32 s42, s42, 1\ns_cbranch_scc1 L_%s_done\ns_cbranch_vccnz L_%s" % (tag, tag))
        a("L_%s_done:" % tag)
    def prefetch():
        if not opt.get("pf", 1): return
        a("s_getpc_b64 s[72:73]\nLpf%d:\ns_and_b32 s74, s2, 0x78\ns_add_u32 s74, s74, s24\ns_lshl_b32 s74, s74, 7\ns_min_u32 s74, s74, Lcode_end-%s-4" % (npf[0], k))
        a("s_sub_u32 s72, s72, Lpf%d-%s\ns_subb_u32 s73, s73, 0\ns_load_dword s75, s[72:73], s74" % (npf[0], k))
        npf[0] += 1
    npf = [0]
    def wsadj():
        if opt.get("wsbase"): a("s_cselect_b32 s51, 1, 0\ns_add_u32 s8, s8, 0x%x\ns_addc_u32 s9, s9, 0\ns_cmp_lg_u32 s51, 0" % opt["wsbase"])
    stamp(0)
    a("s_load_dwordx2 s[8:9], s[0:1], 112")
    if opt.get("swap", 1): a("s_xor_b32 s2, s2, 256")
    a("s_cmp_lt_u32 s2, 128\ns_cselect_b32 s3, 24, 0")
    a("s_load_dwordx2 s[4:5], s[0:1], s3")
    a("s_load_dwordx16 s[56:71], s[0:1], 32")
    a("s_setprio 3")
    a("v_readfirstlane_b32 s24, v0")
    a("v_lshlrev_b32 v14, 4, v0\nv_and_b32 v2, 15, v0\nv_bfe_u32 v3, v0, 4, 2\nv_and_b32 v1, 0x3f0, v14")
    srd_consts(4, 0x200000)
    a("s_cbranch_scc1 L_T")
    a("s_cmp_lt_u32 s2, 256\ns_cbranch_scc1 L_A")
    a("s_cmp_ge_u32 s2, 512\ns_cbranch_scc1 L_end")
    a("s_sub_u32 s25, s2, 256")
    a("s_lshl_b32 s3, s25, 9\nv_and_b32 v6, 255, v0\nv_lshl_add_u32 v5, v6, 1, s3")
    a("s_lshl_b32 s3, s25, 2\ns_cmp_ge_u32 s24, 256")
    for i in range(6): a("v_mov_b32 %s, 0" % V(16+i))
    a("s_waitcnt lgkmcnt(0)")
    stamp(1)
    wsadj()
    a("s_load_dword s30, s[68:69], s3\ns_load_dword s31, s[70:71], s3")
    a("s_load_dwordx4 s[16:19], s[0:1], 8")
    for i in range(2): a("global_load_short_d16_hi %s, v5, %s %s" % (V(16+i), S(56+2*i,2), NT))
    a("s_cbranch_scc1 L_type2")
    for i in range(2,6): a("global_load_short_d16_hi %s, v5, %s %s" % (V(16+i), S(56+2*i,2), NT))
    a("L_type2:")
    K1, K2, GA = 24, 28, 32
    a("s_setprio 1")
    srd_consts(8, WS_USED)
    a("s_lshr_b32 s24, s24, 6")
    a("s_bfe_u32 s26, s24, 0x10001\ns_mul_i32 s27, s26, %d\ns_add_u32 s27, s27, %d\ns_mul_i32 s28, s26, %d" % (CCH, CP, USTR))
    a("s_and_b32 s29, s24, 1\ns_lshr_b32 s32, s24, 2\ns_lshl_b32 s3, s32, 1\ns_add_u32 s29, s29, s3")
    a("v_bfe_u32 v4, v0, 2, 5\nv_mul_u32_u24 v4, %d, v4\nv_and_b32 v7, 3, v0\nv_lshl_add_u32 v4, v7, 2, v4\nv_add_u32 %s, s27, v4" % (GP, V(K1)))
    a("v_bfrev_b32 v4, v3\nv_lshrrev_b32 v4, 27, v4\nv_mul_u32_u24 v4, %d, v4\nv_lshl_add_u32 v4, v2, 4, v4\nv_add_u32 %s, s27, v4" % (GP, V(K1+1)))
    a("s_lshl_b32 s3, s29, 8\nv_add_u32 %s, s3, %s" % (V(K1+2), V(K1+1)))
    a("v_and_b32 v4, 3, v2\nv_mul_u32_u24 v4, %d, v4\nv_lshrrev_b32 v10, 2, v2\nv_sub_u32 v10, v3, v10\nv_lshl_add_u32 v4, v10, 4, v4\ns_add_u32 s3, s27, %d\nv_add_u32 %s, s3, v4" % (CSTR, 2*(2040-256*7)-64, V(K2)))
    a("v_and_b32 v7, 1, v2\nv_lshrrev_b32 v4, 1, v2\nv_lshlrev_b32 v4, 6, v4\nv_lshl_add_u32 v4, v3, 4, v4\nv_mul_u32_u24 v10, %d, v7\ns_add_u32 s3, s28, %d\nv_add3_u32 %s, v4, v10, s3\nv_lshl_add_u32 %s, v7, 3, v4" % (UCP, UPAD-64, V(K2+1), V(K2+2)))
    a("s_mul_i32 s3, s32, %d\ns_add_u32 s3, s3, %d\nv_lshl_add_u32 %s, v6, 4, s3" % (CCH, CP, V(K2+3)))
    a("v_mul_u32_u24 v4, %d, v7\nv_lshrrev_b32 v47, 1, v0\nv_lshl_add_u32 v15, v47, 4, v4" % USTR)
    for j in range(4): a("v_mov_b32 %s, 0" % V(120+j))
    a("v_cmp_gt_u32 vcc, 72, v0\ns_and_saveexec_b64 s[40:41], vcc\nds_write_b128 v15, v[120:123]\nds_write_b128 v15, v[120:123] offset:%d\ns_mov_b64 exec, -1" % UCP)
    a("s_lshr_b32 s3, s25, 5\ns_lshl_b32 s3, s3, 7\ns_add_u32 s46, s3, 0x%x" % EPB)
    a("buffer_load_dwordx2 v[12:13], off, s[8:11], s46")
    a("s_lshl_b32 s44, s25, 13\ns_add_u32 s45, s44, 0x%x\ns_add_u32 s44, s44, 0x%x" % (UT, YT))
    a("s_lshr_b32 s39, s25, 4\ns_lshl_b32 s39, s39, 9\ns_add_u32 s39, s39, 0x%x\nv_lshrrev_b32 v22, 1, v1" % FLB)
    a("v_lshlrev_b32 v4, 3, v6\nv_sub_u32 v4, 2047, v4\nv_max_u32 v5, 143, v4\nv_sub_u32 v4, v4, v5\nv_cvt_f32_u32 v5, v5")
    a("s_mul_i32 s34, s32, %d\ns_add_u32 s3, s34, %d\nv_mov_b32 v9, s34\nv_lshl_add_u32 v4, v4, 2, s3" % (USTR, UPAD - 4*0x4280))
    for i in range(0, 12, 2):
        a("v_subrev_f32 v7, %s, v5\nv_subrev_f32 v8, %s, v5\nv_cvt_pk_bf16_f32 v7, v7, v8\nv_and_b32 v8, 0xffff, v7\nv_lshl_add_u32 %s, v8, 2, v4" % (f32(float(i)), f32(float(i+1)), V(GA+i)))
        if i < 10: a("v_lshrrev_b32 v7, 16, v7\nv_lshl_add_u32 %s, v7, 2, v4" % V(GA+i+1))
    a("v_cmp_eq_u32 vcc, 255, v6")
    for i in range(8,11): a("v_cndmask_b32 %s, %s, v9, vcc" % (V(GA+i), V(GA+i)))
    a("s_waitcnt lgkmcnt(0)")
    a("s_lshl_b32 s3, s26, 4\ns_lshr_b32 s30, s30, s3\ns_lshl_b32 s30, s30, 16\ns_lshl_b32 s3, s32, 4\ns_lshr_b32 s31, s31, s3\ns_lshl_b32 s31, s31, 16")
    a("v_mov_b32 v46, %s\nv_mul_f32 v46, s30, v46\nv_exp_f32 v46, v46\nv_cvt_pk_bf16_f32 v46, v46, v46\nv_and_b32 v46, 0xffff0000, v46" % f32(1.4426950408889634))
    def w_pf():
        if opt.get("wpf", 1) == 0: return
        fl = opt.get("wpfnt", "nt")
        a("global_load_dwordx2 v[124:125], v126, s[16:17] %s\nglobal_load_dwordx2 v[124:125], v126, s[18:19] %s" % (fl, fl))
    a("s_and_b32 s3, s25, 0xf8\ns_add_u32 s3, s3, s24\ns_lshl_b32 s3, s3, 3\ns_and_b32 s33, s25, 7\ns_add_u32 s3, s3, s33\ns_mul_i32 s3, s3, 514\ns_add_u32 s3, s3, 2\nv_add_u32 v126, s3, v22")
    if opt.get("wpf", 1) == 2: w_pf()
    a("s_cmp_ge_u32 s24, 4")
    a("s_waitcnt vmcnt(%d)" % (3 if opt.get("wpf", 1) == 2 else 1))
    stamp(2)
    if opt.get("wpf", 1) == 1: w_pf()
    a("v_mul_f32 v44, v46, v16\nv_mul_f32 v45, v46, v17\nv_mul_f32 v44, %s, v44\nv_mul_f32 v45, 0.15915494, v45" % f32(1.4426950408889634))
    def directs(lst):
        for i,(d,p) in enumerate(lst): a("v_mul_f32 %s, %s, v44\nv_mul_f32 %s, %s, v45" % (V(4+2*i), f32(p), V(5+2*i), f32(p)))
        for i,(d,p) in enumerate(lst): a("v_fract_f32 %s, %s" % (V(5+2*i), V(5+2*i)))
        for i,(d,p) in enumerate(lst): a("v_exp_f32 %s, %s\nv_cos_f32 %s, %s\nv_sin_f32 %s, %s" % (V(4+2*i), V(4+2*i), V(d), V(5+2*i), V(d+1), V(5+2*i)))
        for i,(d,p) in enumerate(lst): a("v_pk_mul_f32 %s, %s, %s op_sel_hi:[1,0]" % (V(d,2), V(d,2), V(4+2*i,2)))
    def cmul1(z, x, y): a("v_pk_mul_f32 %s, %s, %s op_sel:[0,0] op_sel_hi:[0,1]" % (V(z,2), V(x,2), V(y,2)))
    def cmul2(z, x, y): a("v_pk_fma_f32 %s, %s, %s, %s op_sel:[1,1,0] op_sel_hi:[1,0,1] neg_lo:[1,0,0]" % (V(z,2), V(x,2), V(y,2), V(z,2)))
    def cmuls(ops):
        for z,x,y in ops: cmul1(z,x,y)
        for z,x,y in ops: cmul2(z,x,y)
    tcount = [0]; pend = []
    def put(rows, neg=False):
        ts = []
        for row, r in rows:
            t = 4 + (tcount[0] % 8); tcount[0] += 1; ts.append(t)
            pk(t, r, r+1, False, neg)
        pend.extend((row, t) for (row, r), t in zip(rows, ts))
        while len(pend) >= 2:
            (r0,t0),(r1,t1) = pend.pop(0), pend.pop(0)
            a("ds_write2_b32 %s, %s, %s offset0:%d offset1:%d" % (V(K1), V(t0), V(t1), 4*r0, 4*r1))
    def putflush():
        while pend:
            r0,t0 = pend.pop(0); a("ds_write_b32 %s, %s offset:%d" % (V(K1), V(t0), 16*r0))
    a("s_cbranch_scc1 L_kg1")
    e8, e32, e128, e256 = 48, 50, 52, 54
    directs([(e8, 8.0), (e128, 128.0), (96, 1024.0)])
    EE = 64
    a("v_pk_mul_f32 v[18:19], v[18:19], v[46:47] op_sel_hi:[1,0]")
    cmuls([(EE, 20, 18), (56, e8, e8), (e256, e128, e128), (98, 96, e128)])
    cmuls([(EE+2, EE, e8), (EE+4, EE, 56), (e32, 56, 56), (100, 96, e256), (102, 98, e256)])
    cmuls([(EE+6, EE+2, 56), (104, 100, e256), (106, 102, e256)])
    put([(48+i, 96+2*i) for i in range(4)])
    for blk in range(1,4):
        ops = [(EE+8*blk+2*i, EE+8*(blk-1)+2*i, e32) for i in range(4)]
        if blk == 1: ops += [(108, 104, e256), (110, 106, e256)]
        if blk == 2: ops += [(112, 108, e256)]
        cmuls(ops)
        put([(4*(blk-1)+i, EE+8*(blk-1)+2*i) for i in range(4)], True)
    put([(12+i, EE+24+2*i) for i in range(4)], True)
    put([(52+i, 104+2*i) for i in range(5)])
    putflush()
    a("s_branch L_kg2")
    a("L_kg1:")
    LO = 48
    BL = 64; TM = 80
    directs([(LO+2, 1.0), (BL+2, 128.0)])
    a("v_mov_b32 v48, 0x3f80"); pend.append((16, 48))
    cmuls([(LO+4, LO+2, LO+2), (BL+4, BL+2, BL+2)])
    cmuls([(LO+6, LO+4, LO+2), (LO+8, LO+4, LO+4), (BL+6, BL+4, BL+2), (BL+8, BL+4, BL+4)])
    cmuls([(LO+10, LO+8, LO+2), (LO+12, LO+8, LO+4), (LO+14, LO+8, LO+6), (BL+10, BL+8, BL+2), (BL+12, BL+8, BL+4), (BL+14, BL+8, BL+6)])
    put([(16+kx, LO+2*kx) for kx in range(1,8)])
    cmuls([(TM+2*kx, LO+2*kx, BL+2) for kx in range(1,8)])
    put([(24, BL+2), (32, BL+4), (36, BL+6), (40, BL+8), (42, BL+10), (44, BL+12), (46, BL+14)])
    cmuls([(TM+16+2*i, LO+4*(1+i%3), BL+4+2*(i//3)) for i in range(6)])
    put([(24+kx, TM+2*kx) for kx in range(1,8)])
    cmuls([(TM+2*i, LO+8, BL+8+2*i) for i in range(4)])
    put([(33+(i%3)+4*(i//3), TM+16+2*i) for i in range(6)])
    put([(41+2*i, TM+2*i) for i in range(4)])
    putflush()
    a("L_kg2:")
    a("s_waitcnt vmcnt(%d) lgkmcnt(0)\ns_barrier" % (2 if opt.get("wpf", 1) else 0))
    stamp(3)
    if stamps: a("s_waitcnt lgkmcnt(0)")
    a("v_lshl_add_u64 v[12:13], v[12:13], 0, 1")
    a("s_cmp_eq_u32 s24, 7\ns_cbranch_scc1 L_upoll")
    a("s_and_b32 s3, s24, 5\ns_cmp_eq_u32 s3, 5\ns_cbranch_scc1 L_kg3")
    for ks in range(8):
        a("ds_read_b128 %s, %s offset:%d\nds_read_b128 %s, %s offset:%d" % (V(48+8*ks,4), V(K1+2), GP*ks+256, V(52+8*ks,4), V(K1+1), GP*ks))
    a("s_add_u32 s35, s28, %d\ns_cmp_eq_u32 s29, 1\ns_cbranch_scc1 L_ka1\ns_cmp_eq_u32 s29, 0\ns_cbranch_scc1 L_ka0" % UPAD)
    a("v_lshlrev_b32 v4, 2, v2\nv_lshl_add_u32 v4, v3, 8, v4\nv_add_u32 v4, 2048, v4\nv_mov_b32 v5, 64\nv_mov_b32 v6, 128\ns_branch L_ka2")
    a("L_ka0:\nv_lshrrev_b32 v5, 1, v3\nv_lshlrev_b32 v4, 5, v2\nv_lshl_add_u32 v4, v5, 9, v4\nv_and_b32 v5, 1, v3\nv_lshl_add_u32 v4, v5, 4, v4\nv_mov_b32 v5, 4\nv_mov_b32 v6, 8\ns_branch L_ka2")
    a("L_ka1:\nv_lshrrev_b32 v5, 1, v3\nv_sub_u32 v4, 4, v5\nv_lshlrev_b32 v4, v4, v2\nv_lshl_add_u32 v4, v3, 8, v4\nv_add_u32 v4, 1024, v4\nv_mul_u32_u24 v6, 120, v5\nv_add_u32 v6, 8, v6\nv_mov_b32 v5, 4")
    a("L_ka2:\nv_add_u32 v4, s35, v4\nv_add_u32 v6, v4, v6\nv_add_u32 v7, v6, v5\nv_add_u32 v5, v4, v5")
    for ks in range(8):
        a("s_waitcnt lgkmcnt(%d)" % (14-2*ks))
        mfma(112, 48+8*ks, 52+8*ks, "0" if ks == 0 else 112)
    for j in range(4): a("ds_write_b32 %s, %s" % (V(4+j), V(112+j)))
    a("L_kg3:")
    a("s_waitcnt lgkmcnt(0)\ns_barrier")
    a("buffer_load_dwordx4 v[16:19], v14, s[8:11], s45 offen sc1")
    stamp("c_kf")
    for i in range(11): a("ds_read_b32 %s, %s" % (V(80+i), V(GA+i)))
    a("v_and_b32 v6, 255, v0\nv_cmp_eq_u32 vcc, 255, v6\nv_mov_b32 v23, s31\nv_cndmask_b32 v23, 0, v23, vcc")
    a("v_cmp_lt_u32 vcc, 252, v6\ns_and_saveexec_b64 s[40:41], vcc\ns_cbranch_execz L_kg4")
    for s_ in range(4): a("ds_write_b128 %s, v[120:123] offset:%d" % (V(K2+3), s_*CSTR+48))
    a("L_kg4:\ns_mov_b64 exec, -1")
    a("s_lshl_b32 s3, s26, 12\ns_add_u32 s44, s44, s3")
    a("s_waitcnt lgkmcnt(0)")
    a("v_add_f32 v87, v87, v23")
    for d in range(4):
        for kx in range(4): pk(48+4*d+kx, 80+d+2*kx, 80+d+2*kx+1)
        a("ds_write_b128 %s, %s offset:%d" % (V(K2+3), V(48+4*d,4), (3-d)*CSTR))
    stamp(4)
    a("s_setprio 2")
    ACC = 32; FR = 48
    for j in range(16): a("v_mov_b32 %s, 0" % V(ACC+j))
    stamp(5)
    a("s_barrier")
    if opt.get("uearly", 0):
        a("s_mov_b32 s42, %d\ns_branch L_uchk\nL_uld:\nbuffer_load_dwordx4 v[16:19], v14, s[8:11], s45 offen sc1\nL_uchk:\ns_waitcnt vmcnt(0)" % SPIN)
        a("v_max3_u32 v4, v16, v17, v18\nv_max_u32 v4, v4, v19\nv_cmp_eq_u32 vcc, -1, v4\ns_sub_u32 s42, s42, 1\ns_cbranch_scc1 L_udone\ns_cbranch_vccnz L_uld\nL_udone:")
    a("s_mov_b32 s42, 8\ns_waitcnt vmcnt(0)")
    stamp(6)
    a("ds_write_b128 v15, v[16:19] offset:%d" % (UCP+UPAD))
    a("ds_write_b64 v15, v[16:17] offset:%d\nds_write_b64 v15, v[18:19] offset:%d" % (UPAD+8, UPAD+16))
    a("v_cmp_gt_u32 vcc, 2, v0\ns_and_saveexec_b64 s[40:41], vcc\nds_write_b64 v15, v[120:121] offset:%d\ns_mov_b64 exec, -1" % UPAD)
    a("s_waitcnt lgkmcnt(0)\ns_barrier")
    stamp("c_b")
    if smap: a("s_waitcnt lgkmcnt(0)")
    a("s_cmp_ge_u32 s24, 4\ns_cbranch_scc1 L_fchk")
    a("s_bitcmp1_b32 s24, 0\ns_cbranch_scc1 L_cv1")
    def conv(tag, tiles, seq):
        n = len(seq)
        keys = []
        for _,x,y in seq:
            for kx in (x,y):
                if kx not in keys: keys.append(kx)
        reg = {kx: FR+4*i for i,kx in enumerate(keys)}
        assert FR+4*len(keys) <= 120
        last = {}; first = {}
        for i,(_,x,y) in enumerate(seq):
            for kx in (x,y):
                last[kx] = i; first.setdefault(kx, i)
        used = {n-1}; gap = {}
        for kx in sorted(keys, key=lambda q: (first[q]+n, last[q])):
            gq = last[kx]
            while gq % n in used and len(used) < n: gq += 1
            if first[kx] + n - gq < 7: gq = last[kx]
            used.add(gq % n); gap[kx] = gq
        free = [i for i in range(n-1) if i not in {gq % n for gq in gap.values()}]
        dec = {"A": (free + [3])[0], "B": (free[1:] + [9])[0]}
        def rd(kx, rel):
            if kx[0] == "A": a("ds_read_b128 %s, %s offset:%d" % (V(reg[kx],4), V(K2), (7-kx[1])*512 + rel))
            else: a("ds_read_b128 %s, %s offset:%d" % (V(reg[kx],4), V(K2+1), kx[1]*512 + rel))
        order = sorted(keys, key=lambda q: (gap[q] % n, keys.index(q)))
        for kx in order:
            if gap[kx] < n: rd(kx, 64)
        a("L_cvl%s:" % tag)
        WG_ = opt.get("waitgroup", 4)
        for i,(ti,x,y) in enumerate(seq):
            if i % WG_ == 0:
                need = [kx for ii in range(i, min(i+WG_, n)) for kx in seq[ii][1:] if first[kx] == ii]
                if need:
                    def age(kx):
                        g0 = gap[kx] - n
                        assert g0 < i
                        cnt = 0
                        for q in order:
                            for gg in ((gap[q] % n,) if gap[q] >= n else (gap[q] - n, gap[q])):
                                if gg < i and (gg > g0 or (gg == g0 and order.index(q) > order.index(kx))): cnt += 1
                        return cnt
                    a("s_waitcnt lgkmcnt(%d)" % min(min(age(kx) for kx in need), 15))
            mfma(ACC+4*ti, reg[x], reg[y], ACC+4*ti)
            for kx in order:
                if gap[kx] % n == i:
                    rel = (64 if gap[kx] >= n else 0) + (64 if i > dec[kx[0]] else 0)
                    rd(kx, rel)
            for kk,rg in (("A",K2),("B",K2+1)):
                if dec[kk] == i: a("v_subrev_u32 %s, 64, %s" % (V(rg), V(rg)))
            if i == 5: a("s_sub_u32 s42, s42, 1")
            if i == 6: a("s_cmp_lg_u32 s42, 0")
        a("s_cbranch_scc1 L_cvl%s" % tag)
        a("s_barrier")
        stamp(7)
        for ti,e in reversed(list(enumerate(tiles))):
            pk2(4+2*ti, ACC+4*ti)
            a("buffer_store_dwordx2 %s, %s, s[8:11], s44 offen offset:%d sc1" % (V(4+2*ti,2), V(K2+2), e*512))
        if stamps: a("s_waitcnt vmcnt(0)")
        stamp(8)
    seq0 = [(0,("A",0),("B",7)), (1,("A",0),("B",6)), (2,("A",0),("B",1,"x")), (3,("A",0),("B",0,"x")),
            (0,("A",1),("B",6)), (1,("A",1),("B",5)), (2,("A",1),("B",0,"x"))]
    for m in range(2,8):
        seq0.append((0,("A",m),("B",7-m)))
        if m < 7: seq0.append((1,("A",m),("B",6-m)))
    conv("0", [7,6,1,0], seq0)
    write_stamps(9, "c")
    a("s_endpgm")
    a("L_cv1:")
    seq1 = []
    for m in range(6):
        for ti,e in enumerate([5,4,3,2]):
            if m <= e: seq1.append((ti,("A",m),("B",e-m)))
    conv("1", [5,4,3,2], seq1)
    if opt.get("stampwave",0) & 1: write_stamps(9, "d")
    a("s_endpgm")
    a("L_upoll:")
    if opt.get("wgb", 0):
        a("s_lshr_b32 s39, s25, 5\ns_lshl_b32 s39, s39, 7\ns_and_b32 s3, s25, %d\ns_lshl_b32 s3, s3, 10\ns_add_u32 s39, s39, s3\ns_add_u32 s39, s39, 0x%x" % (opt["wgb"]-1, FLB))
        poll_flags("h1b", 22, 39, 12)
    else: poll_flags("h1b", 22, 39, 12, "-1")
    a("s_branch L_kg3")
    a("L_fchk:")
    for j in range(4): a("v_mov_b32 %s, -1" % V(116+j))
    a("s_add_u32 s45, s45, 0x%x\ns_sub_u32 s44, s45, 4096" % (YT-UT))
    a("buffer_store_dwordx4 v[116:119], v14, s[8:11], s44 offen sc1\nbuffer_store_dwordx4 v[116:119], v14, s[8:11], s45 offen sc1")
    a("s_lshr_b32 s3, s25, 4\ns_lshl_b32 s3, s3, 2\ns_add_u32 s3, s3, s24\ns_lshl_b32 s3, s3, 7\ns_and_b32 s33, s25, 15\ns_lshl_b32 s33, s33, 3\ns_add_u32 s3, s3, s33\ns_add_u32 s3, s3, 0x%x" % (FLB+FLB2-512))
    a("s_waitcnt vmcnt(0)")
    sig(12, 3)
    a("s_barrier")
    a("s_endpgm")
    a("L_A:")
    a("s_lshr_b32 s24, s24, 6\ns_sub_u32 s50, s2, 128")
    a("s_lshl_b32 s31, s24, 17\ns_lshl_b32 s3, s50, 10\ns_add_u32 s31, s31, s3\ns_add_u32 s32, s31, 0x100000")
    a("s_lshl_b32 s33, s24, 10\ns_mov_b32 m0, s33")
    a("s_cmp_lg_u32 s24, 0\ns_cselect_b32 s41, 0x8000000, 0\ns_cselect_b32 s38, s24, 16")
    srd_consts(8, WS_USED)
    a("s_sub_u32 s26, 7, s24")
    a("s_and_b32 s3, s50, 7\ns_lshl_b32 s3, s3, 4\ns_lshr_b32 s37, s50, 3\ns_add_u32 s37, s37, s3")
    a("s_lshl_b32 s47, s37, 3\ns_lshl_b32 s3, s26, 10\ns_add_u32 s46, s47, s3\ns_add_u32 s46, s46, 0x%x\ns_add_u32 s47, s47, 0x%x" % (FLA, FLA+FLA2))
    a("s_lshl_b32 s37, s37, 7\ns_lshl_b32 s3, s26, 14\ns_add_u32 s43, s37, s3\ns_add_u32 s36, s37, %d" % (8*16384))
    a("v_cvt_f32_u32 v71, v2\nv_cvt_f32_u32 v87, v3\nv_mul_f32 v4, %s, v71\nv_mul_f32 v87, 4.0, v87\nv_mul_f32 v6, v87, v4" % f32(1/32))
    cs4(C_, Sn, 6, 4, 8)
    a("v_cmp_eq_u32 s[52:53], 0, v2\nv_mov_b32 v76, 0xbf803f80")
    a("v_lshlrev_b32 v4, 31, v2\nv_lshrrev_b32 v5, 16, v4\nv_or_b32 v4, v4, v5")
    pk2(M1re, C_); pk2(M1im, Sn, True)
    a("v_cndmask_b32 v36, v36, v76, s[52:53]\nv_cndmask_b32 v37, v37, v76, s[52:53]")
    a("v_xor_b32 v34, v32, v4\nv_xor_b32 v35, v33, v4\nv_xor_b32 v38, v36, v4\nv_xor_b32 v39, v37, v4")
    a("s_waitcnt lgkmcnt(0)")
    stamp(1)
    wsadj()
    a("buffer_load_dwordx4 v1, s[4:7], s31 offen %s lds" % NT)
    a("s_add_u32 m0, s33, 8192")
    a("buffer_load_dwordx4 v1, s[4:7], s32 offen %s lds" % NT)
    a("s_mov_b32 s3, 0x%x\nbuffer_load_dwordx2 v[12:13], off, s[8:11], s3" % EPA)
    prefetch()
    a("v_lshrrev_b32 v68, 1, v1\nv_add_u32 v68, s33, v68")
    a("s_lshl_b32 s3, s24, 4\nv_add_u32 v15, s3, v14")
    a("v_lshlrev_b32 v69, 8, v3\nv_mul_u32_u24 v4, 1040, v2\nv_add3_u32 %s, v4, v69, s3" % V(A1))
    a("v_bfe_i32 v86, v2, 3, 1\nv_and_b32 v84, 0x80008000, v86\nv_xor_b32 v85, 0x80008000, v84")
    a("v_xor_b32 v4, v2, v86\nv_and_b32 v4, 7, v4\nv_mul_u32_u24 v4, 2064, v4\nv_add_u32 v4, v4, v69")
    a("s_lshl_b32 s38, s38, 4\ns_sub_u32 s38, 1280, s38\ns_sub_u32 s39, 1152, s3\ns_add_u32 s40, s3, 128")
    a("v_cmp_gt_u32 vcc, 8, v2\nv_mov_b32 v5, s38\nv_mov_b32 v6, s3\nv_mov_b32 v7, s39\nv_mov_b32 v8, s40")
    a("v_cndmask_b32 v5, v5, v6, vcc\nv_cndmask_b32 v7, v7, v8, vcc\nv_add_u32 %s, v4, v5\nv_add_u32 %s, v4, v7" % (V(A1+1), V(A1+2)))
    a("v_and_b32 v4, 0x1cf, v0\nv_cmp_ne_u32 vcc, 0x1c0, v4\nv_cndmask_b32 %s, 0, -1, vcc" % V(A1+3))
    EARLY = 0
    FP = -1
    def fill2():
        a("buffer_store_dwordx4 v[28:31], v1, s[8:11], s35 offen sc1\nbuffer_store_dwordx4 v[28:31], v1, s[8:11], s35 offen offset:1024 sc1")
        a("buffer_store_dwordx4 v[28:31], v1, s[8:11], s48 offen sc1")
    if FP == 0: fill2()
    a("v_lshl_add_u32 v5, v2, 5, s24\nv_add_u32 v4, 8, v5\nv_cvt_f32_u32 v4, v4\nv_mul_f32 v4, %s, v4\nv_mul_f32 v6, v87, v4" % f32(1/512))
    cs4(C_, Sn, 6, 4, 8)
    a("s_cmp_eq_u32 s24, 0\ns_cselect_b32 s3, 16, 0\nv_and_b32 v4, s3, v86\nv_add_u32 v4, v4, v5\nv_cvt_f32_u32 v4, v4\nv_mul_f32 v4, %s, v4\nv_mul_f32 v6, v87, v4" % f32(1/512))
    pk2(M2+8, C_); pk2(M2+10, Sn)
    cs4(C_, Sn, 6, 4, 8)
    derive(M2+8, 85, 84)
    pk2(M2, C_); pk2(M2+2, Sn)
    derive(M2, 85, 84)
    stamp("a_pre")
    a("s_cbranch_scc0 L_p1_m2")
    a("v_cndmask_b32 %s, %s, v76, s[52:53]\nv_cndmask_b32 %s, %s, v76, s[52:53]" % (V(M2+4), V(M2+4), V(M2+5), V(M2+5)))
    for m in (M2, M2+4):
        for j in range(2):
            a("v_and_b32 %s, %s, v86\nv_xor_b32 %s, %s, %s" % (V(m+2+j), V(m+j), V(m+j), V(m+j), V(m+2+j)))
    a("L_p1_m2:")
    a("v_lshl_add_u32 v4, v3, 9, s50\nv_mul_u32_u24 v4, v4, v2\nv_cvt_f32_u32 v6, v4\nv_mul_f32 v6, %s, v6\nv_mul_f32 v4, %s, v71" % (f32(1/2048), f32(1/16)))
    cs4(C_, Sn, 6, 4, 8)
    pk2(M3, Sn, True); pk2(M3+2, C_); pk2(M3+4, Sn)
    a("s_mul_i32 s3, s26, 2064\nv_add_u32 v70, s3, v1")
    a("v_mul_u32_u24 v72, %d, v3\nv_lshl_add_u32 v72, v2, 2, v72\nv_add_u32 v73, %d, v72\nv_add_u32 v74, %d, v72\nv_add_u32 v75, %d, v72" % (4*QS, QS, 2*QS, 3*QS))
    a("v_mov_b32 %s, 0\nv_mov_b32 %s, 0\nv_lshlrev_b32 v10, 13, v2" % (V(B2+2), V(B2+3)))
    a("s_waitcnt vmcnt(%d) lgkmcnt(0)" % (4 if FP == 0 else 1))
    stamp(2)
    a("ds_read_b64_tr_b16 v[88:89], v68\nds_read_b64_tr_b16 v[90:91], v68 offset:512")
    a("ds_read_b64_tr_b16 v[92:93], v68 offset:8192\nds_read_b64_tr_b16 v[94:95], v68 offset:8704")
    if FP == 1: fill2()
    if stamps: a("s_waitcnt lgkmcnt(0)")
    a("s_waitcnt lgkmcnt(2)")
    mfma(E0, B0, M1re); mfma(E0+4, B0, M1im)
    a("s_waitcnt lgkmcnt(0)")
    mfma(E1, B1, M1re); mfma(E1+4, B1, M1im)
    planar(B0, E0, E0+4)
    a("ds_write_b128 %s, %s offset:%d" % (V(A1), V(B0,4), X1))
    planar(B1, E1, E1+4)
    a("ds_write_b128 %s, %s offset:%d" % (V(A1), V(B1,4), X1+128))
    stamp("a_s1")
    def sig_a1():
        a("s_waitcnt vmcnt(0)")
        a("v_lshl_add_u64 v[12:13], v[12:13], 0, 1")
        sig(12, 46, (1 << RA) - 1, 10)
        stamp(4)
    if EARLY == 1: sig_a1()
    a("s_waitcnt lgkmcnt(0)\ns_barrier")
    stamp("a_b1")
    if smap: a("s_waitcnt lgkmcnt(0)")
    a("ds_read_b128 %s, v15 offset:%d\nds_read_b128 %s, v15 offset:%d" % (V(B0,4), X1, V(B1,4), X1+8320))
    if FP == 2: fill2()
    a("s_waitcnt lgkmcnt(1)")
    mfma(E0, B0, M2); mfma(E0+4, B0, M2+4)
    a("s_waitcnt lgkmcnt(0)")
    mfma(E1, B1, M2+8); mfma(E1+4, B1, M2+12)
    planar(B0, E0, E0+4)
    a("ds_write_b128 %s, %s offset:%d" % (V(A1+1), V(B0,4), X2))
    planar(B1, E1, E1+4)
    a("ds_write_b128 %s, %s offset:%d" % (V(A1+2), V(B1,4), X2))
    if EARLY == 2: sig_a1()
    a("s_waitcnt lgkmcnt(0)\ns_barrier")
    stamp("a_b2")
    if smap: a("s_waitcnt lgkmcnt(0)")
    a("ds_read_b128 %s, v70 offset:%d\nds_read_b128 %s, v70 offset:%d" % (V(B1,4), X2+1024, V(B0,4), X2))
    a("ds_read_b64 %s, v69 offset:%d" % (V(B2,2), X2+8))
    a("s_waitcnt lgkmcnt(2)")
    mfma(E1, M3+2, B1); mfma(E1+4, M3, B1)
    a("s_waitcnt lgkmcnt(0)")
    a("v_and_b32 %s, %s, %s\nv_and_b32 %s, %s, %s" % (V(B0+2), V(B0+2), V(A1+3), V(B0+3), V(B0+3), V(A1+3)))
    mfma(E0, M3+2, B0); mfma(E0+4, M3, B0)
    a("s_cmp_lg_u32 s24, 0\ns_cbranch_scc1 L_p1_s3a")
    mfma(E2, M3+2, B2); mfma(E2+4, M3, B2)
    a("L_p1_s3a:")
    def st1(b, E, so, off=0):
        for j in range(4): pk(b+j, E+j, E+4+j)
        for j in range(4):
            a("v_and_b32 %s, -2, %s" % (V(b+j), V(b+j)))
            a("buffer_store_dword %s, %s, s[8:11], %s offen offset:%d sc1" % (V(b+j), V(72+j), S(so), off))
    st1(B1, E1, 43, 64); st1(B0, E0, 43)
    a("s_cbranch_scc1 L_p1_s3b")
    st1(B2, E2, 36)
    for j in range(4): a("buffer_store_dword %s, %s, s[8:11], s36 offen offset:64 sc1" % (V(B2+j), V(72+j)))
    a("L_p1_s3b:")
    stamp(3)
    a("s_lshl_b32 s3, s24, 14\ns_add_u32 s35, s37, s3")
    sig_a1()
    a("s_barrier")
    M3i, M2i, M1i, A3 = 32, 40, 56, 64
    a("s_setprio 0")
    a("s_load_dwordx2 s[12:13], s[0:1], 96")
    srd_consts(12, 0x400000)
    a("v_lshl_add_u32 v4, v2, 7, s50\nv_cvt_f32_u32 v4, v4\nv_mul_f32 v4, %s, v4\nv_mul_f32 v6, v87, v4" % f32(1/2048))
    cs4(C_, Sn, 6, 4, 8)
    for j in range(4):
        pk(M3i+j, C_+j, Sn+j, False, True); pk(M3i+4+j, Sn+j, C_+j)
    a("v_lshlrev_b32 v83, 5, v2\nv_lshl_add_u32 v83, v3, 3, v83")
    a("s_lshl_b32 s43, s24, 18\ns_lshl_b32 s3, s50, 11\ns_add_u32 s43, s43, s3\ns_add_u32 s44, s43, 0x200000")
    a("v_bfe_i32 v86, v3, 1, 1\nv_and_b32 v84, 0x80008000, v86\nv_xor_b32 v85, 0x80008000, v84")
    for j in range(4): a("v_mov_b32 %s, 1" % V(B2+j))
    a("v_lshlrev_b32 v5, 4, v3\nv_mul_u32_u24 v4, 80, v2\ns_mul_i32 s3, s24, 2560\ns_add_u32 s3, s3, %d\nv_add3_u32 %s, v4, v5, s3" % (X2I, V(A3)))
    a("v_mul_u32_u24 v4, 1040, v2\ns_lshl_b32 s3, s24, 6\ns_add_u32 s3, s3, %d\nv_add3_u32 %s, v4, v5, s3" % (X1I, V(A3+3)))
    a("s_cmp_eq_u32 s24, 0\ns_cselect_b32 s3, 16, 0\nv_and_b32 v82, s3, v86")
    a("v_bfe_u32 v4, v0, 2, 4\nv_lshl_add_u32 v4, v4, 5, s24\nv_add_u32 v5, 8, v4\nv_add_u32 v4, v4, v82")
    a("v_and_b32 v6, 48, v14\nv_add_u32 v6, %d, v6\nv_and_b32 v7, 513, v86" % X2I)
    for p,r in ((1,4),(2,5)):
        a("v_xor_b32 %s, %s, v86\nv_add_u32 %s, %s, v7\nv_mul_u32_u24 %s, 80, %s\nv_add_u32 %s, %s, v6" % (V(r),V(r),V(r),V(r),V(r),V(r),V(A3+p),V(r)))
    a("v_lshl_add_u32 v5, v3, 7, s24\nv_add_u32 v7, 8, v5\nv_mul_u32_u24 v7, v7, v2\nv_cvt_f32_u32 v6, v7\nv_mul_f32 v6, %s, v6\nv_mul_f32 v4, %s, v71" % (f32(1/512), f32(1/16)))
    cs4(C_, Sn, 6, 4, 8)
    a("v_add_u32 v7, v5, v82\nv_mul_u32_u24 v7, v7, v2\nv_cvt_f32_u32 v6, v7\nv_mul_f32 v6, %s, v6" % f32(1/512))
    def m2i(m):
        pk2(m, C_); pk2(m+4, Sn)
        a("v_xor_b32 %s, %s, v85\nv_xor_b32 %s, %s, v85\nv_xor_b32 %s, %s, v84\nv_xor_b32 %s, %s, v84" % (V(m+2),V(m+4),V(m+3),V(m+5),V(m+6),V(m),V(m+7),V(m+1)))
    m2i(M2i+8)
    cs4(C_, Sn, 6, 4, 8)
    a("v_lshlrev_b32 v7, 31, v2\nv_cmp_eq_u32 vcc, 0, v3")
    a("s_cbranch_scc0 L_p3_m2")
    a("v_xor_b32 v5, %s, v7\nv_mov_b32 v4, 0.5\nv_cndmask_b32 %s, %s, v4, vcc\nv_cndmask_b32 %s, %s, v5, vcc" % (f32(-0.5), V(C_), V(C_), V(Sn), V(Sn)))
    a("L_p3_m2:")
    m2i(M2i)
    a("s_cbranch_scc0 L_p3_m3")
    for j in range(4): a("v_and_b32 %s, %s, v86\nv_xor_b32 %s, %s, %s" % (V(M2i+4+j), V(M2i+j), V(M2i+j), V(M2i+j), V(M2i+4+j)))
    a("L_p3_m3:")
    a("v_mul_f32 v4, %s, v71\nv_mul_f32 v6, v87, v4" % f32(1/32))
    cs4(C_, Sn, 6, 4, 8)
    a("v_xor_b32 v5, -1.0, v7\nv_cndmask_b32 %s, %s, v5, vcc" % (V(Sn), V(Sn)))
    for j in range(8): a("v_mul_f32 %s, %s, %s" % (V(C_+j), f32(2.0**-19), V(C_+j)))
    pk2(M1i, C_); pk2(M1i+2, Sn, True)
    for j in range(4): a("v_xor_b32 %s, 0x80000000, %s" % (V(M1i+4+j), V(M1i+j)))
    a("s_mov_b32 s42, %d" % SPIN)
    a("s_setprio 3\ns_waitcnt lgkmcnt(0)")
    stamp(6)
    prepoll("h2ap", 8, 36, 0)
    stamp(7)
    def ld3(b):
        for j in range(4): a("buffer_load_dword %s, %s, s[8:11], %s offen offset:%d sc1" % (V(B0+4*b+j), V(72+j), S(36 if b == 2 else 35), 64 if b == 1 else 0))
    poll12("h2a", ld3, "s_cmp_eq_u32 s24, 0")
    stamp(8)
    mfma(E1, M3i, B1); mfma(E1+4, M3i+4, B1)
    mfma(E0, M3i, B0); mfma(E0+4, M3i+4, B0)
    mfma(E2, M3i, B2)
    planar(B1, E1, E1+4)
    a("ds_write_b128 %s, %s offset:1280" % (V(A3), V(B1,4)))
    planar(B0, E0, E0+4)
    a("s_cmp_lg_u32 s24, 0\ns_cbranch_scc1 L_p3_a")
    pk2(B2, E2)
    a("v_cndmask_b32 %s, %s, %s, s[52:53]\nv_cndmask_b32 %s, %s, %s, s[52:53]" % (V(B0+2), V(B0+2), V(B2), V(B0+3), V(B0+3), V(B2+1)))
    a("L_p3_a:")
    a("ds_write_b128 %s, %s" % (V(A3), V(B0,4)))
    a("s_waitcnt lgkmcnt(0)\ns_barrier")
    stamp("a_3b1")
    if smap: a("s_waitcnt lgkmcnt(0)")
    for p,b in ((1,B0),(2,B1)):
        a("ds_read_b64_tr_b16 %s, %s\nds_read_b64_tr_b16 %s, %s offset:8" % (V(b,2), V(A3+p), V(b+2,2), V(A3+p)))
    a("s_waitcnt lgkmcnt(2)")
    mfma(E0, M2i, B0); mfma(E0+4, M2i+4, B0)
    a("s_waitcnt lgkmcnt(0)")
    mfma(E1, M2i+8, B1); mfma(E1+4, M2i+12, B1)
    planar(B0, E0, E0+4)
    a("ds_write_b128 %s, %s" % (V(A3+3), V(B0,4)))
    planar(B1, E1, E1+4)
    a("ds_write_b128 %s, %s offset:512" % (V(A3+3), V(B1,4)))
    a("s_waitcnt lgkmcnt(0)\ns_barrier")
    stamp("a_3b2")
    if smap: a("s_waitcnt lgkmcnt(0)")
    for e,b in ((0,B0),(1,B1)):
        a("ds_read_b64_tr_b16 %s, v15 offset:%d\nds_read_b64_tr_b16 %s, v15 offset:%d" % (V(b,2), X1I+8320*e, V(b+2,2), X1I+8320*e+8))
    a("s_waitcnt lgkmcnt(2)")
    mfma(E0, B0, M1i); mfma(E0+4, B0, M1i+4)
    a("s_waitcnt lgkmcnt(0)")
    mfma(E1, B1, M1i); mfma(E1+4, B1, M1i+4)
    planar(B0, E0, E0+4)
    a("buffer_store_dwordx2 %s, v83, s[12:15], s43 offen %s\nbuffer_store_dwordx2 %s, v83, s[12:15], s43 offen offset:512 %s" % (V(B0,2), osc, V(B0+2,2), osc))
    planar(B1, E1, E1+4)
    a("buffer_store_dwordx2 %s, v83, s[12:15], s44 offen %s\nbuffer_store_dwordx2 %s, v83, s[12:15], s44 offen offset:512 %s" % (V(B1,2), osc, V(B1+2,2), osc))
    stamp("a_3st")
    a("s_or_b32 s3, s50, s24\ns_cmp_lg_u32 s3, 0\ns_cbranch_scc1 L_p3_c")
    a("s_mov_b32 s3, 0x%x\nbuffer_store_dwordx2 v[12:13], off, s[8:11], s3 sc1" % EPA)
    a("L_p3_c:")
    if stamps: a("s_waitcnt vmcnt(0)")
    stamp(9)
    write_stamps(10, "a")
    a("s_endpgm")
    a("L_T:")
    a("s_lshr_b32 s24, s24, 6")
    a("s_and_b32 s31, s2, 7\ns_lshr_b32 s32, s2, 3")
    a("s_lshr_b32 s33, s24, 1\ns_and_b32 s34, s24, 1")
    a("s_lshl_b32 s32, s32, 2\ns_add_u32 s32, s32, s33")
    a("s_lshl_b32 s35, s31, 1\ns_add_u32 s35, s35, s34")
    a("v_bfe_u32 v4, v0, 2, 4\nv_and_b32 v5, 48, v14\nv_lshl_add_u32 v6, v4, 10, v5\nv_lshl_add_u32 v27, v4, 12, v5")
    a("s_lshl_b32 s36, s32, 15\ns_lshl_b32 s3, s35, 6\ns_add_u32 s36, s36, s3\ns_add_u32 s37, s36, 0x4000")
    a("s_lshl_b32 s38, s24, 11\ns_add_u32 s38, s38, %d\ns_mov_b32 m0, s38" % TR)
    a("s_waitcnt lgkmcnt(0)")
    stamp(1)
    wsadj()
    a("buffer_load_dwordx4 v6, s[4:7], s36 offen %s lds" % NT)
    a("s_add_u32 m0, s38, 1024")
    a("buffer_load_dwordx4 v6, s[4:7], s37 offen %s lds" % NT)
    a("s_load_dwordx2 s[16:17], s[0:1], 8\ns_load_dwordx2 s[20:21], s[0:1], 16")
    prefetch()
    t1_late()
    srd_consts(16, 2048*514); srd_consts(20, 2048*514)
    a("s_lshl_b32 s3, s31, 7\ns_add_u32 s49, s3, 0x%x" % EPB)
    a("buffer_load_dwordx2 v[124:125], off, s[8:11], s49")
    a("s_mov_b32 s3, 0x%x\nbuffer_load_dwordx2 v[12:13], off, s[8:11], s3" % EPA)
    a("s_lshl_b32 s43, s35, 17\ns_lshl_b32 s3, s32, 6\ns_add_u32 s43, s43, s3")
    a("s_add_u32 s47, s43, 0x%x\ns_add_u32 s48, s47, 0x10000" % YT)
    a("v_lshrrev_b32 v8, 2, v2\nv_lshl_add_u32 v8, v3, 3, v8\nv_and_b32 v9, 3, v2\nv_lshlrev_b32 v9, 3, v9\nv_lshl_add_u32 v8, v8, 6, v9\nv_add_u32 v26, s38, v8")
    a("v_lshrrev_b32 v25, 1, v2\nv_lshlrev_b32 v25, 13, v25\nv_lshl_add_u32 v25, v3, 5, v25\nv_and_b32 v9, 16, v14\nv_add_u32 v25, v25, v9")
    a("s_add_u32 s43, s43, s3\ns_add_u32 s43, s43, 0x%x\ns_add_u32 s44, s43, 0x10000" % UT)
    a("s_lshl_b32 s46, s35, 9\ns_lshl_b32 s3, s32, 3\ns_add_u32 s46, s46, s3\ns_add_u32 s46, s46, 0x%x" % FLB)
    a("s_and_b32 s25, s2, 15\ns_lshr_b32 s26, s2, 4")
    X3 = "s_cmp_eq_u32 s26, 7"
    def w_prep():
        a("v_lshrrev_b32 v4, 1, v3\nv_and_b32 v5, 1, v3\nv_lshlrev_b32 v6, 10, v5\nv_lshl_add_u32 v6, v4, 4, v6\nv_mul_u32_u24 v24, 514, v6\nv_lshl_add_u32 v60, v2, 1, v24")
        a("s_lshl_b32 s27, s24, 5\ns_add_u32 s27, s27, s25\ns_mul_i32 s27, s27, 514\ns_lshl_b32 s3, s26, 6\ns_add_u32 s27, s27, s3\ns_add_u32 s28, s27, %d\ns_add_u32 s29, s27, %d\ns_add_u32 s30, s27, %d" % (131584, 2*131584, 3*131584))
        for j in range(16): a("v_mov_b32 %s, 0" % V(Wa+j))
        for j in range(8): a("v_mov_b32 %s, 0" % V(W3+j))
    def load_w():
        for e in range(2):
            for j in range(4):
                a("buffer_load_short_d16_hi %s, v60, s[16:19], %s offen offset:%d %s" % (V(Wa+8*e+j), S(27+j), 32*e, NTW))
                a("buffer_load_short_d16_hi %s, v60, s[20:23], %s offen offset:%d %s" % (V(Wa+8*e+4+j), S(27+j), 32*e, NTW))
        a("%s\ns_cselect_b32 s3, 0, 0x8000000\nv_add_u32 v24, s3, v24" % X3)
        for j in range(4):
            a("buffer_load_short_d16_hi %s, v24, s[16:19], %s offen offset:64 %s" % (V(W3+j), S(27+j), NTW))
            a("buffer_load_short_d16_hi %s, v24, s[20:23], %s offen offset:64 %s" % (V(W3+4+j), S(27+j), NTW))
    if WPOS == 0:
        w_prep(); a("s_waitcnt lgkmcnt(0)\ns_barrier"); load_w()
    def gen_ma():
        a("v_lshl_add_u32 v4, v3, 3, s24\nv_mul_u32_u24 v4, v4, v2\nv_cvt_f32_u32 v6, v4\nv_cvt_f32_u32 v4, v2\nv_mul_f32 v6, %s, v6\nv_mul_f32 v4, %s, v4" % (f32(1/128), f32(0.25)))
        cs4(C_, Sn, 6, 4, 8)
        for j in range(4):
            pk(Ma+j, C_+j, Sn+j); pk(Ma+4+j, Sn+j, C_+j, True, False)
    def gen_mi():
        a("v_and_b32 v4, 3, v2\nv_lshrrev_b32 v5, 2, v2\nv_lshl_add_u32 v4, v4, 2, v5\nv_lshl_add_u32 v4, v4, 3, s24\nv_cvt_f32_u32 v4, v4\nv_cvt_f32_u32 v5, v3\nv_mul_f32 v4, %s, v4\nv_mul_f32 v6, 4.0, v5\nv_mul_f32 v6, v6, v4" % f32(1/128))
        cs4(C_, Sn, 6, 4, 8)
        pk2(Mi, Sn); pk2(Mi+2, C_); pk2(Mi+4, Sn, True)
    UE = opt.get("uearly", 0)
    if UE:
        for j in range(4): a("v_mov_b32 %s, -1" % V(28+j))
        a("buffer_store_dwordx4 v[28:31], v25, s[8:11], s43 offen sc1\nbuffer_store_dwordx4 v[28:31], v25, s[8:11], s44 offen sc1")
    gen_ma(); gen_mi()
    a("s_waitcnt vmcnt(%d) lgkmcnt(0)" % (0 if UE else (26 if WPOS == 0 else 2)))
    if UE:
        a("v_lshl_add_u64 v[124:125], v[124:125], 0, 1")
        sig(124, 46)
    stamp(2)
    for h in range(2):
        for p in range(2):
            a("ds_read_b64_tr_b16 %s, v26 offset:%d" % (V(B0+4*h+2*p, 2), 32*h+256*p))
    if stamps: a("s_waitcnt lgkmcnt(0)")
    a("s_waitcnt lgkmcnt(2)\nbuffer_store_dwordx4 %s, v25, s[8:11], s43 offen sc1" % V(B0,4))
    a("s_waitcnt lgkmcnt(0)\nbuffer_store_dwordx4 %s, v25, s[8:11], s44 offen sc1" % V(B1,4))
    stamp(3)
    a("s_lshl_b32 s3, s24, 4\nv_add_u32 v15, s3, v14")
    if WPOS != 0: w_prep()
    if WPOS == 1: load_w()
    a("v_lshrrev_b32 v4, 1, v3\nv_and_b32 v5, 1, v3")
    a("v_mul_u32_u24 v56, 528, v2\nv_lshl_add_u32 v56, v3, 4, v56\ns_lshl_b32 s3, s24, 6\nv_add_u32 v56, s3, v56")
    a("v_mul_u32_u24 v57, 528, v4\nv_and_b32 v6, 0x1f0, v1\nv_add_u32 v57, v57, v6\ns_mul_i32 s3, s24, 1056\nv_add_u32 v57, s3, v57")
    a("v_and_b32 v7, 7, v2\nv_mul_u32_u24 v58, 1040, v7\nv_lshrrev_b32 v8, 3, v2\nv_lshl_add_u32 v58, v8, 6, v58\nv_lshl_add_u32 v58, v3, 4, v58\ns_lshl_b32 s3, s24, 7\nv_add_u32 v58, s3, v58")
    a("v_cmp_eq_u32 vcc, v4, v8")
    if not UE: a("s_waitcnt vmcnt(%d)" % (24 if WPOS == 1 else 0))
    if not UE: a("v_lshl_add_u64 v[124:125], v[124:125], 0, 1")
    if UE:
        stamp(4)
        a("s_barrier")
    elif opt.get("wgb", 0):
        a("s_barrier")
        a("s_cmp_lg_u32 s24, 0\ns_cbranch_scc1 L_t_ns")
        a("s_lshl_b32 s46, s31, 7\ns_and_b32 s3, s2, 0x78\ns_add_u32 s46, s46, s3\ns_add_u32 s46, s46, 0x%x\nv_lshlrev_b32 v10, 10, v2" % FLB)
        sig(124, 46, (1 << opt["wgb"]) - 1, 10)
        a("L_t_ns:")
        stamp(4)
    else:
        sig(124, 46)
        stamp(4)
        a("s_barrier")
    if WPOS == 2: load_w()
    a("s_setprio 0")
    a("v_cvt_f32_u32 v4, v7\nv_cvt_f32_u32 v5, v5\nv_mul_f32 v4, %s, v4\nv_mul_f32 v5, 4.0, v5\nv_mul_f32 v6, v5, v4" % f32(0.125))
    cs4(C_, Sn, 6, 4, 8)
    pk2(Fb, Sn, True); pk2(Fb+2, C_); pk2(Fb+4, Sn)
    for i in range(6): a("v_cndmask_b32 %s, 0, %s, vcc" % (V(Fb+i), V(Fb+i)))
    a("v_mov_b32 %s, %s\nv_mov_b32 %s, %s\nv_mov_b32 %s, %s\nv_mov_b32 %s, %s" % (V(Fb+6),V(Fb+2),V(Fb+7),V(Fb+3),V(Fb+8),V(Fb),V(Fb+9),V(Fb+1)))
    a("v_lshl_add_u64 v[12:13], v[12:13], 0, 1")
    a("v_lshlrev_b32 v126, 2, v2\nv_lshl_add_u32 v126, v3, 7, v126\nv_lshlrev_b32 v11, 3, v2")
    a("s_mul_i32 s74, s25, %d\ns_lshl_b32 s3, s24, 11\ns_add_u32 s74, s74, s3\ns_lshl_b32 s3, s26, 14\ns_add_u32 s74, s74, s3\ns_add_u32 s76, s74, 16384" % QS)
    a("s_lshl_b32 s78, s24, 7\ns_add_u32 s78, s78, 0x%x\ns_lshl_b32 s39, s26, 10\ns_add_u32 s39, s39, s78\ns_and_b32 s3, s25, %d\ns_lshl_b32 s3, s3, 13\ns_add_u32 s39, s39, s3\ns_add_u32 s78, s78, 0x%x" % (FLA, RA-1, FLA2))
    a("s_lshl_b32 s40, s35, 2\ns_lshr_b32 s3, s32, 4\ns_add_u32 s40, s40, s3\ns_lshl_b32 s40, s40, 7\ns_add_u32 s40, s40, 0x%x" % (FLB+FLB2))
    for j in range(4): a("v_mov_b32 %s, 0" % V(B2+j))
    a("s_setprio 3")
    if opt.get("lead_h1a"):
        a("s_cmp_lg_u32 s24, 0\ns_cbranch_scc1 L_h1l_done")
        opt["pm_h1l"] = opt["pm_h1a"]; opt["sl_h1l"] = opt.get("sl_h1l", 0)
        poll_flags("h1l", 11, 39, 12)
        a("s_barrier")
    poll_flags("h1a", 11, 39, 12)
    stamp("t_w")
    a("s_mov_b32 s42, %d" % (SPIN if EARLY else 0))
    if EARLY: prepoll("h1dp", 8, 74, 960)
    stamp(5)
    def ld2(b):
        for j in range(4): a("buffer_load_dword %s, v126, s[8:11], %s offen offset:%d sc1" % (V(B0+4*b+j), S(76 if b == 2 else 74), 512*j + (64 if b == 1 else 0)))
    poll12("h1d", ld2, X3, False)
    stamp(6)
    T2 = ((0,B0,E0,Wa),(1,B1,E1,Wa+8)); T3 = (2,B2,E2,W3)
    def third(tag, fn):
        a("%s\ns_cbranch_scc0 L_%s" % (X3, tag))
        fn(*T3)
        a("L_%s:" % tag)
    for e,b,E,w_ in T2: mfma(E, b, Ma); mfma(E+4, b, Ma+4)
    def sa2(e,b,E,w_):
        planar(b, E, E+4)
        a("ds_write_b128 %s, %s offset:%d" % (V(A2), V(b,4), LYS*e))
    for t_ in T2: sa2(*t_)
    def sa3(e,b,E,w_):
        mfma(E, b, Ma); mfma(E+4, b, Ma+4); sa2(e,b,E,w_)
    third("t3a", sa3)
    stamp("t_s1")
    a("s_waitcnt lgkmcnt(0)\ns_barrier")
    stamp("t_b1")
    if smap: a("s_waitcnt lgkmcnt(0)")
    for e,b,E,w_ in T2 + (T3,):
        a("ds_read_b64_tr_b16 %s, %s offset:%d\nds_read_b64_tr_b16 %s, %s offset:%d" % (V(b,2), V(A2+1), LYS*e, V(b+2,2), V(A2+1), LYS*e+8))
    if opt.get("g_early", 1): a("buffer_load_dwordx2 v[6:7], v11, s[8:11], s40 offen sc1")
    a("s_waitcnt lgkmcnt(4)")
    mfma(E0, Fb+2, B0); mfma(E0+4, Fb, B0)
    a("s_waitcnt lgkmcnt(2)")
    mfma(E1, Fb+2, B1); mfma(E1+4, Fb, B1)
    def sb1(e,b,E,w_):
        F = 80
        for j in range(4): a("v_mul_f32 %s, %s, %s\nv_mul_f32 %s, %s, %s" % (V(F+j), V(E+j), V(w_+j), V(F+4+j), V(E+j), V(w_+4+j)))
        for j in range(4): a("v_fma_f32 %s, -%s, %s, %s\nv_fmac_f32 %s, %s, %s" % (V(F+j), V(E+4+j), V(w_+4+j), V(F+j), V(F+4+j), V(E+4+j), V(w_+j)))
        planar(b, F, F+4)
        mfma(E, b, Fb+6); mfma(E+4, b, Fb+4)
    def sb2(e,b,E,w_):
        planar(b, E, E+4)
        a("ds_write_b128 %s, %s offset:%d" % (V(A2+2), V(b,4), LY2+LY2S*e))
    for t_ in T2: sb1(*t_)
    for t_ in T2: sb2(*t_)
    def sb3(e,b,E,w_):
        a("s_waitcnt lgkmcnt(2)")
        mfma(E, Fb+2, b); mfma(E+4, Fb, b); sb1(e,b,E,w_); sb2(e,b,E,w_)
    third("t3b", sb3)
    stamp("t_s2")
    a("s_waitcnt lgkmcnt(0)\ns_barrier")
    stamp("t_b2")
    if smap: a("s_waitcnt lgkmcnt(0)")
    for e,b,E,w_ in T2 + (T3,):
        a("ds_read_b64_tr_b16 %s, v15 offset:%d\nds_read_b64_tr_b16 %s, v15 offset:%d" % (V(b,2), LY2+LY2S*e, V(b+2,2), LY2+LY2S*e+8))
    a("s_waitcnt lgkmcnt(4)")
    mfma(E0, Mi+2, B0); mfma(E0+4, Mi, B0)
    a("s_waitcnt lgkmcnt(2)")
    mfma(E1, Mi+2, B1); mfma(E1+4, Mi, B1)
    a("s_waitcnt lgkmcnt(0)")
    mfma(E2, Mi+2, B2); mfma(E2+4, Mi, B2)
    stamp("t_f")
    a("s_waitcnt vmcnt(0)")
    def sc_(e,b,E,w_):
        for j in range(4): pk(b+j, E+j, E+4+j)
        for j in range(4):
            a("v_or_b32 %s, 1, %s" % (V(b+j), V(b+j)))
            a("buffer_store_dword %s, v126, s[8:11], %s offen offset:%d sc1" % (V(b+j), S(76 if e == 2 else 74), 512*j + (64 if e == 1 else 0)))
    for t_ in T2: sc_(*t_)
    third("t3c", sc_)
    stamp(7)
    a("v_cmp_ne_u64 vcc, v[6:7], v[124:125]")
    a("v_add_u32 v7, s38, v1")
    a("v_bfe_u32 v9, v0, 2, 4\nv_and_b32 v10, 48, v14\nv_mul_u32_u24 v24, 80, v9\nv_lshl_add_u32 v9, v9, 11, v10")
    a("s_mul_i32 s3, s24, 2560\nv_add3_u32 v24, v24, v10, s3\nv_mul_u32_u24 v25, 80, v2\nv_lshl_add_u32 v25, v3, 4, v25\nv_add_u32 v25, s3, v25")
    a("s_lshl_b32 s37, s32, 16\ns_lshl_b32 s3, s35, 6\ns_add_u32 s37, s37, s3\ns_add_u32 s37, s37, 1024\ns_add_u32 s36, s37, 0x8000")
    a("s_cbranch_vccz L_h1g_done")
    poll_flags("h1g", 11, 40, 124)
    stamp("t_g")
    a("s_mov_b32 s42, %d" % SPIN)
    prepoll("h2bp", 8, 47, 0)
    stamp("t_pp")
    a("L_h2b:")
    if opt.get("sl_h2b"): a("s_sleep %d" % opt["sl_h2b"])
    a("buffer_load_dwordx4 v[88:91], v27, s[8:11], s47 offen sc1\nbuffer_load_dwordx4 v[92:95], v27, s[8:11], s48 offen sc1")
    a("s_waitcnt vmcnt(0)")
    a("v_max3_u32 v4, v88, v89, v90\nv_max3_u32 v5, v91, v92, v93\nv_max3_u32 v4, v4, v94, v95\nv_max_u32 v4, v4, v5\nv_cmp_eq_u32 vcc, -1, v4")
    a("s_sub_u32 s42, s42, 1\ns_cbranch_scc1 L_h2b_done\ns_cbranch_vccnz L_h2b")
    a("L_h2b_done:")
    stamp(8)
    a("ds_write_b128 v7, v[88:91]\nds_write_b128 v7, v[92:95] offset:1024")
    if stamps: a("s_waitcnt lgkmcnt(0)")
    for h in range(2):
        for p in range(2):
            a("ds_read_b64_tr_b16 %s, v26 offset:%d" % (V(96+4*h+2*p, 2), 32*h+256*p))
    a("s_waitcnt lgkmcnt(2)\nds_write_b128 v25, v[96:99] offset:%d" % BNC)
    a("s_waitcnt lgkmcnt(1)\nds_write_b128 v25, v[100:103] offset:%d" % (BNC+1280))
    a("ds_read_b128 v[88:91], v24 offset:%d\nds_read_b128 v[92:95], v24 offset:%d" % (BNC, BNC+1280))
    a("s_waitcnt lgkmcnt(1)\nbuffer_store_dwordx4 v[88:91], v9, s[12:15], s37 offen %s" % osc)
    a("s_waitcnt lgkmcnt(0)\nbuffer_store_dwordx4 v[92:95], v9, s[12:15], s36 offen %s" % osc)
    a("s_cmp_ge_u32 s2, 8\ns_cbranch_scc1 L_yt_c")
    a("s_barrier")
    a("s_cmp_lg_u32 s24, 0\ns_cbranch_scc1 L_yt_c")
    a("buffer_store_dwordx2 v[124:125], off, s[8:11], s49 sc1")
    a("L_yt_c:")
    if stamps: a("s_waitcnt vmcnt(0)")
    stamp(9)
    write_stamps(10, "y")
    a("s_endpgm")

    a("L_end:\ns_endpgm\nLcode_end:")
    a.raw(""".section .rodata,"a"
.p2align 6
.amdhsa_kernel %s
  .amdhsa_next_free_vgpr 128
  .amdhsa_next_free_sgpr %d
  .amdhsa_accum_offset 128
  .amdhsa_group_segment_fixed_size 0
  .amdhsa_kernarg_size 120
  .amdhsa_user_sgpr_count 2
  .amdhsa_user_sgpr_kernarg_segment_ptr 1
  .amdhsa_system_sgpr_workgroup_id_x 1
.end_amdhsa_kernel""" % (k, 100 if stamps else 80))
    return a
def t2only(s):
    return s.replace("L_A:\n","L_A:\n    s_endpgm\n",1).replace("L_T:\n","L_T:\n    s_endpgm\n",1).replace("s_mov_b32 s42, %d" % SPIN,"s_mov_b32 s42, 0")
if __name__ == "__main__":
    a = gen(False); open("k.s","w").write(a.text()); print("instructions", a.ninst, "src", len(a.text()))
    a = gen(True); open("k_st.s","w").write(a.text())
    for p in sys.argv[1:]:
        a = gen(True, (p[0], int(p[1:]))); open("k_pr_%s.s" % p,"w").write(a.text())
```

```python
from gen15 import *
def o(**k): return k
open("k_a.s","w").write(gen(False, None, o(wpf=0)).text())
open("k_b.s","w").write(gen(False, None, o(wsbase=0xF800000)).text())
open("k_c.s","w").write(gen(False, None, o(wsbase=0x8000000)).text())
open("k_d.s","w").write(gen(False, None, o(wpf=2)).text())
open("k_e.s","w").write(gen(False, None, o(nt="", wpf=0)).text())
```

```python
from gen15 import *
def o(**k): return k
open("k_a.s","w").write(gen(True, ("a",0), o()).text())
open("k_b.s","w").write(gen(True, ("a",0), o(osc="sc1")).text())
open("k_c.s","w").write(gen(True, ("a",9), o()).text())
open("k_d.s","w").write(gen(True, ("y",9), o()).text())
open("k_e.s","w").write(gen(False, None, o(osc="nt")).text())
open("k_f.s","w").write(gen(False, None, o(osc="sc1")).text())
```

```python
import sys, struct
import numpy as np
from asmlib import Asm
NAME = "concat_heads__spectral_gfnet__ssm_conv_s4__prompt"
def f32(x): return "0x%08x" % struct.unpack("<I", struct.pack("<f", x))[0]
def V(a, n=1): return "v%d" % a if n == 1 else "v[%d:%d]" % (a, a+n-1)
def S(a, n=1): return "s%d" % a if n == 1 else "s[%d:%d]" % (a, a+n-1)
def bf(x):
    x = np.asarray(x, np.float64); x = np.where(np.abs(x) < 1e-12, 0.0, x)
    u = x.astype(np.float32).view(np.uint32)
    return ((u + 0x7fff + ((u >> 16) & 1)) >> 16).astype(np.uint32)
def frag(vals):
    b = bf(vals); return (b[..., 0::2] | (b[..., 1::2] << 16)).astype(np.uint32)

QS = 9*16384
D1 = 0x000000; UT = 0x240000; YT = UT
FLA = 0x440000; FLA2 = 0; FLB = 0x444000; FLB2 = 0x2000; EPA = 0x448000; EPB = 0x448080
WS_USED = 0x449000
STAMP_OFF = 0xC800000
SPIN = 100000
RAW = 0; X1 = 16384; X2 = 33792; LY = 0; LYS = 16*528; LY2 = 2*LYS; LY2S = 8*1040; TR = 54272
X2I = X2; X1I = X2I + 20480; BNC = 33792
UPAD = 576; UCP = UPAD + 4096 + 32; USTR = 2*UCP; CP = 2*USTR; CSTR = 4160; GP = 57*16; CCH = 32*GP
LDS_TOTAL = CP + 2*CCH
assert LDS_TOTAL <= 81920 and UCP % 64 == 32
assert LY2 + 2*LY2S <= X2 and X1I + 16*1040 <= LDS_TOTAL

def gen(stamps=False, probe=None, opt=None):
    opt = opt or {}
    RA = opt.get('RA', 2)
    opt.setdefault('pm_h1a', 'atom'); opt.setdefault('g_early', 0); opt.setdefault('pm_h1b', 'atom'); opt.setdefault('pm_h1g', 'atom'); opt.setdefault('lead_h2ap', 1); opt.setdefault('lead_h2bp', 1); opt.setdefault('sl_h1g', 4); opt.setdefault('sl_h1a', 2)
    a = Asm()
    if probe is not None: stamps = True
    ST = 80
    smap = opt.get("smap")
    def stamp(i):
        if smap is not None: i = smap.get(i)
        elif not isinstance(i, int): i = None
        if stamps and i is not None: a("s_memrealtime %s" % S(ST+2*i, 2))
    def write_stamps(n, tag):
        if not stamps: return
        a("s_waitcnt lgkmcnt(0)")
        if probe is not None:
            role, idx = probe
            if role != tag: return
            a("s_add_u32 s56, s%d, 3000" % (ST+2*idx))
            a("Lpr_%s:\ns_memrealtime s[58:59]\ns_waitcnt lgkmcnt(0)\ns_sub_u32 s57, s58, s56\ns_cmp_lt_i32 s57, 0\ns_cbranch_scc1 Lpr_%s" % (tag, tag))
            return
        sw = opt.get("stampwave", 0)
        a("v_cmp_eq_u32 vcc, %d, v0\ns_and_saveexec_b64 s[58:59], vcc\ns_cbranch_execz Lst_%s" % (64*sw, tag))
        a("s_mov_b32 s10, 0x10000000")
        a("s_lshl_b32 s57, s2, 7\ns_add_u32 s57, s57, 0x%x\nv_mov_b32 v100, s57" % STAMP_OFF)
        for i in range(n):
            a("v_mov_b32 v102, s%d\nv_mov_b32 v103, s%d" % (ST+2*i, ST+1+2*i))
            a("buffer_store_dwordx2 v[102:103], v100, s[8:11], 0 offen offset:%d\ns_nop 1" % (8*i))
        a("Lst_%s:" % tag)
    def cs4(c, s, f0, step, t):
        a("v_add_f32 %s, %s, %s" % (V(t), V(f0), V(step)))
        a("v_fma_f32 %s, 2.0, %s, %s" % (V(t+1), V(step), V(f0)))
        a("v_fma_f32 %s, 2.0, %s, %s" % (V(t+2), V(step), V(t)))
        src = [f0, t, t+1, t+2]
        for j in range(4):
            a("v_cos_f32 %s, %s" % (V(c+j), V(src[j])))
            a("v_sin_f32 %s, %s" % (V(s+j), V(src[j])))
    def pk(d, x, y, nx=False, ny=False):
        a("v_cvt_pk_bf16_f32 %s, %s%s, %s%s" % (V(d), "-" if nx else "", V(x), "-" if ny else "", V(y)))
    def pk2(d, x, neg=False):
        pk(d, x, x+1, neg, neg); pk(d+1, x+2, x+3, neg, neg)
    def planar(d, re, im): pk2(d, re); pk2(d+2, im)
    def inter(d, re, im):
        for j in range(4): pk(d+j, re+j, im+j)
    def mfma(d, x, y, c="0"):
        a("v_mfma_f32_16x16x32_bf16 %s, %s, %s, %s" % (V(d,4), V(x,4), V(y,4), c if c == "0" else V(c,4)))
    def srd_consts(d, nbytes):
        a("s_mov_b32 %s, 0x%x\ns_mov_b32 %s, 0x20000" % (S(d+2), nbytes, S(d+3)))
    def tab_srd():
        a("s_getpc_b64 s[52:53]\ns_add_u32 s52, s52, Ltab@rel32@lo+4\ns_addc_u32 s53, s53, Ltab@rel32@hi+12")
        srd_consts(52, TABSZ)
    def tload(d, voff, name, extra=0):
        off = TOFF[name] + extra
        if off < 4096: a("buffer_load_dwordx4 %s, %s, s[52:55], 0 offen offset:%d" % (V(d,4), V(voff), off))
        else: a("s_mov_b32 s3, 0x%x\nbuffer_load_dwordx4 %s, %s, s[52:55], s3 offen" % (off, V(d,4), V(voff)))
    def poll_flags(tag, voff, soff, vtag, lanes="0xffff"):
        mode = opt.get("pm_"+tag, "load")
        def loop(lab, atom, sl):
            a("L_%s:" % lab)
            if sl: a("s_sleep %d" % sl)
            if atom: a("v_mov_b32 v4, 0\nv_mov_b32 v5, 0\nbuffer_atomic_or_x2 v[4:5], %s, s[8:11], %s offen sc0 sc1\ns_waitcnt vmcnt(0)" % (V(voff), S(soff)))
            else: a("buffer_load_dwordx2 v[4:5], %s, s[8:11], %s offen sc1\ns_waitcnt vmcnt(0)" % (V(voff), S(soff)))
            a("v_cmp_ne_u64 vcc, v[4:5], %s" % V(vtag,2))
            a("s_sub_u32 s42, s42, 1\ns_cbranch_scc1 L_%s_out\ns_cbranch_vccnz L_%s" % (tag, lab))
        a("s_mov_b32 s42, %d" % SPIN)
        sl = opt.get("sl_"+tag, 0)
        if mode.startswith("two"):
            a("s_mov_b64 exec, 0x8000")
            loop(tag+"_1", True, sl); sl = 0
        a("s_mov_b64 exec, %s" % lanes)
        loop(tag, mode in ("atom","twoa"), sl)
        a("L_%s_out:\ns_mov_b64 exec, -1" % tag)
        a("L_%s_done:" % tag)
    def prepoll(tag, voff, soff, off):
        mode = opt.get("pm_"+tag, "load")
        a("L_%s:" % tag)
        if mode == "none": return
        allp = mode.startswith("all")
        lead = opt.get("lead_"+tag)
        if lead: a("s_cmp_lg_u32 s24, 0\ns_cbranch_scc1 L_%s_o" % tag)
        a("s_mov_b64 exec, %s" % ("0xffffffff" if allp else "1"))
        a("L_%s_l:" % tag)
        if opt.get("sl_"+tag): a("s_sleep %d" % opt["sl_"+tag])
        ad = "%s, s[8:11], %s offen" % (V(voff), S(soff)) if allp else "off, s[8:11], %s offset:%d" % (S(soff), off)
        if mode in ("atom","alla"): a("v_mov_b32 v4, 0\nbuffer_atomic_or v4, %s sc0 sc1\ns_waitcnt vmcnt(0)" % ad)
        else: a("buffer_load_dword v4, %s sc1\ns_waitcnt vmcnt(0)" % ad)
        if tag == "h2ap": a("v_and_b32 v4, 1, v4\nv_cmp_eq_u32 vcc, 0, v4")
        else: a("v_cmp_eq_u32 vcc, -1, v4")
        a("s_sub_u32 s42, s42, 1\ns_cbranch_scc1 L_%s_o\ns_cbranch_vccnz L_%s_l" % (tag, tag))
        a("L_%s_o:\ns_mov_b64 exec, -1\ns_mov_b32 s42, %d" % (tag, SPIN))
        if lead: a("s_barrier")

    a.raw("; @launch grid=(512,1,1) block=(512,1,1) lds=%d" % LDS_TOTAL)
    a.raw('.amdgcn_target "amdgcn-amd-amdhsa--gfx950"\n.text')
    k = NAME + "_kernel"
    a.raw(".globl %s\n.p2align 8\n.type %s,@function\n%s:" % (k,k,k))
    B0, B1, B2 = 88, 92, 96
    E0, E1, E2 = 100, 108, 116
    C_, Sn = 116, 120
    Ma, Fb, Mi, A2 = 32, 40, 50, 56
    Wa = 64; F0, F1 = 16, 80
    M1re, M1im, M3, M2, A1 = 32, 36, 40, 48, 64
    osc = opt.get("osc", "")
    W3 = 16
    NT = opt.get('nt', 'nt'); NTW = opt.get('ntw', ''); WPOS = opt.get('wpos', 2)
    def t1_late():
        a("s_load_dwordx2 s[12:13], s[0:1], 96")
        srd_consts(8, WS_USED); srd_consts(12, 0x400000)
    def sig(vt, soff, mask=1, voff=None):
        a("s_mov_b64 exec, 0x%x" % mask)
        if voff is None: a("buffer_store_dwordx2 %s, off, s[8:11], %s sc1" % (V(vt,2), S(soff)))
        else: a("buffer_store_dwordx2 %s, %s, s[8:11], %s offen sc1" % (V(vt,2), V(voff), S(soff)))
        a("s_mov_b64 exec, -1")
    def derive(m, m1, m2):
        a("v_xor_b32 %s, %s, %s\nv_xor_b32 %s, %s, %s" % (V(m+4), V(m+2), V(m1), V(m+5), V(m+3), V(m1)))
        a("v_xor_b32 %s, %s, %s\nv_xor_b32 %s, %s, %s" % (V(m+6), V(m), V(m2), V(m+7), V(m+1), V(m2)))
    def poll12(tag, loads, cond, check=True):
        a("L_%s:" % tag)
        if opt.get("sl_"+tag): a("s_sleep %d" % opt["sl_"+tag])
        loads(0); loads(1)
        a("%s\ns_cbranch_scc0 L_%s_w" % (cond, tag))
        loads(2)
        a("L_%s_w:\ns_waitcnt vmcnt(0)" % tag)
        if not check: return
        for i in range(4): a("v_bitop3_b32 %s, %s, %s, %s bitop3:0x80" % (V(4+i), V(88+3*i), V(89+3*i), V(90+3*i)))
        a("v_bitop3_b32 v4, v4, v5, v6 bitop3:0x80\nv_bitop3_b32 v4, v4, v7, 1 bitop3:0x80\nv_cmp_eq_u32 vcc, 0, v4")
        a("s_sub_u32 s42, s42, 1\ns_cbranch_scc1 L_%s_done\ns_cbranch_vccnz L_%s" % (tag, tag))
        a("L_%s_done:" % tag)
    def prefetch():
        if opt.get("wpf", 1) in (6,7):
            a("s_and_b32 s74, s2, 0xf8\ns_add_u32 s74, s74, s24\ns_lshl_b32 s74, s74, 3\ns_and_b32 s75, s2, 7\ns_add_u32 s74, s74, s75\ns_mul_i32 s74, s74, 514\ns_add_u32 s74, s74, 2")
            a("v_lshrrev_b32 v127, 1, v1\nv_add_u32 v127, s74, v127")
            if opt.get("wpf") == 7: a("s_barrier")
            a("global_load_dwordx2 v[28:29], v127, s[76:77] nt\nglobal_load_dwordx2 v[28:29], v127, s[78:79] nt")
        if not opt.get("pf", 0): return
        a("s_getpc_b64 s[72:73]\nLpf%d:\ns_and_b32 s74, s2, 0x78\ns_add_u32 s74, s74, s24\ns_lshl_b32 s74, s74, 7\ns_min_u32 s74, s74, Lcode_end-%s-4" % (npf[0], k))
        a("s_sub_u32 s72, s72, Lpf%d-%s\ns_subb_u32 s73, s73, 0\ns_load_dword s75, s[72:73], s74" % (npf[0], k))
        npf[0] += 1
    npf = [0]
    def wsadj():
        if opt.get("wsbase"): a("s_cselect_b32 s51, 1, 0\ns_add_u32 s8, s8, 0x%x\ns_addc_u32 s9, s9, 0\ns_cmp_lg_u32 s51, 0" % opt["wsbase"])
    stamp(0)
    a("s_load_dwordx2 s[8:9], s[0:1], 112")
    if opt.get("swap", 0): a("s_xor_b32 s2, s2, 256")
    a("s_cmp_lt_u32 s2, 128\ns_cselect_b32 s3, 24, 0")
    a("s_load_dwordx2 s[4:5], s[0:1], s3")
    a("s_load_dwordx16 s[56:71], s[0:1], 32")
    WX = 2 if opt.get("wpf", 1) in (6,7) else 0
    if WX: a("s_load_dwordx4 s[76:79], s[0:1], 8")
    a("s_setprio 3")
    a("v_readfirstlane_b32 s24, v0")
    a("v_lshlrev_b32 v14, 4, v0\nv_and_b32 v2, 15, v0\nv_bfe_u32 v3, v0, 4, 2\nv_and_b32 v1, 0x3f0, v14")
    srd_consts(4, 0x200000)
    a("s_cbranch_scc1 L_T")
    a("s_cmp_lt_u32 s2, 256\ns_cbranch_scc1 L_A")
    a("s_cmp_ge_u32 s2, 512\ns_cbranch_scc1 L_end")
    a("s_sub_u32 s25, s2, 256")
    a("s_lshl_b32 s3, s25, 9\nv_and_b32 v6, 255, v0\nv_lshl_add_u32 v5, v6, 1, s3")
    a("s_lshl_b32 s3, s25, 2\ns_cmp_ge_u32 s24, 256")
    for i in range(6): a("v_mov_b32 %s, 0" % V(16+i))
    a("s_waitcnt lgkmcnt(0)")
    stamp(1)
    wsadj()
    a("s_load_dword s30, s[68:69], s3\ns_load_dword s31, s[70:71], s3")
    a("s_load_dwordx4 s[16:19], s[0:1], 8")
    for i in range(2): a("global_load_short_d16_hi %s, v5, %s %s" % (V(16+i), S(56+2*i,2), NT))
    a("s_cbranch_scc1 L_type2")
    for i in range(2,6): a("global_load_short_d16_hi %s, v5, %s %s" % (V(16+i), S(56+2*i,2), NT))
    a("L_type2:")
    K1, K2, GA = 24, 28, 32
    a("s_setprio 1")
    srd_consts(8, WS_USED)
    a("s_lshr_b32 s24, s24, 6")
    a("s_bfe_u32 s26, s24, 0x10001\ns_mul_i32 s27, s26, %d\ns_add_u32 s27, s27, %d\ns_mul_i32 s28, s26, %d" % (CCH, CP, USTR))
    a("s_and_b32 s29, s24, 1\ns_lshr_b32 s32, s24, 2\ns_lshl_b32 s3, s32, 1\ns_add_u32 s29, s29, s3")
    a("v_bfe_u32 v4, v0, 2, 5\nv_mul_u32_u24 v4, %d, v4\nv_and_b32 v7, 3, v0\nv_lshl_add_u32 v4, v7, 2, v4\nv_add_u32 %s, s27, v4" % (GP, V(K1)))
    a("v_bfrev_b32 v4, v3\nv_lshrrev_b32 v4, 27, v4\nv_mul_u32_u24 v4, %d, v4\nv_lshl_add_u32 v4, v2, 4, v4\nv_add_u32 %s, s27, v4" % (GP, V(K1+1)))
    a("s_lshl_b32 s3, s29, 8\nv_add_u32 %s, s3, %s" % (V(K1+2), V(K1+1)))
    a("v_and_b32 v4, 3, v2\nv_mul_u32_u24 v4, %d, v4\nv_lshrrev_b32 v10, 2, v2\nv_sub_u32 v10, v3, v10\nv_lshl_add_u32 v4, v10, 4, v4\ns_add_u32 s3, s27, %d\nv_add_u32 %s, s3, v4" % (CSTR, 2*(2040-256*7)-64, V(K2)))
    a("v_and_b32 v7, 1, v2\nv_lshrrev_b32 v4, 1, v2\nv_lshlrev_b32 v4, 6, v4\nv_lshl_add_u32 v4, v3, 4, v4\nv_mul_u32_u24 v10, %d, v7\ns_add_u32 s3, s28, %d\nv_add3_u32 %s, v4, v10, s3\nv_lshl_add_u32 %s, v7, 3, v4" % (UCP, UPAD-64, V(K2+1), V(K2+2)))
    a("s_mul_i32 s3, s32, %d\ns_add_u32 s3, s3, %d\nv_lshl_add_u32 %s, v6, 4, s3" % (CCH, CP, V(K2+3)))
    a("v_mul_u32_u24 v4, %d, v7\nv_lshrrev_b32 v47, 1, v0\nv_lshl_add_u32 v15, v47, 4, v4" % USTR)
    for j in range(4): a("v_mov_b32 %s, 0" % V(120+j))
    a("v_cmp_gt_u32 vcc, 72, v0\ns_and_saveexec_b64 s[40:41], vcc\nds_write_b128 v15, v[120:123]\nds_write_b128 v15, v[120:123] offset:%d\ns_mov_b64 exec, -1" % UCP)
    a("s_lshr_b32 s3, s25, 5\ns_lshl_b32 s3, s3, 7\ns_add_u32 s46, s3, 0x%x" % EPB)
    FT = opt.get("ftouch", 1)
    a("buffer_load_dwordx2 v[12:13], off, s[8:11], s46")
    if FT:
        a("s_lshl_b32 s3, s25, 7\ns_add_u32 s3, s3, 0x%x\ns_cmp_eq_u32 s24, 7\ns_cselect_b32 s3, s3, 0x8000000\nv_lshlrev_b32 v4, 6, v2\ns_mov_b64 exec, 3" % FLA)
        a("buffer_atomic_or v120, v4, s[8:11], s3 offen sc1\ns_mov_b64 exec, -1")
    a("s_lshl_b32 s44, s25, 13\ns_add_u32 s45, s44, 0x%x\ns_add_u32 s44, s44, 0x%x" % (UT, YT))
    a("s_lshr_b32 s39, s25, 4\ns_lshl_b32 s39, s39, 9\ns_add_u32 s39, s39, 0x%x\nv_lshrrev_b32 v22, 1, v1" % FLB)
    a("v_lshlrev_b32 v4, 3, v6\nv_sub_u32 v4, 2047, v4\nv_max_u32 v5, 143, v4\nv_sub_u32 v4, v4, v5\nv_cvt_f32_u32 v5, v5")
    a("s_mul_i32 s34, s32, %d\ns_add_u32 s3, s34, %d\nv_mov_b32 v9, s34\nv_lshl_add_u32 v4, v4, 2, s3" % (USTR, UPAD - 4*0x4280))
    for i in range(0, 12, 2):
        a("v_subrev_f32 v7, %s, v5\nv_subrev_f32 v8, %s, v5\nv_cvt_pk_bf16_f32 v7, v7, v8\nv_and_b32 v8, 0xffff, v7\nv_lshl_add_u32 %s, v8, 2, v4" % (f32(float(i)), f32(float(i+1)), V(GA+i)))
        if i < 10: a("v_lshrrev_b32 v7, 16, v7\nv_lshl_add_u32 %s, v7, 2, v4" % V(GA+i+1))
    a("v_cmp_eq_u32 vcc, 255, v6")
    for i in range(8,11): a("v_cndmask_b32 %s, %s, v9, vcc" % (V(GA+i), V(GA+i)))
    a("s_waitcnt lgkmcnt(0)")
    a("s_lshl_b32 s3, s26, 4\ns_lshr_b32 s30, s30, s3\ns_lshl_b32 s30, s30, 16\ns_lshl_b32 s3, s32, 4\ns_lshr_b32 s31, s31, s3\ns_lshl_b32 s31, s31, 16")
    a("v_mov_b32 v46, %s\nv_mul_f32 v46, s30, v46\nv_exp_f32 v46, v46\nv_cvt_pk_bf16_f32 v46, v46, v46\nv_and_b32 v46, 0xffff0000, v46" % f32(1.4426950408889634))
    def w_pf():
        if opt.get("wpf", 1) == 0: return
        fl = opt.get("wpfnt", "nt")
        a("global_load_dwordx2 v[124:125], v126, s[16:17] %s\nglobal_load_dwordx2 v[124:125], v126, s[18:19] %s" % (fl, fl))
    a("s_and_b32 s3, s25, 0xf8\ns_add_u32 s3, s3, s24\ns_lshl_b32 s3, s3, 3\ns_and_b32 s33, s25, 7\ns_add_u32 s3, s3, s33\ns_mul_i32 s3, s3, 514\ns_add_u32 s3, s3, 2\nv_add_u32 v126, s3, v22")
    if opt.get("wpf", 1) == 2: w_pf()
    def w_spf():
        a("s_and_b32 s3, s3, -4\ns_add_u32 s16, s16, s3\ns_addc_u32 s17, s17, 0\ns_add_u32 s18, s18, s3\ns_addc_u32 s19, s19, 0")
        for i,off in enumerate((0,128,256,384,508)):
            a("s_load_dword s%d, s[16:17], %d\ns_load_dword s%d, s[18:19], %d" % (56+2*i, off, 57+2*i, off))
    if opt.get("wpf", 1) == 3: w_spf()
    a("s_cmp_ge_u32 s24, 4")
    a("s_waitcnt vmcnt(%d)" % (FT + (3 if opt.get("wpf", 1) == 2 else (0 if opt.get("wpf", 1) == 5 else 1))))
    stamp(2)
    if opt.get("wpf", 1) == 1: w_pf()
    if opt.get("wpf", 1) == 5:
        a("s_cmp_lt_u32 s25, 128\ns_cbranch_scc1 L_nopf")
        w_pf()
        a("v_subrev_u32 v126, %d, v126" % (1024*514))
        w_pf()
        a("L_nopf:\ns_cmp_ge_u32 s24, 4")
    if opt.get("wpf", 1) == 4:
        w_spf(); a("s_cmp_ge_u32 s24, 4")
    a("v_mul_f32 v44, v46, v16\nv_mul_f32 v45, v46, v17\nv_mul_f32 v44, %s, v44\nv_mul_f32 v45, 0.15915494, v45" % f32(1.4426950408889634))
    def directs(lst):
        for i,(d,p) in enumerate(lst): a("v_mul_f32 %s, %s, v44\nv_mul_f32 %s, %s, v45" % (V(4+2*i), f32(p), V(5+2*i), f32(p)))
        for i,(d,p) in enumerate(lst): a("v_fract_f32 %s, %s" % (V(5+2*i), V(5+2*i)))
        for i,(d,p) in enumerate(lst): a("v_exp_f32 %s, %s\nv_cos_f32 %s, %s\nv_sin_f32 %s, %s" % (V(4+2*i), V(4+2*i), V(d), V(5+2*i), V(d+1), V(5+2*i)))
        for i,(d,p) in enumerate(lst): a("v_pk_mul_f32 %s, %s, %s op_sel_hi:[1,0]" % (V(d,2), V(d,2), V(4+2*i,2)))
    def cmul1(z, x, y): a("v_pk_mul_f32 %s, %s, %s op_sel:[0,0] op_sel_hi:[0,1]" % (V(z,2), V(x,2), V(y,2)))
    def cmul2(z, x, y): a("v_pk_fma_f32 %s, %s, %s, %s op_sel:[1,1,0] op_sel_hi:[1,0,1] neg_lo:[1,0,0]" % (V(z,2), V(x,2), V(y,2), V(z,2)))
    def cmuls(ops):
        for z,x,y in ops: cmul1(z,x,y)
        for z,x,y in ops: cmul2(z,x,y)
    tcount = [0]; pend = []
    def put(rows, neg=False):
        ts = []
        for row, r in rows:
            t = 4 + (tcount[0] % 8); tcount[0] += 1; ts.append(t)
            pk(t, r, r+1, False, neg)
        pend.extend((row, t) for (row, r), t in zip(rows, ts))
        while len(pend) >= 2:
            (r0,t0),(r1,t1) = pend.pop(0), pend.pop(0)
            a("ds_write2_b32 %s, %s, %s offset0:%d offset1:%d" % (V(K1), V(t0), V(t1), 4*r0, 4*r1))
    def putflush():
        while pend:
            r0,t0 = pend.pop(0); a("ds_write_b32 %s, %s offset:%d" % (V(K1), V(t0), 16*r0))
    a("s_cbranch_scc1 L_kg1")
    e8, e32, e128, e256 = 48, 50, 52, 54
    directs([(e8, 8.0), (e128, 128.0), (96, 1024.0)])
    EE = 64
    a("v_pk_mul_f32 v[18:19], v[18:19], v[46:47] op_sel_hi:[1,0]")
    cmuls([(EE, 20, 18), (56, e8, e8), (e256, e128, e128), (98, 96, e128)])
    cmuls([(EE+2, EE, e8), (EE+4, EE, 56), (e32, 56, 56), (100, 96, e256), (102, 98, e256)])
    cmuls([(EE+6, EE+2, 56), (104, 100, e256), (106, 102, e256)])
    put([(48+i, 96+2*i) for i in range(4)])
    for blk in range(1,4):
        ops = [(EE+8*blk+2*i, EE+8*(blk-1)+2*i, e32) for i in range(4)]
        if blk == 1: ops += [(108, 104, e256), (110, 106, e256)]
        if blk == 2: ops += [(112, 108, e256)]
        cmuls(ops)
        put([(4*(blk-1)+i, EE+8*(blk-1)+2*i) for i in range(4)], True)
    put([(12+i, EE+24+2*i) for i in range(4)], True)
    put([(52+i, 104+2*i) for i in range(5)])
    putflush()
    a("s_branch L_kg2")
    a("L_kg1:")
    LO = 48
    BL = 64; TM = 80
    directs([(LO+2, 1.0), (BL+2, 128.0)])
    a("v_mov_b32 v48, 0x3f80"); pend.append((16, 48))
    cmuls([(LO+4, LO+2, LO+2), (BL+4, BL+2, BL+2)])
    cmuls([(LO+6, LO+4, LO+2), (LO+8, LO+4, LO+4), (BL+6, BL+4, BL+2), (BL+8, BL+4, BL+4)])
    cmuls([(LO+10, LO+8, LO+2), (LO+12, LO+8, LO+4), (LO+14, LO+8, LO+6), (BL+10, BL+8, BL+2), (BL+12, BL+8, BL+4), (BL+14, BL+8, BL+6)])
    put([(16+kx, LO+2*kx) for kx in range(1,8)])
    cmuls([(TM+2*kx, LO+2*kx, BL+2) for kx in range(1,8)])
    put([(24, BL+2), (32, BL+4), (36, BL+6), (40, BL+8), (42, BL+10), (44, BL+12), (46, BL+14)])
    cmuls([(TM+16+2*i, LO+4*(1+i%3), BL+4+2*(i//3)) for i in range(6)])
    put([(24+kx, TM+2*kx) for kx in range(1,8)])
    cmuls([(TM+2*i, LO+8, BL+8+2*i) for i in range(4)])
    put([(33+(i%3)+4*(i//3), TM+16+2*i) for i in range(6)])
    put([(41+2*i, TM+2*i) for i in range(4)])
    putflush()
    a("L_kg2:")
    a("s_waitcnt vmcnt(%d) lgkmcnt(0)\ns_barrier" % (2 if opt.get("wpf", 1) in (1,2) else (4 if opt.get("wpf", 1) == 5 else 0)))
    stamp(3)
    if stamps: a("s_waitcnt lgkmcnt(0)")
    a("v_lshl_add_u64 v[12:13], v[12:13], 0, 1")
    UM = opt.get("umode", 1)
    if UM == 0: a("s_cmp_eq_u32 s24, 7\ns_cbranch_scc1 L_upoll")
    a("s_and_b32 s3, s24, 5\ns_cmp_eq_u32 s3, 5\ns_cbranch_scc1 L_kg3")
    for ks in range(8):
        a("ds_read_b128 %s, %s offset:%d\nds_read_b128 %s, %s offset:%d" % (V(48+8*ks,4), V(K1+2), GP*ks+256, V(52+8*ks,4), V(K1+1), GP*ks))
    a("s_add_u32 s35, s28, %d\ns_cmp_eq_u32 s29, 1\ns_cbranch_scc1 L_ka1\ns_cmp_eq_u32 s29, 0\ns_cbranch_scc1 L_ka0" % UPAD)
    a("v_lshlrev_b32 v4, 2, v2\nv_lshl_add_u32 v4, v3, 8, v4\nv_add_u32 v4, 2048, v4\nv_mov_b32 v5, 64\nv_mov_b32 v6, 128\ns_branch L_ka2")
    a("L_ka0:\nv_lshrrev_b32 v5, 1, v3\nv_lshlrev_b32 v4, 5, v2\nv_lshl_add_u32 v4, v5, 9, v4\nv_and_b32 v5, 1, v3\nv_lshl_add_u32 v4, v5, 4, v4\nv_mov_b32 v5, 4\nv_mov_b32 v6, 8\ns_branch L_ka2")
    a("L_ka1:\nv_lshrrev_b32 v5, 1, v3\nv_sub_u32 v4, 4, v5\nv_lshlrev_b32 v4, v4, v2\nv_lshl_add_u32 v4, v3, 8, v4\nv_add_u32 v4, 1024, v4\nv_mul_u32_u24 v6, 120, v5\nv_add_u32 v6, 8, v6\nv_mov_b32 v5, 4")
    a("L_ka2:\nv_add_u32 v4, s35, v4\nv_add_u32 v6, v4, v6\nv_add_u32 v7, v6, v5\nv_add_u32 v5, v4, v5")
    for ks in range(8):
        a("s_waitcnt lgkmcnt(%d)" % (14-2*ks))
        mfma(112, 48+8*ks, 52+8*ks, "0" if ks == 0 else 112)
    for j in range(4): a("ds_write_b32 %s, %s" % (V(4+j), V(112+j)))
    a("L_kg3:")
    a("s_waitcnt lgkmcnt(0)\ns_barrier")
    if UM == 0: a("buffer_load_dwordx4 v[16:19], v14, s[8:11], s45 offen sc1")
    stamp("c_kf")
    for i in range(11): a("ds_read_b32 %s, %s" % (V(80+i), V(GA+i)))
    a("v_and_b32 v6, 255, v0\nv_cmp_eq_u32 vcc, 255, v6\nv_mov_b32 v23, s31\nv_cndmask_b32 v23, 0, v23, vcc")
    a("v_cmp_lt_u32 vcc, 252, v6\ns_and_saveexec_b64 s[40:41], vcc\ns_cbranch_execz L_kg4")
    for s_ in range(4): a("ds_write_b128 %s, v[120:123] offset:%d" % (V(K2+3), s_*CSTR+48))
    a("L_kg4:\ns_mov_b64 exec, -1")
    a("s_lshl_b32 s3, s26, 12\ns_add_u32 s44, s44, s3")
    a("s_waitcnt lgkmcnt(0)")
    a("v_add_f32 v87, v87, v23")
    for d in range(4):
        for kx in range(4): pk(48+4*d+kx, 80+d+2*kx, 80+d+2*kx+1)
        a("ds_write_b128 %s, %s offset:%d" % (V(K2+3), V(48+4*d,4), (3-d)*CSTR))
    stamp(4)
    a("s_setprio 2")
    ACC = 32; FR = 48
    for j in range(16): a("v_mov_b32 %s, 0" % V(ACC+j))
    if UM == 1:
        a("s_cmp_lg_u32 s24, 0\ns_cbranch_scc1 L_h1c_done")
        opt["pm_h1c"] = opt["pm_h1b"]; opt["sl_h1c"] = opt.get("sl_h1b", 0)
        poll_flags("h1c", 22, 39, 12, "-1")
    if UM == 2:
        a("s_barrier\ns_lshl_b32 s3, s24, 6\ns_add_u32 s39, s39, s3")
        opt["pm_h1c"] = opt["pm_h1b"]; opt["sl_h1c"] = opt.get("sl_h1b", 0)
        poll_flags("h1c", 22, 39, 12, "0xff")
    stamp(5)
    if UM != 2: a("s_barrier")
    if UM: a("buffer_load_dwordx4 v[16:19], v14, s[8:11], s45 offen sc1")
    if opt.get("uearly", 0):
        a("s_mov_b32 s42, %d\ns_branch L_uchk\nL_uld:\nbuffer_load_dwordx4 v[16:19], v14, s[8:11], s45 offen sc1\nL_uchk:\ns_waitcnt vmcnt(0)" % SPIN)
        a("v_max3_u32 v4, v16, v17, v18\nv_max_u32 v4, v4, v19\nv_cmp_eq_u32 vcc, -1, v4\ns_sub_u32 s42, s42, 1\ns_cbranch_scc1 L_udone\ns_cbranch_vccnz L_uld\nL_udone:")
    a("s_mov_b32 s42, 8\ns_waitcnt vmcnt(0)")
    stamp(6)
    a("ds_write_b128 v15, v[16:19] offset:%d" % (UCP+UPAD))
    a("ds_write_b64 v15, v[16:17] offset:%d\nds_write_b64 v15, v[18:19] offset:%d" % (UPAD+8, UPAD+16))
    a("v_cmp_gt_u32 vcc, 2, v0\ns_and_saveexec_b64 s[40:41], vcc\nds_write_b64 v15, v[120:121] offset:%d\ns_mov_b64 exec, -1" % UPAD)
    a("s_waitcnt lgkmcnt(0)\ns_barrier")
    stamp("c_b")
    if smap: a("s_waitcnt lgkmcnt(0)")
    a("s_cmp_ge_u32 s24, 4\ns_cbranch_scc1 L_fchk")
    a("s_bitcmp1_b32 s24, 0\ns_cbranch_scc1 L_cv1")
    def conv(tag, tiles, seq):
        n = len(seq)
        keys = []
        for _,x,y in seq:
            for kx in (x,y):
                if kx not in keys: keys.append(kx)
        reg = {kx: FR+4*i for i,kx in enumerate(keys)}
        assert FR+4*len(keys) <= 120
        last = {}; first = {}
        for i,(_,x,y) in enumerate(seq):
            for kx in (x,y):
                last[kx] = i; first.setdefault(kx, i)
        used = {n-1}; gap = {}
        for kx in sorted(keys, key=lambda q: (first[q]+n, last[q])):
            gq = last[kx]
            while gq % n in used and len(used) < n: gq += 1
            if first[kx] + n - gq < 7: gq = last[kx]
            used.add(gq % n); gap[kx] = gq
        free = [i for i in range(n-1) if i not in {gq % n for gq in gap.values()}]
        dec = {"A": (free + [3])[0], "B": (free[1:] + [9])[0]}
        def rd(kx, rel):
            if kx[0] == "A": a("ds_read_b128 %s, %s offset:%d" % (V(reg[kx],4), V(K2), (7-kx[1])*512 + rel))
            else: a("ds_read_b128 %s, %s offset:%d" % (V(reg[kx],4), V(K2+1), kx[1]*512 + rel))
        order = sorted(keys, key=lambda q: (gap[q] % n, keys.index(q)))
        for kx in order:
            if gap[kx] < n: rd(kx, 64)
        a("L_cvl%s:" % tag)
        WG_ = opt.get("waitgroup", 4)
        for i,(ti,x,y) in enumerate(seq):
            if i % WG_ == 0:
                need = [kx for ii in range(i, min(i+WG_, n)) for kx in seq[ii][1:] if first[kx] == ii]
                if need:
                    def age(kx):
                        g0 = gap[kx] - n
                        assert g0 < i
                        cnt = 0
                        for q in order:
                            for gg in ((gap[q] % n,) if gap[q] >= n else (gap[q] - n, gap[q])):
                                if gg < i and (gg > g0 or (gg == g0 and order.index(q) > order.index(kx))): cnt += 1
                        return cnt
                    a("s_waitcnt lgkmcnt(%d)" % min(min(age(kx) for kx in need), 15))
            mfma(ACC+4*ti, reg[x], reg[y], ACC+4*ti)
            for kx in order:
                if gap[kx] % n == i:
                    rel = (64 if gap[kx] >= n else 0) + (64 if i > dec[kx[0]] else 0)
                    rd(kx, rel)
            for kk,rg in (("A",K2),("B",K2+1)):
                if dec[kk] == i: a("v_subrev_u32 %s, 64, %s" % (V(rg), V(rg)))
            if i == 5: a("s_sub_u32 s42, s42, 1")
            if i == 6: a("s_cmp_lg_u32 s42, 0")
        a("s_cbranch_scc1 L_cvl%s" % tag)
        stamp("c_end")
        a("s_barrier")
        stamp(7)
        for ti,e in reversed(list(enumerate(tiles))):
            pk2(4+2*ti, ACC+4*ti)
            a("buffer_store_dwordx2 %s, %s, s[8:11], s44 offen offset:%d sc1" % (V(4+2*ti,2), V(K2+2), e*512))
        if stamps: a("s_waitcnt vmcnt(0)")
        stamp(8)
    seq0 = [(0,("A",0),("B",7)), (1,("A",0),("B",6)), (2,("A",0),("B",1,"x")), (3,("A",0),("B",0,"x")),
            (0,("A",1),("B",6)), (1,("A",1),("B",5)), (2,("A",1),("B",0,"x"))]
    for m in range(2,8):
        seq0.append((0,("A",m),("B",7-m)))
        if m < 7: seq0.append((1,("A",m),("B",6-m)))
    conv("0", [7,6,1,0], seq0)
    write_stamps(9, "c")
    a("s_endpgm")
    a("L_cv1:")
    seq1 = []
    for m in range(6):
        for ti,e in enumerate([5,4,3,2]):
            if m <= e: seq1.append((ti,("A",m),("B",e-m)))
    conv("1", [5,4,3,2], seq1)
    if opt.get("stampwave",0) & 1: write_stamps(9, "d")
    a("s_endpgm")
    a("L_upoll:")
    if opt.get("wgb", 0):
        a("s_lshr_b32 s39, s25, 5\ns_lshl_b32 s39, s39, 7\ns_and_b32 s3, s25, %d\ns_lshl_b32 s3, s3, 10\ns_add_u32 s39, s39, s3\ns_add_u32 s39, s39, 0x%x" % (opt["wgb"]-1, FLB))
        poll_flags("h1b", 22, 39, 12)
    else: poll_flags("h1b", 22, 39, 12, "-1")
    a("s_branch L_kg3")
    a("L_fchk:")
    for j in range(4): a("v_mov_b32 %s, -1" % V(116+j))
    a("s_add_u32 s45, s45, 0x%x\ns_sub_u32 s44, s45, 4096" % (YT-UT))
    a("buffer_store_dwordx4 v[116:119], v14, s[8:11], s44 offen sc1\nbuffer_store_dwordx4 v[116:119], v14, s[8:11], s45 offen sc1")
    a("s_lshr_b32 s3, s25, 4\ns_lshl_b32 s3, s3, 2\ns_add_u32 s3, s3, s24\ns_lshl_b32 s3, s3, 7\ns_and_b32 s33, s25, 15\ns_lshl_b32 s33, s33, 3\ns_add_u32 s3, s3, s33\ns_add_u32 s3, s3, 0x%x" % (FLB+FLB2-512))
    a("s_waitcnt vmcnt(0)")
    sig(12, 3)
    a("s_barrier")
    a("s_endpgm")
    a("L_A:")
    a("s_lshr_b32 s24, s24, 6\ns_sub_u32 s50, s2, 128")
    a("s_lshl_b32 s31, s24, 17\ns_lshl_b32 s3, s50, 10\ns_add_u32 s31, s31, s3\ns_add_u32 s32, s31, 0x100000")
    a("s_lshl_b32 s33, s24, 10\ns_mov_b32 m0, s33")
    a("s_cmp_lg_u32 s24, 0\ns_cselect_b32 s41, 0x8000000, 0\ns_cselect_b32 s38, s24, 16")
    t1_late()
    a("s_sub_u32 s26, 7, s24")
    a("s_and_b32 s3, s50, 7\ns_lshl_b32 s3, s3, 4\ns_lshr_b32 s37, s50, 3\ns_add_u32 s37, s37, s3")
    a("s_lshl_b32 s47, s37, 3\ns_lshl_b32 s3, s26, 10\ns_add_u32 s46, s47, s3\ns_add_u32 s46, s46, 0x%x\ns_add_u32 s47, s47, 0x%x" % (FLA, FLA+FLA2))
    a("s_lshl_b32 s37, s37, 7\ns_lshl_b32 s3, s26, 14\ns_add_u32 s43, s37, s3\ns_add_u32 s36, s37, %d" % (8*16384))
    a("v_cvt_f32_u32 v71, v2\nv_cvt_f32_u32 v87, v3\nv_mul_f32 v4, %s, v71\nv_mul_f32 v87, 4.0, v87\nv_mul_f32 v6, v87, v4" % f32(1/32))
    cs4(C_, Sn, 6, 4, 8)
    a("v_cmp_eq_u32 s[52:53], 0, v2\nv_mov_b32 v76, 0xbf803f80")
    a("v_lshlrev_b32 v4, 31, v2\nv_lshrrev_b32 v5, 16, v4\nv_or_b32 v4, v4, v5")
    pk2(M1re, C_); pk2(M1im, Sn, True)
    a("v_cndmask_b32 v36, v36, v76, s[52:53]\nv_cndmask_b32 v37, v37, v76, s[52:53]")
    a("v_xor_b32 v34, v32, v4\nv_xor_b32 v35, v33, v4\nv_xor_b32 v38, v36, v4\nv_xor_b32 v39, v37, v4")
    a("s_waitcnt lgkmcnt(0)")
    stamp(1)
    wsadj()
    a("buffer_load_dwordx4 v1, s[4:7], s31 offen %s lds" % NT)
    a("s_add_u32 m0, s33, 8192")
    a("buffer_load_dwordx4 v1, s[4:7], s32 offen %s lds" % NT)
    a("s_mov_b32 s3, 0x%x\nbuffer_load_dwordx2 v[12:13], off, s[8:11], s3" % EPA)
    prefetch()
    a("v_lshrrev_b32 v68, 1, v1\nv_add_u32 v68, s33, v68")
    a("s_lshl_b32 s3, s24, 4\nv_add_u32 v15, s3, v14")
    a("v_lshlrev_b32 v69, 8, v3\nv_mul_u32_u24 v4, 1040, v2\nv_add3_u32 %s, v4, v69, s3" % V(A1))
    a("v_bfe_i32 v86, v2, 3, 1\nv_and_b32 v84, 0x80008000, v86\nv_xor_b32 v85, 0x80008000, v84")
    a("v_xor_b32 v4, v2, v86\nv_and_b32 v4, 7, v4\nv_mul_u32_u24 v4, 2064, v4\nv_add_u32 v4, v4, v69")
    a("s_lshl_b32 s38, s38, 4\ns_sub_u32 s38, 1280, s38\ns_sub_u32 s39, 1152, s3\ns_add_u32 s40, s3, 128")
    a("v_cmp_gt_u32 vcc, 8, v2\nv_mov_b32 v5, s38\nv_mov_b32 v6, s3\nv_mov_b32 v7, s39\nv_mov_b32 v8, s40")
    a("v_cndmask_b32 v5, v5, v6, vcc\nv_cndmask_b32 v7, v7, v8, vcc\nv_add_u32 %s, v4, v5\nv_add_u32 %s, v4, v7" % (V(A1+1), V(A1+2)))
    a("v_and_b32 v4, 0x1cf, v0\nv_cmp_ne_u32 vcc, 0x1c0, v4\nv_cndmask_b32 %s, 0, -1, vcc" % V(A1+3))
    EARLY = 0
    FP = -1
    def fill2():
        a("buffer_store_dwordx4 v[28:31], v1, s[8:11], s35 offen sc1\nbuffer_store_dwordx4 v[28:31], v1, s[8:11], s35 offen offset:1024 sc1")
        a("buffer_store_dwordx4 v[28:31], v1, s[8:11], s48 offen sc1")
    if FP == 0: fill2()
    a("v_lshl_add_u32 v5, v2, 5, s24\nv_add_u32 v4, 8, v5\nv_cvt_f32_u32 v4, v4\nv_mul_f32 v4, %s, v4\nv_mul_f32 v6, v87, v4" % f32(1/512))
    cs4(C_, Sn, 6, 4, 8)
    a("s_cmp_eq_u32 s24, 0\ns_cselect_b32 s3, 16, 0\nv_and_b32 v4, s3, v86\nv_add_u32 v4, v4, v5\nv_cvt_f32_u32 v4, v4\nv_mul_f32 v4, %s, v4\nv_mul_f32 v6, v87, v4" % f32(1/512))
    pk2(M2+8, C_); pk2(M2+10, Sn)
    cs4(C_, Sn, 6, 4, 8)
    derive(M2+8, 85, 84)
    pk2(M2, C_); pk2(M2+2, Sn)
    derive(M2, 85, 84)
    stamp("a_pre")
    a("s_cbranch_scc0 L_p1_m2")
    a("v_cndmask_b32 %s, %s, v76, s[52:53]\nv_cndmask_b32 %s, %s, v76, s[52:53]" % (V(M2+4), V(M2+4), V(M2+5), V(M2+5)))
    for m in (M2, M2+4):
        for j in range(2):
            a("v_and_b32 %s, %s, v86\nv_xor_b32 %s, %s, %s" % (V(m+2+j), V(m+j), V(m+j), V(m+j), V(m+2+j)))
    a("L_p1_m2:")
    a("v_lshl_add_u32 v4, v3, 9, s50\nv_mul_u32_u24 v4, v4, v2\nv_cvt_f32_u32 v6, v4\nv_mul_f32 v6, %s, v6\nv_mul_f32 v4, %s, v71" % (f32(1/2048), f32(1/16)))
    cs4(C_, Sn, 6, 4, 8)
    pk2(M3, Sn, True); pk2(M3+2, C_); pk2(M3+4, Sn)
    a("s_mul_i32 s3, s26, 2064\nv_add_u32 v70, s3, v1")
    a("v_mul_u32_u24 v16, %d, v3\nv_lshl_add_u32 v16, v2, 2, v16\nv_add_u32 v17, %d, v16\nv_add_u32 v18, %d, v16\nv_add_u32 v19, %d, v16" % (4*QS, QS, 2*QS, 3*QS))
    a("v_mov_b32 %s, 0\nv_mov_b32 %s, 0\nv_lshlrev_b32 v10, 13, v2\nv_mov_b32 v27, 0" % (V(B2+2), V(B2+3)))
    a("s_waitcnt vmcnt(%d) lgkmcnt(0)" % (1 + WX))
    stamp(2)
    a("ds_read_b64_tr_b16 v[88:89], v68\nds_read_b64_tr_b16 v[90:91], v68 offset:512")
    a("ds_read_b64_tr_b16 v[92:93], v68 offset:8192\nds_read_b64_tr_b16 v[94:95], v68 offset:8704")
    if FP == 1: fill2()
    if stamps: a("s_waitcnt lgkmcnt(0)")
    a("s_waitcnt lgkmcnt(2)")
    mfma(E0, B0, M1re); mfma(E0+4, B0, M1im)
    a("s_waitcnt lgkmcnt(0)")
    mfma(E1, B1, M1re); mfma(E1+4, B1, M1im)
    planar(B0, E0, E0+4)
    a("ds_write_b128 %s, %s offset:%d" % (V(A1), V(B0,4), X1))
    planar(B1, E1, E1+4)
    a("ds_write_b128 %s, %s offset:%d" % (V(A1), V(B1,4), X1+128))
    stamp("a_s1")
    def sig_a1():
        a("s_waitcnt vmcnt(0)")
        a("v_lshl_add_u64 v[12:13], v[12:13], 0, 1")
        sig(12, 46, (1 << RA) - 1, 10)
        stamp(4)
    if EARLY == 1: sig_a1()
    a("s_waitcnt lgkmcnt(0)\ns_barrier")
    stamp("a_b1")
    if smap: a("s_waitcnt lgkmcnt(0)")
    a("ds_read_b128 %s, v15 offset:%d\nds_read_b128 %s, v15 offset:%d" % (V(B0,4), X1, V(B1,4), X1+8320))
    if FP == 2: fill2()
    a("s_waitcnt lgkmcnt(1)")
    mfma(E0, B0, M2); mfma(E0+4, B0, M2+4)
    a("s_waitcnt lgkmcnt(0)")
    mfma(E1, B1, M2+8); mfma(E1+4, B1, M2+12)
    planar(B0, E0, E0+4)
    a("ds_write_b128 %s, %s offset:%d" % (V(A1+1), V(B0,4), X2))
    planar(B1, E1, E1+4)
    a("ds_write_b128 %s, %s offset:%d" % (V(A1+2), V(B1,4), X2))
    if EARLY == 2: sig_a1()
    a("s_waitcnt lgkmcnt(0)\ns_barrier")
    stamp("a_b2")
    if smap: a("s_waitcnt lgkmcnt(0)")
    a("ds_read_b128 %s, v70 offset:%d\nds_read_b128 %s, v70 offset:%d" % (V(B1,4), X2+1024, V(B0,4), X2))
    a("ds_read_b64 %s, v69 offset:%d" % (V(B2,2), X2+8))
    a("s_waitcnt lgkmcnt(2)")
    mfma(E1, M3+2, B1); mfma(E1+4, M3, B1)
    a("s_waitcnt lgkmcnt(0)")
    a("v_and_b32 %s, %s, %s\nv_and_b32 %s, %s, %s" % (V(B0+2), V(B0+2), V(A1+3), V(B0+3), V(B0+3), V(A1+3)))
    mfma(E0, M3+2, B0); mfma(E0+4, M3, B0)
    a("s_cmp_lg_u32 s24, 0\ns_cbranch_scc1 L_p1_s3a")
    mfma(E2, M3+2, B2); mfma(E2+4, M3, B2)
    a("L_p1_s3a:")
    def st1(b, E, so, off=0):
        for j in range(4): pk(b+j, E+j, E+4+j)
        for j in range(4):
            a("v_and_b32 %s, -2, %s" % (V(b+j), V(b+j)))
            a("buffer_store_dword %s, %s, s[8:11], %s offen offset:%d sc1" % (V(b+j), V(16+j), S(so), off))
    st1(B1, E1, 43, 64); st1(B0, E0, 43)
    a("s_cbranch_scc1 L_p1_s3b")
    st1(B2, E2, 36)
    for j in range(4): a("buffer_store_dword %s, %s, s[8:11], s36 offen offset:64 sc1" % (V(B2+j), V(16+j)))
    a("L_p1_s3b:")
    stamp(3)
    a("s_lshl_b32 s3, s24, 14\ns_add_u32 s35, s37, s3")
    sig_a1()
    a("s_barrier")
    a("s_mov_b32 s25, s50\ns_mov_b32 s26, 8\ns_cmp_lt_u32 s50, 16\ns_cbranch_scc1 L_p2")
    a("L_p3a:")
    a("v_cvt_f32_u32 v71, v2\nv_cvt_f32_u32 v87, v3\nv_mul_f32 v87, 4.0, v87")
    M3i, M2i, M1i, A3 = 32, 40, 56, 64
    a("s_setprio 0")
    a("v_lshl_add_u32 v4, v2, 7, s50\nv_cvt_f32_u32 v4, v4\nv_mul_f32 v4, %s, v4\nv_mul_f32 v6, v87, v4" % f32(1/2048))
    cs4(C_, Sn, 6, 4, 8)
    for j in range(4):
        pk(M3i+j, C_+j, Sn+j, False, True); pk(M3i+4+j, Sn+j, C_+j)
    a("v_lshlrev_b32 v83, 5, v2\nv_lshl_add_u32 v83, v3, 3, v83")
    a("s_lshl_b32 s43, s24, 18\ns_lshl_b32 s3, s50, 11\ns_add_u32 s43, s43, s3\ns_add_u32 s44, s43, 0x200000")
    a("v_bfe_i32 v86, v3, 1, 1\nv_and_b32 v84, 0x80008000, v86\nv_xor_b32 v85, 0x80008000, v84")
    for j in range(4): a("v_mov_b32 %s, 1" % V(B2+j))
    a("v_lshlrev_b32 v5, 4, v3\nv_mul_u32_u24 v4, 80, v2\ns_mul_i32 s3, s24, 2560\ns_add_u32 s3, s3, %d\nv_add3_u32 %s, v4, v5, s3" % (X2I, V(A3)))
    a("v_mul_u32_u24 v4, 1040, v2\ns_lshl_b32 s3, s24, 6\ns_add_u32 s3, s3, %d\nv_add3_u32 %s, v4, v5, s3" % (X1I, V(A3+3)))
    a("s_cmp_eq_u32 s24, 0\ns_cselect_b32 s3, 16, 0\nv_and_b32 v82, s3, v86")
    a("v_bfe_u32 v4, v0, 2, 4\nv_lshl_add_u32 v4, v4, 5, s24\nv_add_u32 v5, 8, v4\nv_add_u32 v4, v4, v82")
    a("v_and_b32 v6, 48, v14\nv_add_u32 v6, %d, v6\nv_and_b32 v7, 513, v86" % X2I)
    for p,r in ((1,4),(2,5)):
        a("v_xor_b32 %s, %s, v86\nv_add_u32 %s, %s, v7\nv_mul_u32_u24 %s, 80, %s\nv_add_u32 %s, %s, v6" % (V(r),V(r),V(r),V(r),V(r),V(r),V(A3+p),V(r)))
    a("v_lshl_add_u32 v5, v3, 7, s24\nv_add_u32 v7, 8, v5\nv_mul_u32_u24 v7, v7, v2\nv_cvt_f32_u32 v6, v7\nv_mul_f32 v6, %s, v6\nv_mul_f32 v4, %s, v71" % (f32(1/512), f32(1/16)))
    cs4(C_, Sn, 6, 4, 8)
    a("v_add_u32 v7, v5, v82\nv_mul_u32_u24 v7, v7, v2\nv_cvt_f32_u32 v6, v7\nv_mul_f32 v6, %s, v6" % f32(1/512))
    def m2i(m):
        pk2(m, C_); pk2(m+4, Sn)
        a("v_xor_b32 %s, %s, v85\nv_xor_b32 %s, %s, v85\nv_xor_b32 %s, %s, v84\nv_xor_b32 %s, %s, v84" % (V(m+2),V(m+4),V(m+3),V(m+5),V(m+6),V(m),V(m+7),V(m+1)))
    m2i(M2i+8)
    cs4(C_, Sn, 6, 4, 8)
    a("v_lshlrev_b32 v7, 31, v2\nv_cmp_eq_u32 vcc, 0, v3")
    a("s_cbranch_scc0 L_p3_m2")
    a("v_xor_b32 v5, %s, v7\nv_mov_b32 v4, 0.5\nv_cndmask_b32 %s, %s, v4, vcc\nv_cndmask_b32 %s, %s, v5, vcc" % (f32(-0.5), V(C_), V(C_), V(Sn), V(Sn)))
    a("L_p3_m2:")
    m2i(M2i)
    a("s_cbranch_scc0 L_p3_m3")
    for j in range(4): a("v_and_b32 %s, %s, v86\nv_xor_b32 %s, %s, %s" % (V(M2i+4+j), V(M2i+j), V(M2i+j), V(M2i+j), V(M2i+4+j)))
    a("L_p3_m3:")
    a("v_mul_f32 v4, %s, v71\nv_mul_f32 v6, v87, v4" % f32(1/32))
    cs4(C_, Sn, 6, 4, 8)
    a("v_xor_b32 v5, -1.0, v7\nv_cndmask_b32 %s, %s, v5, vcc" % (V(Sn), V(Sn)))
    for j in range(8): a("v_mul_f32 %s, %s, %s" % (V(C_+j), f32(2.0**-19), V(C_+j)))
    pk2(M1i, C_); pk2(M1i+2, Sn, True)
    for j in range(4): a("v_xor_b32 %s, 0x80000000, %s" % (V(M1i+4+j), V(M1i+j)))
    a("s_mov_b32 s42, %d" % SPIN)
    a("s_setprio 3\ns_waitcnt lgkmcnt(0)")
    stamp(6)
    prepoll("h2ap", 8, 35 if opt.get("ppt", 0) == 0 else 36, 64)
    stamp(7)
    def ld3(b):
        for j in range(4): a("buffer_load_dword %s, %s, s[8:11], %s offen offset:%d sc1" % (V(B0+4*b+j), V(16+j), S(36 if b == 2 else 35), 64 if b == 1 else 0))
    poll12("h2a", ld3, "s_cmp_eq_u32 s24, 0")
    stamp(8)
    mfma(E1, M3i, B1); mfma(E1+4, M3i+4, B1)
    mfma(E0, M3i, B0); mfma(E0+4, M3i+4, B0)
    mfma(E2, M3i, B2)
    planar(B1, E1, E1+4)
    a("ds_write_b128 %s, %s offset:1280" % (V(A3), V(B1,4)))
    planar(B0, E0, E0+4)
    a("s_cmp_lg_u32 s24, 0\ns_cbranch_scc1 L_p3_a")
    pk2(B2, E2)
    a("v_cndmask_b32 %s, %s, %s, s[52:53]\nv_cndmask_b32 %s, %s, %s, s[52:53]" % (V(B0+2), V(B0+2), V(B2), V(B0+3), V(B0+3), V(B2+1)))
    a("L_p3_a:")
    a("ds_write_b128 %s, %s" % (V(A3), V(B0,4)))
    a("s_waitcnt lgkmcnt(0)\ns_barrier")
    stamp("a_3b1")
    if smap: a("s_waitcnt lgkmcnt(0)")
    for p,b in ((1,B0),(2,B1)):
        a("ds_read_b64_tr_b16 %s, %s\nds_read_b64_tr_b16 %s, %s offset:8" % (V(b,2), V(A3+p), V(b+2,2), V(A3+p)))
    a("s_waitcnt lgkmcnt(2)")
    mfma(E0, M2i, B0); mfma(E0+4, M2i+4, B0)
    a("s_waitcnt lgkmcnt(0)")
    mfma(E1, M2i+8, B1); mfma(E1+4, M2i+12, B1)
    planar(B0, E0, E0+4)
    a("ds_write_b128 %s, %s" % (V(A3+3), V(B0,4)))
    planar(B1, E1, E1+4)
    a("ds_write_b128 %s, %s offset:512" % (V(A3+3), V(B1,4)))
    a("s_waitcnt lgkmcnt(0)\ns_barrier")
    stamp("a_3b2")
    if smap: a("s_waitcnt lgkmcnt(0)")
    for e,b in ((0,B0),(1,B1)):
        a("ds_read_b64_tr_b16 %s, v15 offset:%d\nds_read_b64_tr_b16 %s, v15 offset:%d" % (V(b,2), X1I+8320*e, V(b+2,2), X1I+8320*e+8))
    a("s_waitcnt lgkmcnt(2)")
    mfma(E0, B0, M1i); mfma(E0+4, B0, M1i+4)
    a("s_waitcnt lgkmcnt(0)")
    mfma(E1, B1, M1i); mfma(E1+4, B1, M1i+4)
    planar(B0, E0, E0+4)
    a("buffer_store_dwordx2 %s, v83, s[12:15], s43 offen %s\nbuffer_store_dwordx2 %s, v83, s[12:15], s43 offen offset:512 %s" % (V(B0,2), osc, V(B0+2,2), osc))
    planar(B1, E1, E1+4)
    a("buffer_store_dwordx2 %s, v83, s[12:15], s44 offen %s\nbuffer_store_dwordx2 %s, v83, s[12:15], s44 offen offset:512 %s" % (V(B1,2), osc, V(B1+2,2), osc))
    stamp("a_3st")
    a("s_or_b32 s3, s50, s24\ns_cmp_lg_u32 s3, 0\ns_cbranch_scc1 L_p3_c")
    a("s_mov_b32 s3, 0x%x\nbuffer_store_dwordx2 v[12:13], off, s[8:11], s3 sc1" % EPA)
    a("L_p3_c:")
    if stamps: a("s_waitcnt vmcnt(0)")
    stamp(9)
    write_stamps(10, "a")
    a("s_endpgm")
    a("L_T:")
    a("s_lshr_b32 s24, s24, 6")
    if opt.get("mapv", 1): a("s_lshr_b32 s31, s2, 4\ns_and_b32 s32, s2, 15")
    else: a("s_and_b32 s31, s2, 7\ns_lshr_b32 s32, s2, 3")
    a("s_lshr_b32 s33, s24, 1\ns_and_b32 s34, s24, 1")
    a("s_lshl_b32 s32, s32, 2\ns_add_u32 s32, s32, s33")
    a("s_lshl_b32 s35, s31, 1\ns_add_u32 s35, s35, s34")
    a("v_bfe_u32 v4, v0, 2, 4\nv_and_b32 v5, 48, v14\nv_lshl_add_u32 v6, v4, 10, v5\nv_lshl_add_u32 v27, v4, 12, v5")
    a("s_lshl_b32 s36, s32, 15\ns_lshl_b32 s3, s35, 6\ns_add_u32 s36, s36, s3\ns_add_u32 s37, s36, 0x4000")
    a("s_lshl_b32 s38, s24, 11\ns_add_u32 s38, s38, %d\ns_mov_b32 m0, s38" % TR)
    a("s_waitcnt lgkmcnt(0)")
    stamp(1)
    wsadj()
    a("buffer_load_dwordx4 v6, s[4:7], s36 offen %s lds" % NT)
    a("s_add_u32 m0, s38, 1024")
    a("buffer_load_dwordx4 v6, s[4:7], s37 offen %s lds" % NT)
    prefetch()
    t1_late()
    a("s_lshl_b32 s3, s31, 7\ns_add_u32 s49, s3, 0x%x" % EPB)
    a("buffer_load_dwordx2 v[124:125], off, s[8:11], s49")
    a("s_mov_b32 s3, 0x%x\nbuffer_load_dwordx2 v[12:13], off, s[8:11], s3" % EPA)
    a("s_lshl_b32 s43, s35, 17\ns_lshl_b32 s3, s32, 6\ns_add_u32 s43, s43, s3")
    a("s_add_u32 s47, s43, 0x%x\ns_add_u32 s48, s47, 0x10000" % YT)
    a("v_lshrrev_b32 v8, 2, v2\nv_lshl_add_u32 v8, v3, 3, v8\nv_and_b32 v9, 3, v2\nv_lshlrev_b32 v9, 3, v9\nv_lshl_add_u32 v8, v8, 6, v9\nv_add_u32 v26, s38, v8")
    a("v_lshrrev_b32 v25, 1, v2\nv_lshlrev_b32 v25, 13, v25\nv_lshl_add_u32 v25, v3, 5, v25\nv_and_b32 v9, 16, v14\nv_add_u32 v25, v25, v9")
    a("s_add_u32 s43, s43, s3\ns_add_u32 s43, s43, 0x%x\ns_add_u32 s44, s43, 0x10000" % UT)
    a("s_lshl_b32 s46, s35, 9\ns_lshl_b32 s3, s32, 3\ns_add_u32 s46, s46, s3\ns_add_u32 s46, s46, 0x%x" % FLB)
    a("s_and_b32 s25, s2, 15\ns_lshr_b32 s26, s2, 4")
    a("s_lshl_b32 s3, s24, 4\nv_add_u32 v15, s3, v14")
    for j in range(4): a("v_mov_b32 %s, 0" % V(16+j))
    a("s_waitcnt vmcnt(%d) lgkmcnt(0)" % (2 + WX))
    stamp(2)
    for h in range(2):
        for p in range(2):
            a("ds_read_b64_tr_b16 %s, v26 offset:%d" % (V(B0+4*h+2*p, 2), 32*h+256*p))
    if stamps: a("s_waitcnt lgkmcnt(0)")
    a("s_waitcnt lgkmcnt(2)\nbuffer_store_dwordx4 %s, v25, s[8:11], s43 offen sc1" % V(B0,4))
    a("s_waitcnt lgkmcnt(0)\nbuffer_store_dwordx4 %s, v25, s[8:11], s44 offen sc1" % V(B1,4))
    stamp(3)
    a("s_waitcnt vmcnt(0)")
    a("v_lshl_add_u64 v[124:125], v[124:125], 0, 1")
    sig(124, 46)
    stamp(4)
    a("v_lshl_add_u64 v[12:13], v[12:13], 0, 1")
    a("s_barrier")
    a("L_p2:")
    a("s_load_dwordx2 s[16:17], s[0:1], 8\ns_load_dwordx2 s[20:21], s[0:1], 16")
    srd_consts(16, 2048*514); srd_consts(20, 2048*514)
    a("v_lshrrev_b32 v4, 1, v3\nv_and_b32 v5, 1, v3\nv_lshlrev_b32 v6, 10, v5\nv_lshl_add_u32 v6, v4, 4, v6\nv_mul_u32_u24 v6, 514, v6\ns_cmp_lt_u32 s26, 8\ns_cselect_b32 s3, 2, 0\nv_mad_u32_u24 v60, v2, s3, v6")
    a("s_lshl_b32 s27, s24, 5\ns_add_u32 s27, s27, s25\ns_mul_i32 s27, s27, 514\ns_lshl_b32 s3, s26, 6\ns_add_u32 s27, s27, s3\ns_add_u32 s28, s27, %d\ns_add_u32 s29, s27, %d\ns_add_u32 s30, s27, %d" % (131584, 2*131584, 3*131584))
    for j in range(16): a("v_mov_b32 %s, 0" % V(Wa+j))
    a("v_mul_u32_u24 v56, 528, v2\nv_lshl_add_u32 v56, v3, 4, v56\ns_lshl_b32 s3, s24, 6\nv_add_u32 v56, s3, v56")
    a("v_mul_u32_u24 v57, 528, v4\nv_and_b32 v6, 0x1f0, v1\nv_add_u32 v57, v57, v6\ns_mul_i32 s3, s24, 1056\nv_add_u32 v57, s3, v57")
    a("v_and_b32 v7, 7, v2\nv_mul_u32_u24 v58, 1040, v7\nv_lshrrev_b32 v8, 3, v2\nv_lshl_add_u32 v58, v8, 6, v58\nv_lshl_add_u32 v58, v3, 4, v58\ns_lshl_b32 s3, s24, 7\nv_add_u32 v58, s3, v58")
    a("v_cmp_eq_u32 vcc, v4, v8")
    a("s_waitcnt lgkmcnt(0)")
    for e in range(2):
        if e: a("s_cmp_lt_u32 s26, 8\ns_cbranch_scc0 L_p2w")
        for j in range(4):
            a("buffer_load_short_d16_hi %s, v60, s[16:19], %s offen offset:%d" % (V(Wa+8*e+j), S(27+j), 32*e))
            a("buffer_load_short_d16_hi %s, v60, s[20:23], %s offen offset:%d" % (V(Wa+8*e+4+j), S(27+j), 32*e))
    a("L_p2w:")
    a("s_setprio %d" % opt.get("p2sp", 2))
    a("v_cvt_f32_u32 v4, v7\nv_cvt_f32_u32 v5, v5\nv_mul_f32 v4, %s, v4\nv_mul_f32 v5, 4.0, v5\nv_mul_f32 v6, v5, v4" % f32(0.125))
    cs4(C_, Sn, 6, 4, 8)
    pk2(Fb, Sn, True); pk2(Fb+2, C_); pk2(Fb+4, Sn)
    for i in range(6): a("v_cndmask_b32 %s, 0, %s, vcc" % (V(Fb+i), V(Fb+i)))
    a("v_mov_b32 %s, %s\nv_mov_b32 %s, %s\nv_mov_b32 %s, %s\nv_mov_b32 %s, %s" % (V(Fb+6),V(Fb+2),V(Fb+7),V(Fb+3),V(Fb+8),V(Fb),V(Fb+9),V(Fb+1)))
    a("v_lshl_add_u32 v4, v3, 3, s24\nv_mul_u32_u24 v4, v4, v2\nv_cvt_f32_u32 v6, v4\nv_cvt_f32_u32 v4, v2\nv_mul_f32 v6, %s, v6\nv_mul_f32 v4, %s, v4" % (f32(1/128), f32(0.25)))
    cs4(C_, Sn, 6, 4, 8)
    for j in range(4):
        pk(Ma+j, C_+j, Sn+j); pk(Ma+4+j, Sn+j, C_+j, True, False)
    a("v_and_b32 v4, 3, v2\nv_lshrrev_b32 v5, 2, v2\nv_lshl_add_u32 v4, v4, 2, v5\nv_lshl_add_u32 v4, v4, 3, s24\nv_cvt_f32_u32 v4, v4\nv_cvt_f32_u32 v5, v3\nv_mul_f32 v4, %s, v4\nv_mul_f32 v6, 4.0, v5\nv_mul_f32 v6, v6, v4" % f32(1/128))
    cs4(C_, Sn, 6, 4, 8)
    pk2(Mi, Sn); pk2(Mi+2, C_); pk2(Mi+4, Sn, True)
    a("v_lshlrev_b32 v126, 2, v2\nv_lshl_add_u32 v126, v3, 7, v126\nv_lshlrev_b32 v11, 3, v2")
    a("s_mul_i32 s74, s25, %d\ns_lshl_b32 s3, s24, 11\ns_add_u32 s74, s74, s3\ns_lshl_b32 s3, s26, 14\ns_add_u32 s74, s74, s3" % QS)
    a("s_lshl_b32 s78, s24, 7\ns_add_u32 s78, s78, 0x%x\ns_min_u32 s39, s26, 7\ns_lshl_b32 s39, s39, 10\ns_add_u32 s39, s39, s78\ns_and_b32 s3, s25, %d\ns_lshl_b32 s3, s3, 13\ns_add_u32 s39, s39, s3" % (FLA, RA-1))
    a("s_setprio 3")
    stamp("t_w")
    poll_flags("h1a", 11, 39, 12)
    stamp(5)
    T2 = ((0,B0,E0,Wa),(1,B1,E1,Wa+8))
    for e,b,E,w_ in T2:
        for j in range(4): a("buffer_load_dword %s, v126, s[8:11], s74 offen offset:%d sc1" % (V(b+j), 512*j + 64*e))
    a("s_waitcnt vmcnt(4)")
    mfma(E0, B0, Ma); mfma(E0+4, B0, Ma+4)
    a("s_waitcnt vmcnt(0)")
    stamp(6)
    mfma(E1, B1, Ma); mfma(E1+4, B1, Ma+4)
    for e,b,E,w_ in T2:
        planar(b, E, E+4)
        a("ds_write_b128 %s, %s offset:%d" % (V(A2), V(b,4), LYS*e))
    stamp("t_s1")
    a("s_waitcnt lgkmcnt(0)\ns_barrier")
    stamp("t_b1")
    if smap: a("s_waitcnt lgkmcnt(0)")
    for e,b,E,w_ in T2:
        a("ds_read_b64_tr_b16 %s, %s offset:%d\nds_read_b64_tr_b16 %s, %s offset:%d" % (V(b,2), V(A2+1), LYS*e, V(b+2,2), V(A2+1), LYS*e+8))
    a("s_waitcnt lgkmcnt(2)")
    mfma(E0, Fb+2, B0); mfma(E0+4, Fb, B0)
    a("s_waitcnt lgkmcnt(0)")
    mfma(E1, Fb+2, B1); mfma(E1+4, Fb, B1)
    for e,b,E,w_ in T2:
        F = 80
        for j in range(4): a("v_mul_f32 %s, %s, %s\nv_mul_f32 %s, %s, %s" % (V(F+j), V(E+j), V(w_+j), V(F+4+j), V(E+j), V(w_+4+j)))
        for j in range(4): a("v_fma_f32 %s, -%s, %s, %s\nv_fmac_f32 %s, %s, %s" % (V(F+j), V(E+4+j), V(w_+4+j), V(F+j), V(F+4+j), V(E+4+j), V(w_+j)))
        planar(b, F, F+4)
        mfma(E, b, Fb+6); mfma(E+4, b, Fb+4)
    for e,b,E,w_ in T2:
        planar(b, E, E+4)
        a("ds_write_b128 %s, %s offset:%d" % (V(A2+2), V(b,4), LY2+LY2S*e))
    stamp("t_s2")
    a("s_waitcnt lgkmcnt(0)\ns_barrier")
    stamp("t_b2")
    if smap: a("s_waitcnt lgkmcnt(0)")
    for e,b,E,w_ in T2:
        a("ds_read_b64_tr_b16 %s, v15 offset:%d\nds_read_b64_tr_b16 %s, v15 offset:%d" % (V(b,2), LY2+LY2S*e, V(b+2,2), LY2+LY2S*e+8))
    a("s_waitcnt lgkmcnt(2)")
    mfma(E0, Mi+2, B0); mfma(E0+4, Mi, B0)
    a("s_waitcnt lgkmcnt(0)")
    mfma(E1, Mi+2, B1); mfma(E1+4, Mi, B1)
    for e,b,E,w_ in T2:
        for j in range(4): pk(b+j, E+j, E+4+j)
        for j in range(4):
            a("v_or_b32 %s, 1, %s" % (V(b+j), V(b+j)))
            a("buffer_store_dword %s, v126, s[8:11], s74 offen offset:%d sc1" % (V(b+j), 512*j + 64*e))
    stamp("p2e")
    a("s_cmp_ge_u32 s2, 128\ns_cbranch_scc1 L_p3a")
    stamp(7)
    a("s_lshl_b32 s40, s35, 2\ns_lshr_b32 s3, s32, 4\ns_add_u32 s40, s40, s3\ns_lshl_b32 s40, s40, 7\ns_add_u32 s40, s40, 0x%x" % (FLB+FLB2))
    a("v_add_u32 v7, s38, v1")
    a("v_bfe_u32 v9, v0, 2, 4\nv_and_b32 v10, 48, v14\nv_mul_u32_u24 v24, 80, v9\nv_lshl_add_u32 v9, v9, 11, v10")
    a("s_mul_i32 s3, s24, 2560\nv_add3_u32 v24, v24, v10, s3\nv_mul_u32_u24 v25, 80, v2\nv_lshl_add_u32 v25, v3, 4, v25\nv_add_u32 v25, s3, v25")
    a("s_lshl_b32 s37, s32, 16\ns_lshl_b32 s3, s35, 6\ns_add_u32 s37, s37, s3\ns_add_u32 s37, s37, 1024\ns_add_u32 s36, s37, 0x8000")
    poll_flags("h1g", 11, 40, 124)
    stamp("t_g")
    a("s_mov_b32 s42, %d" % SPIN)
    prepoll("h2bp", 8, 47, 0)
    stamp("t_pp")
    a("L_h2b:")
    if opt.get("sl_h2b"): a("s_sleep %d" % opt["sl_h2b"])
    a("buffer_load_dwordx4 v[88:91], v27, s[8:11], s47 offen sc1\nbuffer_load_dwordx4 v[92:95], v27, s[8:11], s48 offen sc1")
    a("s_waitcnt vmcnt(0)")
    a("v_max3_u32 v4, v88, v89, v90\nv_max3_u32 v5, v91, v92, v93\nv_max3_u32 v4, v4, v94, v95\nv_max_u32 v4, v4, v5\nv_cmp_eq_u32 vcc, -1, v4")
    a("s_sub_u32 s42, s42, 1\ns_cbranch_scc1 L_h2b_done\ns_cbranch_vccnz L_h2b")
    a("L_h2b_done:")
    stamp(8)
    a("ds_write_b128 v7, v[88:91]\nds_write_b128 v7, v[92:95] offset:1024")
    if stamps: a("s_waitcnt lgkmcnt(0)")
    for h in range(2):
        for p in range(2):
            a("ds_read_b64_tr_b16 %s, v26 offset:%d" % (V(96+4*h+2*p, 2), 32*h+256*p))
    a("s_waitcnt lgkmcnt(2)\nds_write_b128 v25, v[96:99] offset:%d" % BNC)
    a("s_waitcnt lgkmcnt(1)\nds_write_b128 v25, v[100:103] offset:%d" % (BNC+1280))
    a("ds_read_b128 v[88:91], v24 offset:%d\nds_read_b128 v[92:95], v24 offset:%d" % (BNC, BNC+1280))
    a("s_waitcnt lgkmcnt(1)\nbuffer_store_dwordx4 v[88:91], v9, s[12:15], s37 offen %s" % osc)
    a("s_waitcnt lgkmcnt(0)\nbuffer_store_dwordx4 v[92:95], v9, s[12:15], s36 offen %s" % osc)
    a("s_cmp_ge_u32 s32, 4\ns_cbranch_scc1 L_yt_c")
    a("s_barrier")
    a("s_cmp_lg_u32 s24, 0\ns_cbranch_scc1 L_yt_c")
    a("buffer_store_dwordx2 v[124:125], off, s[8:11], s49 sc1")
    a("L_yt_c:")
    if stamps: a("s_waitcnt vmcnt(0)")
    stamp(9)
    write_stamps(10, "y")
    a("s_endpgm")

    a("L_end:\ns_endpgm\nLcode_end:")
    a.raw(""".section .rodata,"a"
.p2align 6
.amdhsa_kernel %s
  .amdhsa_next_free_vgpr 128
  .amdhsa_next_free_sgpr %d
  .amdhsa_accum_offset 128
  .amdhsa_group_segment_fixed_size 0
  .amdhsa_kernarg_size 120
  .amdhsa_user_sgpr_count 2
  .amdhsa_user_sgpr_kernarg_segment_ptr 1
  .amdhsa_system_sgpr_workgroup_id_x 1
.end_amdhsa_kernel""" % (k, 100 if stamps else 80))
    return a
def t2only(s):
    return s.replace("L_A:\n","L_A:\n    s_endpgm\n",1).replace("L_T:\n","L_T:\n    s_endpgm\n",1).replace("s_mov_b32 s42, %d" % SPIN,"s_mov_b32 s42, 0")
if __name__ == "__main__":
    a = gen(False); open("k.s","w").write(a.text()); print("instructions", a.ninst, "src", len(a.text()))
    a = gen(True); open("k_st.s","w").write(a.text())
    for p in sys.argv[1:]:
        a = gen(True, (p[0], int(p[1:]))); open("k_pr_%s.s" % p,"w").write(a.text())
```

```python
from gen16 import *
import re
def o(**k): return k
open("k_a.s","w").write(gen(False, None, o(mapv=1)).text())
open("k_b.s","w").write(gen(False, None, o(wpf=0)).text())
open("k_c.s","w").write(gen(False, None, o(wpf=5)).text())
t = gen(False, None, o()).text()
i = t.index("L_A:"); j = t.index("L_p2:")
open("k_d.s","w").write(t[:i] + re.sub(r"(buffer_store_dword(x4)? [^\n]*sc1)", r"\1 nt", t[i:j]) + t[j:])
open("k_e.s","w").write(gen(False, None, o(swap=0)).text())
open("k_f.s","w").write(gen(False, None, o(RA=1)).text())
```

```python
from gen16 import *
import re
def o(**k): return k
def ntst(t):
    i = t.index("L_A:"); j = t.index("L_p2:")
    return t[:i] + re.sub(r"(buffer_store_dword(x4)? [^\n]*sc1)", r"\1 nt", t[i:j]) + t[j:]
open("k_a.s","w").write(ntst(gen(False, None, o()).text()))
open("k_b.s","w").write(gen(False, None, o(wpf=2)).text())
open("k_c.s","w").write(gen(False, None, o(umode=2)).text())
open("k_d.s","w").write(gen(False, None, o(ftouch=0)).text())
open("k_e.s","w").write(gen(False, None, o(lead_h2ap=0, lead_h2bp=0, sl_h2ap=3, sl_h2bp=3)).text())
```

```python
import sys, struct
import numpy as np
from asmlib import Asm
NAME = "concat_heads__spectral_gfnet__ssm_conv_s4__prompt"
def f32(x): return "0x%08x" % struct.unpack("<I", struct.pack("<f", x))[0]
def V(a, n=1): return "v%d" % a if n == 1 else "v[%d:%d]" % (a, a+n-1)
def S(a, n=1): return "s%d" % a if n == 1 else "s[%d:%d]" % (a, a+n-1)
def bf(x):
    x = np.asarray(x, np.float64); x = np.where(np.abs(x) < 1e-12, 0.0, x)
    u = x.astype(np.float32).view(np.uint32)
    return ((u + 0x7fff + ((u >> 16) & 1)) >> 16).astype(np.uint32)
def frag(vals):
    b = bf(vals); return (b[..., 0::2] | (b[..., 1::2] << 16)).astype(np.uint32)

QS = 9*16384
D1 = 0x000000; UT = 0x240000; YT = UT
FLA = 0x440000; FLA2 = 0; FLB = 0x444000; FLB2 = 0x2000; EPA = 0x448000; EPB = 0x448080
WS_USED = 0x449000
STAMP_OFF = 0xC800000
SPIN = 100000
RAW = 0; X1 = 16384; X2 = 33792; LY = 0; LYS = 16*528; LY2 = 2*LYS; LY2S = 8*1040; TR = 54272
X2I = X2; X1I = X2I + 20992; BNC = 33792
UPAD = 576; UCP = UPAD + 4096 + 32; USTR = 2*UCP; CP = 2*USTR; CSTR = 4160; GP = 57*16; CCH = 32*GP
LDS_TOTAL = CP + 2*CCH
assert LDS_TOTAL <= 81920 and UCP % 64 == 32
assert LY2 + 2*LY2S <= X2 and X1I + 16*1040 <= LDS_TOTAL

def gen(stamps=False, probe=None, opt=None):
    opt = opt or {}
    RA = opt.get('RA', 2)
    opt.setdefault('pm_h1a', 'atom'); opt.setdefault('g_early', 0); opt.setdefault('pm_h1b', 'atom'); opt.setdefault('pm_h1g', 'atom'); opt.setdefault('lead_h2ap', 1); opt.setdefault('lead_h2bp', 1); opt.setdefault('sl_h1g', 4); opt.setdefault('sl_h1a', 2)
    a = Asm()
    if probe is not None: stamps = True
    ST = 80
    smap = opt.get("smap")
    def stamp(i):
        if smap is not None: i = smap.get(i)
        elif not isinstance(i, int): i = None
        if stamps and i is not None: a("s_memrealtime %s" % S(ST+2*i, 2))
    def write_stamps(n, tag):
        if not stamps: return
        a("s_waitcnt lgkmcnt(0)")
        if probe is not None:
            role, idx = probe
            if role != tag: return
            a("s_add_u32 s56, s%d, 3000" % (ST+2*idx))
            a("Lpr_%s:\ns_memrealtime s[58:59]\ns_waitcnt lgkmcnt(0)\ns_sub_u32 s57, s58, s56\ns_cmp_lt_i32 s57, 0\ns_cbranch_scc1 Lpr_%s" % (tag, tag))
            return
        sw = opt.get("stampwave", 0)
        a("v_cmp_eq_u32 vcc, %d, v0\ns_and_saveexec_b64 s[58:59], vcc\ns_cbranch_execz Lst_%s" % (64*sw, tag))
        a("s_mov_b32 s10, 0x10000000")
        a("s_lshl_b32 s57, s2, 7\ns_add_u32 s57, s57, 0x%x\nv_mov_b32 v100, s57" % STAMP_OFF)
        for i in range(n):
            a("v_mov_b32 v102, s%d\nv_mov_b32 v103, s%d" % (ST+2*i, ST+1+2*i))
            a("buffer_store_dwordx2 v[102:103], v100, s[8:11], 0 offen offset:%d\ns_nop 1" % (8*i))
        a("Lst_%s:" % tag)
    def cs4(c, s, f0, step, t):
        a("v_add_f32 %s, %s, %s" % (V(t), V(f0), V(step)))
        a("v_fma_f32 %s, 2.0, %s, %s" % (V(t+1), V(step), V(f0)))
        a("v_fma_f32 %s, 2.0, %s, %s" % (V(t+2), V(step), V(t)))
        src = [f0, t, t+1, t+2]
        for j in range(4):
            a("v_cos_f32 %s, %s" % (V(c+j), V(src[j])))
            a("v_sin_f32 %s, %s" % (V(s+j), V(src[j])))
    def pk(d, x, y, nx=False, ny=False):
        a("v_cvt_pk_bf16_f32 %s, %s%s, %s%s" % (V(d), "-" if nx else "", V(x), "-" if ny else "", V(y)))
    def pk2(d, x, neg=False):
        pk(d, x, x+1, neg, neg); pk(d+1, x+2, x+3, neg, neg)
    def planar(d, re, im): pk2(d, re); pk2(d+2, im)
    def inter(d, re, im):
        for j in range(4): pk(d+j, re+j, im+j)
    def mfma(d, x, y, c="0"):
        a("v_mfma_f32_16x16x32_bf16 %s, %s, %s, %s" % (V(d,4), V(x,4), V(y,4), c if c == "0" else V(c,4)))
    def srd_consts(d, nbytes):
        a("s_mov_b32 %s, 0x%x\ns_mov_b32 %s, 0x20000" % (S(d+2), nbytes, S(d+3)))
    def tab_srd():
        a("s_getpc_b64 s[52:53]\ns_add_u32 s52, s52, Ltab@rel32@lo+4\ns_addc_u32 s53, s53, Ltab@rel32@hi+12")
        srd_consts(52, TABSZ)
    def tload(d, voff, name, extra=0):
        off = TOFF[name] + extra
        if off < 4096: a("buffer_load_dwordx4 %s, %s, s[52:55], 0 offen offset:%d" % (V(d,4), V(voff), off))
        else: a("s_mov_b32 s3, 0x%x\nbuffer_load_dwordx4 %s, %s, s[52:55], s3 offen" % (off, V(d,4), V(voff)))
    def poll_flags(tag, voff, soff, vtag, lanes="0xffff"):
        mode = opt.get("pm_"+tag, "load")
        def loop(lab, atom, sl):
            a("L_%s:" % lab)
            if sl: a("s_sleep %d" % sl)
            if atom: a("v_mov_b32 v4, 0\nv_mov_b32 v5, 0\nbuffer_atomic_or_x2 v[4:5], %s, s[8:11], %s offen sc0 sc1\ns_waitcnt vmcnt(0)" % (V(voff), S(soff)))
            else: a("buffer_load_dwordx2 v[4:5], %s, s[8:11], %s offen sc1\ns_waitcnt vmcnt(0)" % (V(voff), S(soff)))
            a("v_cmp_ne_u64 vcc, v[4:5], %s" % V(vtag,2))
            a("s_sub_u32 s42, s42, 1\ns_cbranch_scc1 L_%s_out\ns_cbranch_vccnz L_%s" % (tag, lab))
        a("s_mov_b32 s42, %d" % SPIN)
        sl = opt.get("sl_"+tag, 0)
        if mode.startswith("two"):
            a("s_mov_b64 exec, 0x8000")
            loop(tag+"_1", True, sl); sl = 0
        a("s_mov_b64 exec, %s" % lanes)
        loop(tag, mode in ("atom","twoa"), sl)
        a("L_%s_out:\ns_mov_b64 exec, -1" % tag)
        a("L_%s_done:" % tag)
    def prepoll(tag, voff, soff, off):
        mode = opt.get("pm_"+tag, "load")
        a("L_%s:" % tag)
        if mode == "none": return
        allp = mode.startswith("all")
        lead = opt.get("lead_"+tag)
        if lead: a("s_cmp_lg_u32 s24, 0\ns_cbranch_scc1 L_%s_o" % tag)
        a("s_mov_b64 exec, %s" % ("0xffffffff" if allp else "1"))
        a("L_%s_l:" % tag)
        if opt.get("sl_"+tag): a("s_sleep %d" % opt["sl_"+tag])
        ad = "%s, s[8:11], %s offen" % (V(voff), S(soff)) if allp else "off, s[8:11], %s offset:%d" % (S(soff), off)
        if mode in ("atom","alla"): a("v_mov_b32 v4, 0\nbuffer_atomic_or v4, %s sc0 sc1\ns_waitcnt vmcnt(0)" % ad)
        else: a("buffer_load_dword v4, %s sc1\ns_waitcnt vmcnt(0)" % ad)
        if tag == "h2ap": a("v_and_b32 v4, 1, v4\nv_cmp_eq_u32 vcc, 0, v4")
        else: a("v_cmp_eq_u32 vcc, -1, v4")
        a("s_sub_u32 s42, s42, 1\ns_cbranch_scc1 L_%s_o\ns_cbranch_vccnz L_%s_l" % (tag, tag))
        a("L_%s_o:\ns_mov_b64 exec, -1\ns_mov_b32 s42, %d" % (tag, SPIN))
        if lead: a("s_barrier")

    a.raw("; @launch grid=(512,1,1) block=(512,1,1) lds=%d" % LDS_TOTAL)
    a.raw('.amdgcn_target "amdgcn-amd-amdhsa--gfx950"\n.text')
    k = NAME + "_kernel"
    a.raw(".globl %s\n.p2align 8\n.type %s,@function\n%s:" % (k,k,k))
    B0, B1, B2 = 88, 92, 96
    E0, E1, E2 = 100, 108, 116
    C_, Sn = 116, 120
    Ma, Fb, Mi, A2 = 32, 40, 50, 56
    Wa = 64; F0, F1 = 16, 80
    M1re, M1im, M3, M2, A1 = 32, 36, 40, 48, 64
    osc = opt.get("osc", "")
    W3 = 16
    NT = opt.get('nt', 'nt'); NTW = opt.get('ntw', ''); WPOS = opt.get('wpos', 2)
    def t1_late():
        a("s_load_dwordx2 s[12:13], s[0:1], 96")
        srd_consts(8, WS_USED); srd_consts(12, 0x400000)
    def sig(vt, soff, mask=1, voff=None):
        a("s_mov_b64 exec, 0x%x" % mask)
        if voff is None: a("buffer_store_dwordx2 %s, off, s[8:11], %s sc1" % (V(vt,2), S(soff)))
        else: a("buffer_store_dwordx2 %s, %s, s[8:11], %s offen sc1" % (V(vt,2), V(voff), S(soff)))
        a("s_mov_b64 exec, -1")
    def derive(m, m1, m2):
        a("v_xor_b32 %s, %s, %s\nv_xor_b32 %s, %s, %s" % (V(m+4), V(m+2), V(m1), V(m+5), V(m+3), V(m1)))
        a("v_xor_b32 %s, %s, %s\nv_xor_b32 %s, %s, %s" % (V(m+6), V(m), V(m2), V(m+7), V(m+1), V(m2)))
    def poll12(tag, loads, cond, check=True):
        a("L_%s:" % tag)
        if opt.get("sl_"+tag): a("s_sleep %d" % opt["sl_"+tag])
        loads(0); loads(1)
        a("%s\ns_cbranch_scc0 L_%s_w" % (cond, tag))
        loads(2)
        a("L_%s_w:\ns_waitcnt vmcnt(0)" % tag)
        if not check: return
        for i in range(4): a("v_bitop3_b32 %s, %s, %s, %s bitop3:0x80" % (V(4+i), V(88+3*i), V(89+3*i), V(90+3*i)))
        a("v_bitop3_b32 v4, v4, v5, v6 bitop3:0x80\nv_bitop3_b32 v4, v4, v7, 1 bitop3:0x80\nv_cmp_eq_u32 vcc, 0, v4")
        a("s_sub_u32 s42, s42, 1\ns_cbranch_scc1 L_%s_done\ns_cbranch_vccnz L_%s" % (tag, tag))
        a("L_%s_done:" % tag)
    def prefetch():
        if opt.get("wpf", 1) in (6,7):
            a("s_and_b32 s74, s2, 0xf8\ns_add_u32 s74, s74, s24\ns_lshl_b32 s74, s74, 3\ns_and_b32 s75, s2, 7\ns_add_u32 s74, s74, s75\ns_mul_i32 s74, s74, 514\ns_add_u32 s74, s74, 2")
            a("v_lshrrev_b32 v127, 1, v1\nv_add_u32 v127, s74, v127")
            if opt.get("wpf") == 7: a("s_barrier")
            a("global_load_dwordx2 v[28:29], v127, s[76:77] nt\nglobal_load_dwordx2 v[28:29], v127, s[78:79] nt")
        if not opt.get("pf", 0): return
        a("s_getpc_b64 s[72:73]\nLpf%d:\ns_and_b32 s74, s2, 0x78\ns_add_u32 s74, s74, s24\ns_lshl_b32 s74, s74, 7\ns_min_u32 s74, s74, Lcode_end-%s-4" % (npf[0], k))
        a("s_sub_u32 s72, s72, Lpf%d-%s\ns_subb_u32 s73, s73, 0\ns_load_dword s75, s[72:73], s74" % (npf[0], k))
        npf[0] += 1
    npf = [0]
    def wsadj():
        if opt.get("wsbase"): a("s_cselect_b32 s51, 1, 0\ns_add_u32 s8, s8, 0x%x\ns_addc_u32 s9, s9, 0\ns_cmp_lg_u32 s51, 0" % opt["wsbase"])
    stamp(0)
    a("s_load_dwordx2 s[8:9], s[0:1], 112")
    if opt.get("swap", 0): a("s_xor_b32 s2, s2, 256")
    a("s_cmp_lt_u32 s2, 128\ns_cselect_b32 s3, 24, 0")
    a("s_load_dwordx2 s[4:5], s[0:1], s3")
    a("s_load_dwordx16 s[56:71], s[0:1], 32")
    WX = 2 if opt.get("wpf", 1) in (6,7) else 0
    if WX: a("s_load_dwordx4 s[76:79], s[0:1], 8")
    a("s_setprio 3")
    a("v_readfirstlane_b32 s24, v0")
    a("v_lshlrev_b32 v14, 4, v0\nv_and_b32 v2, 15, v0\nv_bfe_u32 v3, v0, 4, 2\nv_and_b32 v1, 0x3f0, v14")
    srd_consts(4, 0x200000)
    a("s_cbranch_scc1 L_T")
    a("s_cmp_lt_u32 s2, 256\ns_cbranch_scc1 L_A")
    a("s_cmp_ge_u32 s2, 512\ns_cbranch_scc1 L_end")
    a("s_sub_u32 s25, s2, 256")
    a("s_lshl_b32 s3, s25, 9\nv_and_b32 v6, 255, v0\nv_lshl_add_u32 v5, v6, 1, s3")
    a("s_lshl_b32 s3, s25, 2\ns_cmp_ge_u32 s24, 256")
    for i in range(6): a("v_mov_b32 %s, 0" % V(16+i))
    a("s_waitcnt lgkmcnt(0)")
    stamp(1)
    wsadj()
    a("s_load_dword s30, s[68:69], s3\ns_load_dword s31, s[70:71], s3")
    a("s_load_dwordx4 s[16:19], s[0:1], 8")
    for i in range(2): a("global_load_short_d16_hi %s, v5, %s %s" % (V(16+i), S(56+2*i,2), NT))
    a("s_cbranch_scc1 L_type2")
    for i in range(2,6): a("global_load_short_d16_hi %s, v5, %s %s" % (V(16+i), S(56+2*i,2), NT))
    if opt.get("order", 1): a("s_branch L_type2\nL_2mark:")
    a("L_type2:")
    K1, K2, GA = 24, 28, 32
    a("s_setprio 1")
    srd_consts(8, WS_USED)
    a("s_lshr_b32 s24, s24, 6")
    a("s_bfe_u32 s26, s24, 0x10001\ns_mul_i32 s27, s26, %d\ns_add_u32 s27, s27, %d\ns_mul_i32 s28, s26, %d" % (CCH, CP, USTR))
    a("s_and_b32 s29, s24, 1\ns_lshr_b32 s32, s24, 2\ns_lshl_b32 s3, s32, 1\ns_add_u32 s29, s29, s3")
    a("v_bfe_u32 v4, v0, 2, 5\nv_mul_u32_u24 v4, %d, v4\nv_and_b32 v7, 3, v0\nv_lshl_add_u32 v4, v7, 2, v4\nv_add_u32 %s, s27, v4" % (GP, V(K1)))
    a("v_bfrev_b32 v4, v3\nv_lshrrev_b32 v4, 27, v4\nv_mul_u32_u24 v4, %d, v4\nv_lshl_add_u32 v4, v2, 4, v4\nv_add_u32 %s, s27, v4" % (GP, V(K1+1)))
    a("s_lshl_b32 s3, s29, 8\nv_add_u32 %s, s3, %s" % (V(K1+2), V(K1+1)))
    a("v_and_b32 v4, 3, v2\nv_mul_u32_u24 v4, %d, v4\nv_lshrrev_b32 v10, 2, v2\nv_sub_u32 v10, v3, v10\nv_lshl_add_u32 v4, v10, 4, v4\ns_add_u32 s3, s27, %d\nv_add_u32 %s, s3, v4" % (CSTR, 2*(2040-256*7)-64, V(K2)))
    a("v_and_b32 v7, 1, v2\nv_lshrrev_b32 v4, 1, v2\nv_lshlrev_b32 v4, 6, v4\nv_lshl_add_u32 v4, v3, 4, v4\nv_mul_u32_u24 v10, %d, v7\ns_add_u32 s3, s28, %d\nv_add3_u32 %s, v4, v10, s3\nv_lshl_add_u32 %s, v7, 3, v4" % (UCP, UPAD-64, V(K2+1), V(K2+2)))
    a("s_mul_i32 s3, s32, %d\ns_add_u32 s3, s3, %d\nv_lshl_add_u32 %s, v6, 4, s3" % (CCH, CP, V(K2+3)))
    a("v_mul_u32_u24 v4, %d, v7\nv_lshrrev_b32 v47, 1, v0\nv_lshl_add_u32 v15, v47, 4, v4" % USTR)
    for j in range(4): a("v_mov_b32 %s, 0" % V(120+j))
    a("v_cmp_gt_u32 vcc, 72, v0\ns_and_saveexec_b64 s[40:41], vcc\nds_write_b128 v15, v[120:123]\nds_write_b128 v15, v[120:123] offset:%d\ns_mov_b64 exec, -1" % UCP)
    a("s_lshr_b32 s3, s25, 5\ns_lshl_b32 s3, s3, 7\ns_add_u32 s46, s3, 0x%x" % EPB)
    FT = opt.get("ftouch", 1)
    a("buffer_load_dwordx2 v[12:13], off, s[8:11], s46")
    if FT:
        a("s_lshl_b32 s3, s25, 7\ns_add_u32 s3, s3, 0x%x\ns_cmp_eq_u32 s24, 7\ns_cselect_b32 s3, s3, 0x8000000\nv_lshlrev_b32 v4, 6, v2\ns_mov_b64 exec, 3" % FLA)
        a("buffer_atomic_or v120, v4, s[8:11], s3 offen sc1\ns_mov_b64 exec, -1")
    a("s_lshl_b32 s44, s25, 13\ns_add_u32 s45, s44, 0x%x\ns_add_u32 s44, s44, 0x%x" % (UT, YT))
    a("s_lshr_b32 s39, s25, 4\ns_lshl_b32 s39, s39, 9\ns_add_u32 s39, s39, 0x%x\nv_lshrrev_b32 v22, 1, v1" % FLB)
    a("v_lshlrev_b32 v4, 3, v6\nv_sub_u32 v4, 2047, v4\nv_max_u32 v5, 143, v4\nv_sub_u32 v4, v4, v5\nv_cvt_f32_u32 v5, v5")
    a("s_mul_i32 s34, s32, %d\ns_add_u32 s3, s34, %d\nv_mov_b32 v9, s34\nv_lshl_add_u32 v4, v4, 2, s3" % (USTR, UPAD - 4*0x4280))
    for i in range(0, 12, 2):
        a("v_subrev_f32 v7, %s, v5\nv_subrev_f32 v8, %s, v5\nv_cvt_pk_bf16_f32 v7, v7, v8\nv_and_b32 v8, 0xffff, v7\nv_lshl_add_u32 %s, v8, 2, v4" % (f32(float(i)), f32(float(i+1)), V(GA+i)))
        if i < 10: a("v_lshrrev_b32 v7, 16, v7\nv_lshl_add_u32 %s, v7, 2, v4" % V(GA+i+1))
    a("v_cmp_eq_u32 vcc, 255, v6")
    for i in range(8,11): a("v_cndmask_b32 %s, %s, v9, vcc" % (V(GA+i), V(GA+i)))
    a("s_waitcnt lgkmcnt(0)")
    a("s_lshl_b32 s3, s26, 4\ns_lshr_b32 s30, s30, s3\ns_lshl_b32 s30, s30, 16\ns_lshl_b32 s3, s32, 4\ns_lshr_b32 s31, s31, s3\ns_lshl_b32 s31, s31, 16")
    a("v_mov_b32 v46, %s\nv_mul_f32 v46, s30, v46\nv_exp_f32 v46, v46\nv_cvt_pk_bf16_f32 v46, v46, v46\nv_and_b32 v46, 0xffff0000, v46" % f32(1.4426950408889634))
    def w_pf():
        if opt.get("wpf", 1) == 0: return
        fl = opt.get("wpfnt", "nt")
        a("global_load_dwordx2 v[124:125], v126, s[16:17] %s\nglobal_load_dwordx2 v[124:125], v126, s[18:19] %s" % (fl, fl))
    a("s_and_b32 s3, s25, 0xf8\ns_add_u32 s3, s3, s24\ns_lshl_b32 s3, s3, 3\ns_and_b32 s33, s25, 7\ns_add_u32 s3, s3, s33\ns_mul_i32 s3, s3, 514\ns_add_u32 s3, s3, 2\nv_add_u32 v126, s3, v22")
    if opt.get("wpf", 1) == 2: w_pf()
    def w_spf():
        a("s_and_b32 s3, s3, -4\ns_add_u32 s16, s16, s3\ns_addc_u32 s17, s17, 0\ns_add_u32 s18, s18, s3\ns_addc_u32 s19, s19, 0")
        for i,off in enumerate((0,128,256,384,508)):
            a("s_load_dword s%d, s[16:17], %d\ns_load_dword s%d, s[18:19], %d" % (56+2*i, off, 57+2*i, off))
    if opt.get("wpf", 1) == 3: w_spf()
    a("s_cmp_ge_u32 s24, 4")
    a("s_waitcnt vmcnt(%d)" % (FT + (3 if opt.get("wpf", 1) == 2 else (0 if opt.get("wpf", 1) == 5 else 1))))
    stamp(2)
    if opt.get("wpf", 1) == 1: w_pf()
    if opt.get("wpf", 1) == 5:
        a("s_cmp_lt_u32 s25, 128\ns_cbranch_scc1 L_nopf")
        w_pf()
        a("v_subrev_u32 v126, %d, v126" % (1024*514))
        w_pf()
        a("L_nopf:\ns_cmp_ge_u32 s24, 4")
    if opt.get("wpf", 1) == 4:
        w_spf(); a("s_cmp_ge_u32 s24, 4")
    a("v_mul_f32 v44, v46, v16\nv_mul_f32 v45, v46, v17\nv_mul_f32 v44, %s, v44\nv_mul_f32 v45, 0.15915494, v45" % f32(1.4426950408889634))
    def directs(lst):
        for i,(d,p) in enumerate(lst): a("v_mul_f32 %s, %s, v44\nv_mul_f32 %s, %s, v45" % (V(4+2*i), f32(p), V(5+2*i), f32(p)))
        for i,(d,p) in enumerate(lst): a("v_fract_f32 %s, %s" % (V(5+2*i), V(5+2*i)))
        for i,(d,p) in enumerate(lst): a("v_exp_f32 %s, %s\nv_cos_f32 %s, %s\nv_sin_f32 %s, %s" % (V(4+2*i), V(4+2*i), V(d), V(5+2*i), V(d+1), V(5+2*i)))
        for i,(d,p) in enumerate(lst): a("v_pk_mul_f32 %s, %s, %s op_sel_hi:[1,0]" % (V(d,2), V(d,2), V(4+2*i,2)))
    def cmul1(z, x, y): a("v_pk_mul_f32 %s, %s, %s op_sel:[0,0] op_sel_hi:[0,1]" % (V(z,2), V(x,2), V(y,2)))
    def cmul2(z, x, y): a("v_pk_fma_f32 %s, %s, %s, %s op_sel:[1,1,0] op_sel_hi:[1,0,1] neg_lo:[1,0,0]" % (V(z,2), V(x,2), V(y,2), V(z,2)))
    def cmuls(ops):
        for z,x,y in ops: cmul1(z,x,y)
        for z,x,y in ops: cmul2(z,x,y)
    tcount = [0]; pend = []
    def put(rows, neg=False):
        ts = []
        for row, r in rows:
            t = 4 + (tcount[0] % 8); tcount[0] += 1; ts.append(t)
            pk(t, r, r+1, False, neg)
        pend.extend((row, t) for (row, r), t in zip(rows, ts))
        while len(pend) >= 2:
            (r0,t0),(r1,t1) = pend.pop(0), pend.pop(0)
            a("ds_write2_b32 %s, %s, %s offset0:%d offset1:%d" % (V(K1), V(t0), V(t1), 4*r0, 4*r1))
    def putflush():
        while pend:
            r0,t0 = pend.pop(0); a("ds_write_b32 %s, %s offset:%d" % (V(K1), V(t0), 16*r0))
    a("s_cbranch_scc1 L_kg1")
    e8, e32, e128, e256 = 48, 50, 52, 54
    directs([(e8, 8.0), (e128, 128.0), (96, 1024.0)])
    EE = 64
    a("v_pk_mul_f32 v[18:19], v[18:19], v[46:47] op_sel_hi:[1,0]")
    cmuls([(EE, 20, 18), (56, e8, e8), (e256, e128, e128), (98, 96, e128)])
    cmuls([(EE+2, EE, e8), (EE+4, EE, 56), (e32, 56, 56), (100, 96, e256), (102, 98, e256)])
    cmuls([(EE+6, EE+2, 56), (104, 100, e256), (106, 102, e256)])
    put([(48+i, 96+2*i) for i in range(4)])
    for blk in range(1,4):
        ops = [(EE+8*blk+2*i, EE+8*(blk-1)+2*i, e32) for i in range(4)]
        if blk == 1: ops += [(108, 104, e256), (110, 106, e256)]
        if blk == 2: ops += [(112, 108, e256)]
        cmuls(ops)
        put([(4*(blk-1)+i, EE+8*(blk-1)+2*i) for i in range(4)], True)
    put([(12+i, EE+24+2*i) for i in range(4)], True)
    put([(52+i, 104+2*i) for i in range(5)])
    putflush()
    a("s_branch L_kg2")
    a("L_kg1:")
    LO = 48
    BL = 64; TM = 80
    directs([(LO+2, 1.0), (BL+2, 128.0)])
    a("v_mov_b32 v48, 0x3f80"); pend.append((16, 48))
    cmuls([(LO+4, LO+2, LO+2), (BL+4, BL+2, BL+2)])
    cmuls([(LO+6, LO+4, LO+2), (LO+8, LO+4, LO+4), (BL+6, BL+4, BL+2), (BL+8, BL+4, BL+4)])
    cmuls([(LO+10, LO+8, LO+2), (LO+12, LO+8, LO+4), (LO+14, LO+8, LO+6), (BL+10, BL+8, BL+2), (BL+12, BL+8, BL+4), (BL+14, BL+8, BL+6)])
    put([(16+kx, LO+2*kx) for kx in range(1,8)])
    cmuls([(TM+2*kx, LO+2*kx, BL+2) for kx in range(1,8)])
    put([(24, BL+2), (32, BL+4), (36, BL+6), (40, BL+8), (42, BL+10), (44, BL+12), (46, BL+14)])
    cmuls([(TM+16+2*i, LO+4*(1+i%3), BL+4+2*(i//3)) for i in range(6)])
    put([(24+kx, TM+2*kx) for kx in range(1,8)])
    cmuls([(TM+2*i, LO+8, BL+8+2*i) for i in range(4)])
    put([(33+(i%3)+4*(i//3), TM+16+2*i) for i in range(6)])
    put([(41+2*i, TM+2*i) for i in range(4)])
    putflush()
    a("L_kg2:")
    a("s_waitcnt vmcnt(%d) lgkmcnt(0)\ns_barrier" % (2 if opt.get("wpf", 1) in (1,2) else (4 if opt.get("wpf", 1) == 5 else 0)))
    stamp(3)
    if stamps: a("s_waitcnt lgkmcnt(0)")
    a("v_lshl_add_u64 v[12:13], v[12:13], 0, 1")
    UM = opt.get("umode", 1)
    if UM == 0: a("s_cmp_eq_u32 s24, 7\ns_cbranch_scc1 L_upoll")
    a("s_and_b32 s3, s24, 5\ns_cmp_eq_u32 s3, 5\ns_cbranch_scc1 L_kg3")
    for ks in range(8):
        a("ds_read_b128 %s, %s offset:%d\nds_read_b128 %s, %s offset:%d" % (V(48+8*ks,4), V(K1+2), GP*ks+256, V(52+8*ks,4), V(K1+1), GP*ks))
    a("s_add_u32 s35, s28, %d\ns_cmp_eq_u32 s29, 1\ns_cbranch_scc1 L_ka1\ns_cmp_eq_u32 s29, 0\ns_cbranch_scc1 L_ka0" % UPAD)
    a("v_lshlrev_b32 v4, 2, v2\nv_lshl_add_u32 v4, v3, 8, v4\nv_add_u32 v4, 2048, v4\nv_mov_b32 v5, 64\nv_mov_b32 v6, 128\ns_branch L_ka2")
    a("L_ka0:\nv_lshrrev_b32 v5, 1, v3\nv_lshlrev_b32 v4, 5, v2\nv_lshl_add_u32 v4, v5, 9, v4\nv_and_b32 v5, 1, v3\nv_lshl_add_u32 v4, v5, 4, v4\nv_mov_b32 v5, 4\nv_mov_b32 v6, 8\ns_branch L_ka2")
    a("L_ka1:\nv_lshrrev_b32 v5, 1, v3\nv_sub_u32 v4, 4, v5\nv_lshlrev_b32 v4, v4, v2\nv_lshl_add_u32 v4, v3, 8, v4\nv_add_u32 v4, 1024, v4\nv_mul_u32_u24 v6, 120, v5\nv_add_u32 v6, 8, v6\nv_mov_b32 v5, 4")
    a("L_ka2:\nv_add_u32 v4, s35, v4\nv_add_u32 v6, v4, v6\nv_add_u32 v7, v6, v5\nv_add_u32 v5, v4, v5")
    for ks in range(8):
        a("s_waitcnt lgkmcnt(%d)" % (14-2*ks))
        mfma(112, 48+8*ks, 52+8*ks, "0" if ks == 0 else 112)
    for j in range(4): a("ds_write_b32 %s, %s" % (V(4+j), V(112+j)))
    a("L_kg3:")
    a("s_waitcnt lgkmcnt(0)\ns_barrier")
    if UM == 0: a("buffer_load_dwordx4 v[16:19], v14, s[8:11], s45 offen sc1")
    stamp("c_kf")
    for i in range(11): a("ds_read_b32 %s, %s" % (V(80+i), V(GA+i)))
    a("v_and_b32 v6, 255, v0\nv_cmp_eq_u32 vcc, 255, v6\nv_mov_b32 v23, s31\nv_cndmask_b32 v23, 0, v23, vcc")
    a("v_cmp_lt_u32 vcc, 252, v6\ns_and_saveexec_b64 s[40:41], vcc\ns_cbranch_execz L_kg4")
    for s_ in range(4): a("ds_write_b128 %s, v[120:123] offset:%d" % (V(K2+3), s_*CSTR+48))
    a("L_kg4:\ns_mov_b64 exec, -1")
    a("s_lshl_b32 s3, s26, 12\ns_add_u32 s44, s44, s3")
    a("s_waitcnt lgkmcnt(0)")
    a("v_add_f32 v87, v87, v23")
    for d in range(4):
        for kx in range(4): pk(48+4*d+kx, 80+d+2*kx, 80+d+2*kx+1)
        a("ds_write_b128 %s, %s offset:%d" % (V(K2+3), V(48+4*d,4), (3-d)*CSTR))
    stamp(4)
    a("s_setprio 2")
    ACC = 32; FR = 48
    for j in range(16): a("v_mov_b32 %s, 0" % V(ACC+j))
    if UM == 1:
        a("s_cmp_lg_u32 s24, 0\ns_cbranch_scc1 L_h1c_done")
        opt["pm_h1c"] = opt["pm_h1b"]; opt["sl_h1c"] = opt.get("sl_h1b", 0)
        poll_flags("h1c", 22, 39, 12, "-1")
    if UM == 2:
        a("s_barrier\ns_lshl_b32 s3, s24, 6\ns_add_u32 s39, s39, s3")
        opt["pm_h1c"] = opt["pm_h1b"]; opt["sl_h1c"] = opt.get("sl_h1b", 0)
        poll_flags("h1c", 22, 39, 12, "0xff")
    stamp(5)
    if UM != 2: a("s_barrier")
    if UM: a("buffer_load_dwordx4 v[16:19], v14, s[8:11], s45 offen sc1")
    if opt.get("uearly", 0):
        a("s_mov_b32 s42, %d\ns_branch L_uchk\nL_uld:\nbuffer_load_dwordx4 v[16:19], v14, s[8:11], s45 offen sc1\nL_uchk:\ns_waitcnt vmcnt(0)" % SPIN)
        a("v_max3_u32 v4, v16, v17, v18\nv_max_u32 v4, v4, v19\nv_cmp_eq_u32 vcc, -1, v4\ns_sub_u32 s42, s42, 1\ns_cbranch_scc1 L_udone\ns_cbranch_vccnz L_uld\nL_udone:")
    a("s_mov_b32 s42, 8\ns_waitcnt vmcnt(0)")
    stamp(6)
    a("ds_write_b128 v15, v[16:19] offset:%d" % (UCP+UPAD))
    a("ds_write_b64 v15, v[16:17] offset:%d\nds_write_b64 v15, v[18:19] offset:%d" % (UPAD+8, UPAD+16))
    a("v_cmp_gt_u32 vcc, 2, v0\ns_and_saveexec_b64 s[40:41], vcc\nds_write_b64 v15, v[120:121] offset:%d\ns_mov_b64 exec, -1" % UPAD)
    a("s_waitcnt lgkmcnt(0)\ns_barrier")
    stamp("c_b")
    if smap: a("s_waitcnt lgkmcnt(0)")
    a("s_cmp_ge_u32 s24, 4\ns_cbranch_scc1 L_fchk")
    a("s_bitcmp1_b32 s24, 0\ns_cbranch_scc1 L_cv1")
    def conv(tag, tiles, seq):
        n = len(seq)
        keys = []
        for _,x,y in seq:
            for kx in (x,y):
                if kx not in keys: keys.append(kx)
        reg = {kx: FR+4*i for i,kx in enumerate(keys)}
        assert FR+4*len(keys) <= 120
        last = {}; first = {}
        for i,(_,x,y) in enumerate(seq):
            for kx in (x,y):
                last[kx] = i; first.setdefault(kx, i)
        used = {n-1}; gap = {}
        for kx in sorted(keys, key=lambda q: (first[q]+n, last[q])):
            gq = last[kx]
            while gq % n in used and len(used) < n: gq += 1
            if first[kx] + n - gq < 7: gq = last[kx]
            used.add(gq % n); gap[kx] = gq
        free = [i for i in range(n-1) if i not in {gq % n for gq in gap.values()}]
        dec = {"A": (free + [3])[0], "B": (free[1:] + [9])[0]}
        def rd(kx, rel):
            if kx[0] == "A": a("ds_read_b128 %s, %s offset:%d" % (V(reg[kx],4), V(K2), (7-kx[1])*512 + rel))
            else: a("ds_read_b128 %s, %s offset:%d" % (V(reg[kx],4), V(K2+1), kx[1]*512 + rel))
        order = sorted(keys, key=lambda q: (gap[q] % n, keys.index(q)))
        for kx in order:
            if gap[kx] < n: rd(kx, 64)
        a("L_cvl%s:" % tag)
        WG_ = opt.get("waitgroup", 4)
        for i,(ti,x,y) in enumerate(seq):
            if i % WG_ == 0:
                need = [kx for ii in range(i, min(i+WG_, n)) for kx in seq[ii][1:] if first[kx] == ii]
                if need:
                    def age(kx):
                        g0 = gap[kx] - n
                        assert g0 < i
                        cnt = 0
                        for q in order:
                            for gg in ((gap[q] % n,) if gap[q] >= n else (gap[q] - n, gap[q])):
                                if gg < i and (gg > g0 or (gg == g0 and order.index(q) > order.index(kx))): cnt += 1
                        return cnt
                    a("s_waitcnt lgkmcnt(%d)" % min(min(age(kx) for kx in need), 15))
            mfma(ACC+4*ti, reg[x], reg[y], ACC+4*ti)
            for kx in order:
                if gap[kx] % n == i:
                    rel = (64 if gap[kx] >= n else 0) + (64 if i > dec[kx[0]] else 0)
                    rd(kx, rel)
            for kk,rg in (("A",K2),("B",K2+1)):
                if dec[kk] == i: a("v_subrev_u32 %s, 64, %s" % (V(rg), V(rg)))
            if i == 5: a("s_sub_u32 s42, s42, 1")
            if i == 6: a("s_cmp_lg_u32 s42, 0")
        a("s_cbranch_scc1 L_cvl%s" % tag)
        stamp("c_end")
        a("s_barrier")
        stamp(7)
        for ti,e in reversed(list(enumerate(tiles))):
            pk2(4+2*ti, ACC+4*ti)
            a("buffer_store_dwordx2 %s, %s, s[8:11], s44 offen offset:%d sc1" % (V(4+2*ti,2), V(K2+2), e*512))
        if stamps: a("s_waitcnt vmcnt(0)")
        stamp(8)
    seq0 = [(0,("A",0),("B",7)), (1,("A",0),("B",6)), (2,("A",0),("B",1,"x")), (3,("A",0),("B",0,"x")),
            (0,("A",1),("B",6)), (1,("A",1),("B",5)), (2,("A",1),("B",0,"x"))]
    for m in range(2,8):
        seq0.append((0,("A",m),("B",7-m)))
        if m < 7: seq0.append((1,("A",m),("B",6-m)))
    conv("0", [7,6,1,0], seq0)
    write_stamps(9, "c")
    a("s_endpgm")
    a("L_cv1:")
    seq1 = []
    for m in range(6):
        for ti,e in enumerate([5,4,3,2]):
            if m <= e: seq1.append((ti,("A",m),("B",e-m)))
    conv("1", [5,4,3,2], seq1)
    if opt.get("stampwave",0) & 1: write_stamps(9, "d")
    a("s_endpgm")
    a("L_upoll:")
    if opt.get("wgb", 0):
        a("s_lshr_b32 s39, s25, 5\ns_lshl_b32 s39, s39, 7\ns_and_b32 s3, s25, %d\ns_lshl_b32 s3, s3, 10\ns_add_u32 s39, s39, s3\ns_add_u32 s39, s39, 0x%x" % (opt["wgb"]-1, FLB))
        poll_flags("h1b", 22, 39, 12)
    else: poll_flags("h1b", 22, 39, 12, "-1")
    a("s_branch L_kg3")
    a("L_fchk:")
    for j in range(4): a("v_mov_b32 %s, -1" % V(116+j))
    a("s_add_u32 s45, s45, 0x%x\ns_sub_u32 s44, s45, 4096" % (YT-UT))
    a("buffer_store_dwordx4 v[116:119], v14, s[8:11], s44 offen sc1\nbuffer_store_dwordx4 v[116:119], v14, s[8:11], s45 offen sc1")
    a("s_lshr_b32 s3, s25, 4\ns_lshl_b32 s3, s3, 2\ns_add_u32 s3, s3, s24\ns_lshl_b32 s3, s3, 7\ns_and_b32 s33, s25, 15\ns_lshl_b32 s33, s33, 3\ns_add_u32 s3, s3, s33\ns_add_u32 s3, s3, 0x%x" % (FLB+FLB2-512))
    a("s_waitcnt vmcnt(0)")
    sig(12, 3)
    a("s_barrier")
    a("s_endpgm")
    a("L_A:")
    a("s_lshr_b32 s24, s24, 6\ns_sub_u32 s50, s2, 128")
    a("s_lshl_b32 s31, s24, 17\ns_lshl_b32 s3, s50, 10\ns_add_u32 s31, s31, s3\ns_add_u32 s32, s31, 0x100000")
    a("s_lshl_b32 s33, s24, 10\ns_mov_b32 m0, s33")
    a("s_waitcnt lgkmcnt(0)")
    stamp(1)
    wsadj()
    a("buffer_load_dwordx4 v1, s[4:7], s31 offen %s lds" % NT)
    a("s_add_u32 m0, s33, 8192")
    a("buffer_load_dwordx4 v1, s[4:7], s32 offen %s lds" % NT)
    if opt.get("order", 1): a("s_branch L_A2\nL_Tmark:\nL_A2:")
    a("s_cmp_lg_u32 s24, 0\ns_cselect_b32 s41, 0x8000000, 0\ns_cselect_b32 s38, s24, 16")
    t1_late()
    a("s_sub_u32 s26, 7, s24")
    a("s_and_b32 s3, s50, 7\ns_lshl_b32 s3, s3, 4\ns_lshr_b32 s37, s50, 3\ns_add_u32 s37, s37, s3")
    a("s_lshl_b32 s47, s37, 3\ns_lshl_b32 s3, s26, 10\ns_add_u32 s46, s47, s3\ns_add_u32 s46, s46, 0x%x\ns_add_u32 s47, s47, 0x%x" % (FLA, FLA+FLA2))
    a("s_lshl_b32 s37, s37, 7\ns_lshl_b32 s3, s26, 14\ns_add_u32 s43, s37, s3\ns_add_u32 s36, s37, %d" % (8*16384))
    a("v_cvt_f32_u32 v71, v2\nv_cvt_f32_u32 v87, v3\nv_mul_f32 v4, %s, v71\nv_mul_f32 v87, 4.0, v87\nv_mul_f32 v6, v87, v4" % f32(1/32))
    cs4(C_, Sn, 6, 4, 8)
    a("v_cmp_eq_u32 s[52:53], 0, v2\nv_mov_b32 v76, 0xbf803f80")
    a("v_lshlrev_b32 v4, 31, v2\nv_lshrrev_b32 v5, 16, v4\nv_or_b32 v4, v4, v5")
    pk2(M1re, C_); pk2(M1im, Sn, True)
    a("v_cndmask_b32 v36, v36, v76, s[52:53]\nv_cndmask_b32 v37, v37, v76, s[52:53]")
    a("v_xor_b32 v34, v32, v4\nv_xor_b32 v35, v33, v4\nv_xor_b32 v38, v36, v4\nv_xor_b32 v39, v37, v4")
    a("s_mov_b32 s3, 0x%x\nbuffer_load_dwordx2 v[12:13], off, s[8:11], s3" % EPA)
    prefetch()
    a("v_lshrrev_b32 v68, 1, v1\nv_add_u32 v68, s33, v68")
    a("s_lshl_b32 s3, s24, 4\nv_add_u32 v15, s3, v14")
    a("v_lshlrev_b32 v69, 8, v3\nv_mul_u32_u24 v4, 1040, v2\nv_add3_u32 %s, v4, v69, s3" % V(A1))
    a("v_bfe_i32 v86, v2, 3, 1\nv_and_b32 v84, 0x80008000, v86\nv_xor_b32 v85, 0x80008000, v84")
    a("v_xor_b32 v4, v2, v86\nv_and_b32 v4, 7, v4\nv_mul_u32_u24 v4, 2064, v4\nv_add_u32 v4, v4, v69")
    a("s_lshl_b32 s38, s38, 4\ns_sub_u32 s38, 1280, s38\ns_sub_u32 s39, 1152, s3\ns_add_u32 s40, s3, 128")
    a("v_cmp_gt_u32 vcc, 8, v2\nv_mov_b32 v5, s38\nv_mov_b32 v6, s3\nv_mov_b32 v7, s39\nv_mov_b32 v8, s40")
    a("v_cndmask_b32 v5, v5, v6, vcc\nv_cndmask_b32 v7, v7, v8, vcc\nv_add_u32 %s, v4, v5\nv_add_u32 %s, v4, v7" % (V(A1+1), V(A1+2)))
    a("v_and_b32 v4, 0x1cf, v0\nv_cmp_ne_u32 vcc, 0x1c0, v4\nv_cndmask_b32 %s, 0, -1, vcc" % V(A1+3))
    EARLY = 0
    FP = -1
    def fill2():
        a("buffer_store_dwordx4 v[28:31], v1, s[8:11], s35 offen sc1\nbuffer_store_dwordx4 v[28:31], v1, s[8:11], s35 offen offset:1024 sc1")
        a("buffer_store_dwordx4 v[28:31], v1, s[8:11], s48 offen sc1")
    if FP == 0: fill2()
    a("v_lshl_add_u32 v5, v2, 5, s24\nv_add_u32 v4, 8, v5\nv_cvt_f32_u32 v4, v4\nv_mul_f32 v4, %s, v4\nv_mul_f32 v6, v87, v4" % f32(1/512))
    cs4(C_, Sn, 6, 4, 8)
    a("s_cmp_eq_u32 s24, 0\ns_cselect_b32 s3, 16, 0\nv_and_b32 v4, s3, v86\nv_add_u32 v4, v4, v5\nv_cvt_f32_u32 v4, v4\nv_mul_f32 v4, %s, v4\nv_mul_f32 v6, v87, v4" % f32(1/512))
    pk2(M2+8, C_); pk2(M2+10, Sn)
    cs4(C_, Sn, 6, 4, 8)
    derive(M2+8, 85, 84)
    pk2(M2, C_); pk2(M2+2, Sn)
    derive(M2, 85, 84)
    stamp("a_pre")
    a("s_cbranch_scc0 L_p1_m2")
    a("v_cndmask_b32 %s, %s, v76, s[52:53]\nv_cndmask_b32 %s, %s, v76, s[52:53]" % (V(M2+4), V(M2+4), V(M2+5), V(M2+5)))
    for m in (M2, M2+4):
        for j in range(2):
            a("v_and_b32 %s, %s, v86\nv_xor_b32 %s, %s, %s" % (V(m+2+j), V(m+j), V(m+j), V(m+j), V(m+2+j)))
    a("L_p1_m2:")
    a("v_lshl_add_u32 v4, v3, 9, s50\nv_mul_u32_u24 v4, v4, v2\nv_cvt_f32_u32 v6, v4\nv_mul_f32 v6, %s, v6\nv_mul_f32 v4, %s, v71" % (f32(1/2048), f32(1/16)))
    cs4(C_, Sn, 6, 4, 8)
    pk2(M3, Sn, True); pk2(M3+2, C_); pk2(M3+4, Sn)
    a("s_mul_i32 s3, s26, 2064\nv_add_u32 v70, s3, v1")
    a("v_mul_u32_u24 v16, %d, v3\nv_lshl_add_u32 v16, v2, 2, v16\nv_add_u32 v17, %d, v16\nv_add_u32 v18, %d, v16\nv_add_u32 v19, %d, v16" % (4*QS, QS, 2*QS, 3*QS))
    a("v_mov_b32 %s, 0\nv_mov_b32 %s, 0\nv_lshlrev_b32 v10, 13, v2\nv_mov_b32 v27, 0" % (V(B2+2), V(B2+3)))
    a("s_waitcnt vmcnt(%d) lgkmcnt(0)" % (1 + WX))
    stamp(2)
    a("ds_read_b64_tr_b16 v[88:89], v68\nds_read_b64_tr_b16 v[90:91], v68 offset:512")
    a("ds_read_b64_tr_b16 v[92:93], v68 offset:8192\nds_read_b64_tr_b16 v[94:95], v68 offset:8704")
    if FP == 1: fill2()
    if stamps: a("s_waitcnt lgkmcnt(0)")
    a("s_waitcnt lgkmcnt(2)")
    mfma(E0, B0, M1re); mfma(E0+4, B0, M1im)
    a("s_waitcnt lgkmcnt(0)")
    mfma(E1, B1, M1re); mfma(E1+4, B1, M1im)
    planar(B0, E0, E0+4)
    a("ds_write_b128 %s, %s offset:%d" % (V(A1), V(B0,4), X1))
    planar(B1, E1, E1+4)
    a("ds_write_b128 %s, %s offset:%d" % (V(A1), V(B1,4), X1+128))
    stamp("a_s1")
    def sig_a1():
        a("s_waitcnt vmcnt(0)")
        a("v_lshl_add_u64 v[12:13], v[12:13], 0, 1")
        sig(12, 46, (1 << RA) - 1, 10)
        stamp(4)
    if EARLY == 1: sig_a1()
    a("s_waitcnt lgkmcnt(0)\ns_barrier")
    stamp("a_b1")
    if smap: a("s_waitcnt lgkmcnt(0)")
    a("ds_read_b128 %s, v15 offset:%d\nds_read_b128 %s, v15 offset:%d" % (V(B0,4), X1, V(B1,4), X1+8320))
    if FP == 2: fill2()
    a("s_waitcnt lgkmcnt(1)")
    mfma(E0, B0, M2); mfma(E0+4, B0, M2+4)
    a("s_waitcnt lgkmcnt(0)")
    mfma(E1, B1, M2+8); mfma(E1+4, B1, M2+12)
    planar(B0, E0, E0+4)
    a("ds_write_b128 %s, %s offset:%d" % (V(A1+1), V(B0,4), X2))
    planar(B1, E1, E1+4)
    a("ds_write_b128 %s, %s offset:%d" % (V(A1+2), V(B1,4), X2))
    if EARLY == 2: sig_a1()
    a("s_waitcnt lgkmcnt(0)\ns_barrier")
    stamp("a_b2")
    if smap: a("s_waitcnt lgkmcnt(0)")
    a("ds_read_b128 %s, v70 offset:%d\nds_read_b128 %s, v70 offset:%d" % (V(B1,4), X2+1024, V(B0,4), X2))
    a("ds_read_b64 %s, v69 offset:%d" % (V(B2,2), X2+8))
    a("s_waitcnt lgkmcnt(2)")
    mfma(E1, M3+2, B1); mfma(E1+4, M3, B1)
    a("s_waitcnt lgkmcnt(0)")
    a("v_and_b32 %s, %s, %s\nv_and_b32 %s, %s, %s" % (V(B0+2), V(B0+2), V(A1+3), V(B0+3), V(B0+3), V(A1+3)))
    mfma(E0, M3+2, B0); mfma(E0+4, M3, B0)
    a("s_cmp_lg_u32 s24, 0\ns_cbranch_scc1 L_p1_s3a")
    mfma(E2, M3+2, B2); mfma(E2+4, M3, B2)
    a("L_p1_s3a:")
    def st1(b, E, so, off=0):
        for j in range(4): pk(b+j, E+j, E+4+j)
        for j in range(4):
            a("v_and_b32 %s, -2, %s" % (V(b+j), V(b+j)))
            a("buffer_store_dword %s, %s, s[8:11], %s offen offset:%d sc1" % (V(b+j), V(16+j), S(so), off))
    st1(B1, E1, 43, 64); st1(B0, E0, 43)
    a("s_cbranch_scc1 L_p1_s3b")
    st1(B2, E2, 36)
    for j in range(4): a("buffer_store_dword %s, %s, s[8:11], s36 offen offset:64 sc1" % (V(B2+j), V(16+j)))
    a("L_p1_s3b:")
    stamp(3)
    a("s_lshl_b32 s3, s24, 14\ns_add_u32 s35, s37, s3")
    sig_a1()
    a("s_barrier")
    a("s_mov_b32 s25, s50\ns_mov_b32 s26, 8\ns_cmp_lt_u32 s50, 16\ns_cbranch_scc1 L_p2")
    a("L_p3a:")
    a("v_cvt_f32_u32 v71, v2\nv_cvt_f32_u32 v87, v3\nv_mul_f32 v87, 4.0, v87")
    M3i, M2i, M1i, A3 = 32, 40, 56, 64
    a("s_setprio 0")
    a("v_lshl_add_u32 v4, v2, 7, s50\nv_cvt_f32_u32 v4, v4\nv_mul_f32 v4, %s, v4\nv_mul_f32 v6, v87, v4" % f32(1/2048))
    cs4(C_, Sn, 6, 4, 8)
    for j in range(4):
        pk(M3i+j, C_+j, Sn+j, False, True); pk(M3i+4+j, Sn+j, C_+j)
    a("v_lshlrev_b32 v83, 5, v2\nv_lshl_add_u32 v83, v3, 3, v83")
    a("s_lshl_b32 s43, s24, 18\ns_lshl_b32 s3, s50, 11\ns_add_u32 s43, s43, s3\ns_add_u32 s44, s43, 0x200000")
    a("v_bfe_i32 v86, v3, 1, 1\nv_and_b32 v84, 0x80008000, v86\nv_xor_b32 v85, 0x80008000, v84")
    for j in range(4): a("v_mov_b32 %s, 1" % V(B2+j))
    a("v_lshlrev_b32 v5, 4, v3\nv_mul_u32_u24 v4, 80, v2\ns_mul_i32 s3, s24, 2624\ns_add_u32 s3, s3, %d\nv_add3_u32 %s, v4, v5, s3" % (X2I, V(A3)))
    a("v_mul_u32_u24 v4, 1040, v2\ns_lshl_b32 s3, s24, 6\ns_add_u32 s3, s3, %d\nv_add3_u32 %s, v4, v5, s3" % (X1I, V(A3+3)))
    a("s_cmp_eq_u32 s24, 0\ns_cselect_b32 s3, 16, 0\nv_and_b32 v82, s3, v86")
    a("v_bfe_u32 v4, v0, 2, 4\nv_lshl_add_u32 v4, v4, 5, s24\nv_add_u32 v5, 8, v4\nv_add_u32 v4, v4, v82")
    a("v_and_b32 v6, 48, v14\nv_add_u32 v6, %d, v6\nv_and_b32 v7, 513, v86" % X2I)
    a("v_bfe_u32 v8, v0, 2, 4\nv_xor_b32 v8, v8, v86\nv_and_b32 v8, 7, v8\nv_lshl_add_u32 v6, v8, 6, v6")
    for p,r in ((1,4),(2,5)):
        a("v_xor_b32 %s, %s, v86\nv_add_u32 %s, %s, v7\nv_mul_u32_u24 %s, 80, %s\nv_add_u32 %s, %s, v6" % (V(r),V(r),V(r),V(r),V(r),V(r),V(A3+p),V(r)))
    a("v_lshl_add_u32 v5, v3, 7, s24\nv_add_u32 v7, 8, v5\nv_mul_u32_u24 v7, v7, v2\nv_cvt_f32_u32 v6, v7\nv_mul_f32 v6, %s, v6\nv_mul_f32 v4, %s, v71" % (f32(1/512), f32(1/16)))
    cs4(C_, Sn, 6, 4, 8)
    a("v_add_u32 v7, v5, v82\nv_mul_u32_u24 v7, v7, v2\nv_cvt_f32_u32 v6, v7\nv_mul_f32 v6, %s, v6" % f32(1/512))
    def m2i(m):
        pk2(m, C_); pk2(m+4, Sn)
        a("v_xor_b32 %s, %s, v85\nv_xor_b32 %s, %s, v85\nv_xor_b32 %s, %s, v84\nv_xor_b32 %s, %s, v84" % (V(m+2),V(m+4),V(m+3),V(m+5),V(m+6),V(m),V(m+7),V(m+1)))
    m2i(M2i+8)
    cs4(C_, Sn, 6, 4, 8)
    a("v_lshlrev_b32 v7, 31, v2\nv_cmp_eq_u32 vcc, 0, v3")
    a("s_cbranch_scc0 L_p3_m2")
    a("v_xor_b32 v5, %s, v7\nv_mov_b32 v4, 0.5\nv_cndmask_b32 %s, %s, v4, vcc\nv_cndmask_b32 %s, %s, v5, vcc" % (f32(-0.5), V(C_), V(C_), V(Sn), V(Sn)))
    a("L_p3_m2:")
    m2i(M2i)
    a("s_cbranch_scc0 L_p3_m3")
    for j in range(4): a("v_and_b32 %s, %s, v86\nv_xor_b32 %s, %s, %s" % (V(M2i+4+j), V(M2i+j), V(M2i+j), V(M2i+j), V(M2i+4+j)))
    a("L_p3_m3:")
    a("v_mul_f32 v4, %s, v71\nv_mul_f32 v6, v87, v4" % f32(1/32))
    cs4(C_, Sn, 6, 4, 8)
    a("v_xor_b32 v5, -1.0, v7\nv_cndmask_b32 %s, %s, v5, vcc" % (V(Sn), V(Sn)))
    for j in range(8): a("v_mul_f32 %s, %s, %s" % (V(C_+j), f32(2.0**-19), V(C_+j)))
    pk2(M1i, C_); pk2(M1i+2, Sn, True)
    for j in range(4): a("v_xor_b32 %s, 0x80000000, %s" % (V(M1i+4+j), V(M1i+j)))
    a("s_mov_b32 s42, %d" % SPIN)
    a("s_setprio 3\ns_waitcnt lgkmcnt(0)")
    stamp(6)
    prepoll("h2ap", 8, 35 if opt.get("ppt", 0) == 0 else 36, 64)
    stamp(7)
    def ld3(b):
        for j in range(4): a("buffer_load_dword %s, %s, s[8:11], %s offen offset:%d sc1" % (V(B0+4*b+j), V(16+j), S(36 if b == 2 else 35), 64 if b == 1 else 0))
    poll12("h2a", ld3, "s_cmp_eq_u32 s24, 0")
    stamp(8)
    mfma(E1, M3i, B1); mfma(E1+4, M3i+4, B1)
    mfma(E0, M3i, B0); mfma(E0+4, M3i+4, B0)
    mfma(E2, M3i, B2)
    planar(B1, E1, E1+4)
    a("ds_write_b128 %s, %s offset:1280" % (V(A3), V(B1,4)))
    planar(B0, E0, E0+4)
    a("s_cmp_lg_u32 s24, 0\ns_cbranch_scc1 L_p3_a")
    pk2(B2, E2)
    a("v_cndmask_b32 %s, %s, %s, s[52:53]\nv_cndmask_b32 %s, %s, %s, s[52:53]" % (V(B0+2), V(B0+2), V(B2), V(B0+3), V(B0+3), V(B2+1)))
    a("L_p3_a:")
    a("ds_write_b128 %s, %s" % (V(A3), V(B0,4)))
    a("s_waitcnt lgkmcnt(0)\ns_barrier")
    stamp("a_3b1")
    if smap: a("s_waitcnt lgkmcnt(0)")
    for p,b in ((1,B0),(2,B1)):
        a("ds_read_b64_tr_b16 %s, %s\nds_read_b64_tr_b16 %s, %s offset:8" % (V(b,2), V(A3+p), V(b+2,2), V(A3+p)))
    a("s_waitcnt lgkmcnt(2)")
    mfma(E0, M2i, B0); mfma(E0+4, M2i+4, B0)
    a("s_waitcnt lgkmcnt(0)")
    mfma(E1, M2i+8, B1); mfma(E1+4, M2i+12, B1)
    planar(B0, E0, E0+4)
    a("ds_write_b128 %s, %s" % (V(A3+3), V(B0,4)))
    planar(B1, E1, E1+4)
    a("ds_write_b128 %s, %s offset:512" % (V(A3+3), V(B1,4)))
    a("s_waitcnt lgkmcnt(0)\ns_barrier")
    stamp("a_3b2")
    if smap: a("s_waitcnt lgkmcnt(0)")
    for e,b in ((0,B0),(1,B1)):
        a("ds_read_b64_tr_b16 %s, v15 offset:%d\nds_read_b64_tr_b16 %s, v15 offset:%d" % (V(b,2), X1I+8320*e, V(b+2,2), X1I+8320*e+8))
    a("s_waitcnt lgkmcnt(2)")
    mfma(E0, B0, M1i); mfma(E0+4, B0, M1i+4)
    a("s_waitcnt lgkmcnt(0)")
    mfma(E1, B1, M1i); mfma(E1+4, B1, M1i+4)
    planar(B0, E0, E0+4)
    a("buffer_store_dwordx2 %s, v83, s[12:15], s43 offen %s\nbuffer_store_dwordx2 %s, v83, s[12:15], s43 offen offset:512 %s" % (V(B0,2), osc, V(B0+2,2), osc))
    planar(B1, E1, E1+4)
    a("buffer_store_dwordx2 %s, v83, s[12:15], s44 offen %s\nbuffer_store_dwordx2 %s, v83, s[12:15], s44 offen offset:512 %s" % (V(B1,2), osc, V(B1+2,2), osc))
    stamp("a_3st")
    a("s_or_b32 s3, s50, s24\ns_cmp_lg_u32 s3, 0\ns_cbranch_scc1 L_p3_c")
    a("s_mov_b32 s3, 0x%x\nbuffer_store_dwordx2 v[12:13], off, s[8:11], s3 sc1" % EPA)
    a("L_p3_c:")
    if stamps: a("s_waitcnt vmcnt(0)")
    stamp(9)
    write_stamps(10, "a")
    a("s_endpgm")
    a("L_T:")
    a("s_lshr_b32 s24, s24, 6")
    if opt.get("mapv", 1): a("s_lshr_b32 s31, s2, 4\ns_and_b32 s32, s2, 15")
    else: a("s_and_b32 s31, s2, 7\ns_lshr_b32 s32, s2, 3")
    a("s_lshr_b32 s33, s24, 1\ns_and_b32 s34, s24, 1")
    a("s_lshl_b32 s32, s32, 2\ns_add_u32 s32, s32, s33")
    a("s_lshl_b32 s35, s31, 1\ns_add_u32 s35, s35, s34")
    a("v_bfe_u32 v4, v0, 2, 4\nv_and_b32 v5, 48, v14\nv_lshl_add_u32 v6, v4, 10, v5\nv_lshl_add_u32 v27, v4, 12, v5")
    a("s_lshl_b32 s36, s32, 15\ns_lshl_b32 s3, s35, 6\ns_add_u32 s36, s36, s3\ns_add_u32 s37, s36, 0x4000")
    a("s_lshl_b32 s38, s24, 11\ns_add_u32 s38, s38, %d\ns_mov_b32 m0, s38" % TR)
    a("s_waitcnt lgkmcnt(0)")
    stamp(1)
    wsadj()
    a("buffer_load_dwordx4 v6, s[4:7], s36 offen %s lds" % NT)
    a("s_add_u32 m0, s38, 1024")
    a("buffer_load_dwordx4 v6, s[4:7], s37 offen %s lds" % NT)
    if opt.get("order", 1): a("s_branch L_T2\nL_Tcut:\nL_T2:")
    prefetch()
    t1_late()
    a("s_lshl_b32 s3, s31, 7\ns_add_u32 s49, s3, 0x%x" % EPB)
    a("buffer_load_dwordx2 v[124:125], off, s[8:11], s49")
    a("s_mov_b32 s3, 0x%x\nbuffer_load_dwordx2 v[12:13], off, s[8:11], s3" % EPA)
    a("s_lshl_b32 s43, s35, 17\ns_lshl_b32 s3, s32, 6\ns_add_u32 s43, s43, s3")
    a("s_add_u32 s47, s43, 0x%x\ns_add_u32 s48, s47, 0x10000" % YT)
    a("v_lshrrev_b32 v8, 2, v2\nv_lshl_add_u32 v8, v3, 3, v8\nv_and_b32 v9, 3, v2\nv_lshlrev_b32 v9, 3, v9\nv_lshl_add_u32 v8, v8, 6, v9\nv_add_u32 v26, s38, v8")
    a("v_lshrrev_b32 v25, 1, v2\nv_lshlrev_b32 v25, 13, v25\nv_lshl_add_u32 v25, v3, 5, v25\nv_and_b32 v9, 16, v14\nv_add_u32 v25, v25, v9")
    a("s_add_u32 s43, s43, s3\ns_add_u32 s43, s43, 0x%x\ns_add_u32 s44, s43, 0x10000" % UT)
    a("s_lshl_b32 s46, s35, 9\ns_lshl_b32 s3, s32, 3\ns_add_u32 s46, s46, s3\ns_add_u32 s46, s46, 0x%x" % FLB)
    a("s_and_b32 s25, s2, 15\ns_lshr_b32 s26, s2, 4")
    a("s_lshl_b32 s3, s24, 4\nv_add_u32 v15, s3, v14")
    for j in range(4): a("v_mov_b32 %s, 0" % V(16+j))
    a("s_waitcnt vmcnt(%d) lgkmcnt(0)" % (2 + WX))
    stamp(2)
    for h in range(2):
        for p in range(2):
            a("ds_read_b64_tr_b16 %s, v26 offset:%d" % (V(B0+4*h+2*p, 2), 32*h+256*p))
    if stamps: a("s_waitcnt lgkmcnt(0)")
    a("s_waitcnt lgkmcnt(2)\nbuffer_store_dwordx4 %s, v25, s[8:11], s43 offen sc1" % V(B0,4))
    a("s_waitcnt lgkmcnt(0)\nbuffer_store_dwordx4 %s, v25, s[8:11], s44 offen sc1" % V(B1,4))
    stamp(3)
    a("s_waitcnt vmcnt(0)")
    a("v_lshl_add_u64 v[124:125], v[124:125], 0, 1")
    sig(124, 46)
    stamp(4)
    a("v_lshl_add_u64 v[12:13], v[12:13], 0, 1")
    a("s_barrier")
    a("L_p2:")
    a("s_load_dwordx2 s[16:17], s[0:1], 8\ns_load_dwordx2 s[20:21], s[0:1], 16")
    srd_consts(16, 2048*514); srd_consts(20, 2048*514)
    a("v_lshrrev_b32 v4, 1, v3\nv_and_b32 v5, 1, v3\nv_lshlrev_b32 v6, 10, v5\nv_lshl_add_u32 v6, v4, 4, v6\nv_mul_u32_u24 v6, 514, v6\ns_cmp_lt_u32 s26, 8\ns_cselect_b32 s3, 2, 0\nv_mad_u32_u24 v60, v2, s3, v6")
    a("s_lshl_b32 s27, s24, 5\ns_add_u32 s27, s27, s25\ns_mul_i32 s27, s27, 514\ns_lshl_b32 s3, s26, 6\ns_add_u32 s27, s27, s3\ns_add_u32 s28, s27, %d\ns_add_u32 s29, s27, %d\ns_add_u32 s30, s27, %d" % (131584, 2*131584, 3*131584))
    for j in range(16): a("v_mov_b32 %s, 0" % V(Wa+j))
    a("v_mul_u32_u24 v56, 528, v2\nv_lshl_add_u32 v56, v3, 4, v56\ns_lshl_b32 s3, s24, 6\nv_add_u32 v56, s3, v56")
    a("v_mul_u32_u24 v57, 528, v4\nv_and_b32 v6, 0x1f0, v1\nv_add_u32 v57, v57, v6\ns_mul_i32 s3, s24, 1056\nv_add_u32 v57, s3, v57")
    a("v_and_b32 v7, 7, v2\nv_mul_u32_u24 v58, 1040, v7\nv_lshrrev_b32 v8, 3, v2\nv_lshl_add_u32 v58, v8, 6, v58\nv_lshl_add_u32 v58, v3, 4, v58\ns_lshl_b32 s3, s24, 7\nv_add_u32 v58, s3, v58")
    a("v_cmp_eq_u32 vcc, v4, v8")
    a("s_waitcnt lgkmcnt(0)")
    for e in range(2):
        if e: a("s_cmp_lt_u32 s26, 8\ns_cbranch_scc0 L_p2w")
        for j in range(4):
            a("buffer_load_short_d16_hi %s, v60, s[16:19], %s offen offset:%d" % (V(Wa+8*e+j), S(27+j), 32*e))
            a("buffer_load_short_d16_hi %s, v60, s[20:23], %s offen offset:%d" % (V(Wa+8*e+4+j), S(27+j), 32*e))
    a("L_p2w:")
    a("s_setprio %d" % opt.get("p2sp", 2))
    a("v_cvt_f32_u32 v4, v7\nv_cvt_f32_u32 v5, v5\nv_mul_f32 v4, %s, v4\nv_mul_f32 v5, 4.0, v5\nv_mul_f32 v6, v5, v4" % f32(0.125))
    cs4(C_, Sn, 6, 4, 8)
    pk2(Fb, Sn, True); pk2(Fb+2, C_); pk2(Fb+4, Sn)
    for i in range(6): a("v_cndmask_b32 %s, 0, %s, vcc" % (V(Fb+i), V(Fb+i)))
    a("v_mov_b32 %s, %s\nv_mov_b32 %s, %s\nv_mov_b32 %s, %s\nv_mov_b32 %s, %s" % (V(Fb+6),V(Fb+2),V(Fb+7),V(Fb+3),V(Fb+8),V(Fb),V(Fb+9),V(Fb+1)))
    a("v_lshl_add_u32 v4, v3, 3, s24\nv_mul_u32_u24 v4, v4, v2\nv_cvt_f32_u32 v6, v4\nv_cvt_f32_u32 v4, v2\nv_mul_f32 v6, %s, v6\nv_mul_f32 v4, %s, v4" % (f32(1/128), f32(0.25)))
    cs4(C_, Sn, 6, 4, 8)
    for j in range(4):
        pk(Ma+j, C_+j, Sn+j); pk(Ma+4+j, Sn+j, C_+j, True, False)
    a("v_and_b32 v4, 3, v2\nv_lshrrev_b32 v5, 2, v2\nv_lshl_add_u32 v4, v4, 2, v5\nv_lshl_add_u32 v4, v4, 3, s24\nv_cvt_f32_u32 v4, v4\nv_cvt_f32_u32 v5, v3\nv_mul_f32 v4, %s, v4\nv_mul_f32 v6, 4.0, v5\nv_mul_f32 v6, v6, v4" % f32(1/128))
    cs4(C_, Sn, 6, 4, 8)
    pk2(Mi, Sn); pk2(Mi+2, C_); pk2(Mi+4, Sn, True)
    a("v_lshlrev_b32 v126, 2, v2\nv_lshl_add_u32 v126, v3, 7, v126\nv_lshlrev_b32 v11, 3, v2")
    a("s_mul_i32 s74, s25, %d\ns_lshl_b32 s3, s24, 11\ns_add_u32 s74, s74, s3\ns_lshl_b32 s3, s26, 14\ns_add_u32 s74, s74, s3" % QS)
    a("s_lshl_b32 s78, s24, 7\ns_add_u32 s78, s78, 0x%x\ns_min_u32 s39, s26, 7\ns_lshl_b32 s39, s39, 10\ns_add_u32 s39, s39, s78\ns_and_b32 s3, s25, %d\ns_lshl_b32 s3, s3, 13\ns_add_u32 s39, s39, s3" % (FLA, RA-1))
    a("s_setprio 3")
    stamp("t_w")
    poll_flags("h1a", 11, 39, 12)
    stamp(5)
    T2 = ((0,B0,E0,Wa),(1,B1,E1,Wa+8))
    for e,b,E,w_ in T2:
        for j in range(4): a("buffer_load_dword %s, v126, s[8:11], s74 offen offset:%d sc1" % (V(b+j), 512*j + 64*e))
    a("s_waitcnt vmcnt(4)")
    mfma(E0, B0, Ma); mfma(E0+4, B0, Ma+4)
    a("s_waitcnt vmcnt(0)")
    stamp(6)
    mfma(E1, B1, Ma); mfma(E1+4, B1, Ma+4)
    for e,b,E,w_ in T2:
        planar(b, E, E+4)
        a("ds_write_b128 %s, %s offset:%d" % (V(A2), V(b,4), LYS*e))
    stamp("t_s1")
    a("s_waitcnt lgkmcnt(0)\ns_barrier")
    stamp("t_b1")
    if smap: a("s_waitcnt lgkmcnt(0)")
    for e,b,E,w_ in T2:
        a("ds_read_b64_tr_b16 %s, %s offset:%d\nds_read_b64_tr_b16 %s, %s offset:%d" % (V(b,2), V(A2+1), LYS*e, V(b+2,2), V(A2+1), LYS*e+8))
    a("s_waitcnt lgkmcnt(2)")
    mfma(E0, Fb+2, B0); mfma(E0+4, Fb, B0)
    a("s_waitcnt lgkmcnt(0)")
    mfma(E1, Fb+2, B1); mfma(E1+4, Fb, B1)
    for e,b,E,w_ in T2:
        F = 80
        for j in range(4): a("v_mul_f32 %s, %s, %s\nv_mul_f32 %s, %s, %s" % (V(F+j), V(E+j), V(w_+j), V(F+4+j), V(E+j), V(w_+4+j)))
        for j in range(4): a("v_fma_f32 %s, -%s, %s, %s\nv_fmac_f32 %s, %s, %s" % (V(F+j), V(E+4+j), V(w_+4+j), V(F+j), V(F+4+j), V(E+4+j), V(w_+j)))
        planar(b, F, F+4)
        mfma(E, b, Fb+6); mfma(E+4, b, Fb+4)
    for e,b,E,w_ in T2:
        planar(b, E, E+4)
        a("ds_write_b128 %s, %s offset:%d" % (V(A2+2), V(b,4), LY2+LY2S*e))
    stamp("t_s2")
    a("s_waitcnt lgkmcnt(0)\ns_barrier")
    stamp("t_b2")
    if smap: a("s_waitcnt lgkmcnt(0)")
    for e,b,E,w_ in T2:
        a("ds_read_b64_tr_b16 %s, v15 offset:%d\nds_read_b64_tr_b16 %s, v15 offset:%d" % (V(b,2), LY2+LY2S*e, V(b+2,2), LY2+LY2S*e+8))
    a("s_waitcnt lgkmcnt(2)")
    mfma(E0, Mi+2, B0); mfma(E0+4, Mi, B0)
    a("s_waitcnt lgkmcnt(0)")
    mfma(E1, Mi+2, B1); mfma(E1+4, Mi, B1)
    for e,b,E,w_ in T2:
        for j in range(4): pk(b+j, E+j, E+4+j)
        for j in range(4):
            a("v_or_b32 %s, 1, %s" % (V(b+j), V(b+j)))
            a("buffer_store_dword %s, v126, s[8:11], s74 offen offset:%d sc1" % (V(b+j), 512*j + 64*e))
    stamp("p2e")
    a("s_cmp_ge_u32 s2, 128\ns_cbranch_scc1 L_p3a")
    stamp(7)
    osc = opt.get("osct", osc)
    a("s_lshl_b32 s40, s35, 2\ns_lshr_b32 s3, s32, 4\ns_add_u32 s40, s40, s3\ns_lshl_b32 s40, s40, 7\ns_add_u32 s40, s40, 0x%x" % (FLB+FLB2))
    a("v_add_u32 v7, s38, v1")
    a("v_bfe_u32 v9, v0, 2, 4\nv_and_b32 v10, 48, v14\nv_mul_u32_u24 v24, 80, v9\nv_lshl_add_u32 v9, v9, 11, v10")
    a("s_mul_i32 s3, s24, 2560\nv_add3_u32 v24, v24, v10, s3\nv_mul_u32_u24 v25, 80, v2\nv_lshl_add_u32 v25, v3, 4, v25\nv_add_u32 v25, s3, v25")
    a("s_lshl_b32 s37, s32, 16\ns_lshl_b32 s3, s35, 6\ns_add_u32 s37, s37, s3\ns_add_u32 s37, s37, 1024\ns_add_u32 s36, s37, 0x8000")
    poll_flags("h1g", 11, 40, 124)
    stamp("t_g")
    a("s_mov_b32 s42, %d" % SPIN)
    prepoll("h2bp", 8, 47, 0)
    stamp("t_pp")
    a("L_h2b:")
    if opt.get("sl_h2b"): a("s_sleep %d" % opt["sl_h2b"])
    a("buffer_load_dwordx4 v[88:91], v27, s[8:11], s47 offen sc1\nbuffer_load_dwordx4 v[92:95], v27, s[8:11], s48 offen sc1")
    a("s_waitcnt vmcnt(0)")
    a("v_max3_u32 v4, v88, v89, v90\nv_max3_u32 v5, v91, v92, v93\nv_max3_u32 v4, v4, v94, v95\nv_max_u32 v4, v4, v5\nv_cmp_eq_u32 vcc, -1, v4")
    a("s_sub_u32 s42, s42, 1\ns_cbranch_scc1 L_h2b_done\ns_cbranch_vccnz L_h2b")
    a("L_h2b_done:")
    stamp(8)
    a("ds_write_b128 v7, v[88:91]\nds_write_b128 v7, v[92:95] offset:1024")
    if stamps: a("s_waitcnt lgkmcnt(0)")
    for h in range(2):
        for p in range(2):
            a("ds_read_b64_tr_b16 %s, v26 offset:%d" % (V(96+4*h+2*p, 2), 32*h+256*p))
    a("s_waitcnt lgkmcnt(2)\nds_write_b128 v25, v[96:99] offset:%d" % BNC)
    a("s_waitcnt lgkmcnt(1)\nds_write_b128 v25, v[100:103] offset:%d" % (BNC+1280))
    a("ds_read_b128 v[88:91], v24 offset:%d\nds_read_b128 v[92:95], v24 offset:%d" % (BNC, BNC+1280))
    a("s_waitcnt lgkmcnt(1)\nbuffer_store_dwordx4 v[88:91], v9, s[12:15], s37 offen %s" % osc)
    a("s_waitcnt lgkmcnt(0)\nbuffer_store_dwordx4 v[92:95], v9, s[12:15], s36 offen %s" % osc)
    a("s_cmp_ge_u32 s32, 4\ns_cbranch_scc1 L_yt_c")
    a("s_barrier")
    a("s_cmp_lg_u32 s24, 0\ns_cbranch_scc1 L_yt_c")
    a("buffer_store_dwordx2 v[124:125], off, s[8:11], s49 sc1")
    a("L_yt_c:")
    if stamps: a("s_waitcnt vmcnt(0)")
    stamp(9)
    write_stamps(10, "y")
    a("s_endpgm")

    a("L_end:\ns_endpgm\nLcode_end:")
    a.raw(""".section .rodata,"a"
.p2align 6
.amdhsa_kernel %s
  .amdhsa_next_free_vgpr 128
  .amdhsa_next_free_sgpr %d
  .amdhsa_accum_offset 128
  .amdhsa_group_segment_fixed_size 0
  .amdhsa_kernarg_size 120
  .amdhsa_user_sgpr_count 2
  .amdhsa_user_sgpr_kernarg_segment_ptr 1
  .amdhsa_system_sgpr_workgroup_id_x 1
.end_amdhsa_kernel""" % (k, 100 if stamps else 80))
    if opt.get("order", 1):
        L_ = a.lines
        ix = lambda lab: L_.index(lab + ":")
        pa = L_[ix("L_A"):ix("L_Tmark")]; pt = L_[ix("L_T"):ix("L_Tcut")]
        rest = [l for i,l in enumerate(L_) if not (ix("L_A") <= i <= ix("L_Tmark") or ix("L_T") <= i <= ix("L_Tcut"))]
        m = rest.index("L_2mark:")
        a.lines = rest[:m] + pt + pa + rest[m+1:]
    return a
def t2only(s):
    return s.replace("L_A:\n","L_A:\n    s_endpgm\n",1).replace("L_T:\n","L_T:\n    s_endpgm\n",1).replace("s_mov_b32 s42, %d" % SPIN,"s_mov_b32 s42, 0")
if __name__ == "__main__":
    a = gen(False); open("k.s","w").write(a.text()); print("instructions", a.ninst, "src", len(a.text()))
    a = gen(True); open("k_st.s","w").write(a.text())
    for p in sys.argv[1:]:
        a = gen(True, (p[0], int(p[1:]))); open("k_pr_%s.s" % p,"w").write(a.text())
```

```python
from gen17 import *
def o(**k): return k
open("k_a.s","w").write(gen(False, None, o(order=0)).text())
open("k_b.s","w").write(gen(False, None, o(order=0, osct="sc1")).text())
open("k_c.s","w").write(gen(False, None, o(order=0, osc="sc1", osct="")).text())
open("k_d.s","w").write(gen(False, None, o(order=0, osct="sc1 nt")).text())
```

```python
from gen17 import *
def o(**k): return k
open("k_a.s","w").write(gen(False, None, o(osc="sc1 nt")).text())
open("k_b.s","w").write(gen(False, None, o(osct="sc1 nt")).text())
open("k_c.s","w").write(gen(False, None, o(osc="sc1 nt", osct="")).text())
open("k_d.s","w").write(gen(False, None, o(osc="sc1", osct="sc1 nt")).text())
open("k_e.s","w").write(gen(False, None, o(osc="sc0 sc1 nt")).text())
```
